```python
import torch

def _softmax(x, axis=-1):
    return torch.softmax(x, dim=axis)
def _gelu(x):
    return torch.nn.functional.gelu(x, approximate="tanh")
def _silu(x):
    return torch.nn.functional.silu(x)
def _sigmoid(x):
    return torch.sigmoid(x)
def _layernorm(x, axis=-1, eps=1e-5):
    m = x.mean(dim=axis, keepdim=True)
    v = x.var(dim=axis, keepdim=True, unbiased=False)
    return (x - m) / torch.sqrt(v + eps)
def _scatter_add(tgt, idx, src, axis=0):
    return tgt.clone().index_add_(axis, idx, src)
def _segment_sum(src, seg, n):
    out = torch.zeros((n,) + src.shape[1:], dtype=src.dtype)
    return out.index_add_(0, seg, src)
def _pad(x, pw):
    flat = tuple(v for pair in reversed(pw) for v in pair)
    return torch.nn.functional.pad(x, flat)

kernel_name = 'sequential_preLN__ssm_conv_h3__glu_gated_geglu__prompt'

def setup_inputs():

    _w = (lambda a: (lambda t: t.to(torch.bfloat16) if t.is_floating_point() else t)(torch.as_tensor(a)))
    def _A_setup():
        B, S, D = 1, 2048, 576
        ks = 4
        return {
            "q": _w((lambda *s: torch.randn(*s, dtype=torch.bfloat16) * 0.05)(B, S, D)),
            "k": _w((lambda *s: torch.randn(*s, dtype=torch.bfloat16) * 0.2)(B, S, D)),
            "v": _w((lambda *s: torch.randn(*s, dtype=torch.bfloat16) * 0.2)(B, S, D)),
            "shift_k": _w((lambda *s: torch.randn(*s, dtype=torch.bfloat16) * 0.2)(D, ks) * 0.5),
            "ssm_k": _w((lambda *s: torch.randn(*s, dtype=torch.bfloat16) * 0.4)(D, S) * (1.0 / S ** 0.5)),
            "ssm_D": _w((lambda *s: torch.randn(*s, dtype=torch.bfloat16) * 0.2)(D)),
        }
    _A_in = _A_setup()

    def _B_setup():
        B, S, Dm, Df = 1, 2048, 576, 4608
        return {
            "x": _w((lambda *s: torch.randn(*s, dtype=torch.bfloat16) * 0.05)(B, S, Dm)),
            "w_gate": _w((lambda *s: torch.randn(*s, dtype=torch.bfloat16) * 0.4)(Dm, Df) * (Dm ** -0.5)),
            "w_up": _w((lambda *s: torch.randn(*s, dtype=torch.bfloat16) * 0.4)(Dm, Df) * (Dm ** -0.5)),
            "w_down": _w((lambda *s: torch.randn(*s, dtype=torch.bfloat16) * 0.4)(Df, Dm) * (Df ** -0.5)),
        }
    _B_in = _B_setup()

    return {
        "A_q": _A_in["q"],
        "A_k": _A_in["k"],
        "A_v": _A_in["v"],
        "A_shift_k": _A_in["shift_k"],
        "A_ssm_k": _A_in["ssm_k"],
        "A_ssm_D": _A_in["ssm_D"],
        "B_x": _B_in["x"],
        "B_w_gate": _B_in["w_gate"],
        "B_w_up": _B_in["w_up"],
        "B_w_down": _B_in["w_down"],
    }

def reference(A_q, A_k, A_v, A_shift_k, A_ssm_k, A_ssm_D, B_x, B_w_gate, B_w_up, B_w_down):
    def _A_ref(q, k, v, shift_k, ssm_k, ssm_D):
        B, S, D = q.shape
        ks = shift_k.shape[-1]
        k_pad = _pad(k, ((0, 0), (ks - 1, 0), (0, 0)))
        k_shift = torch.zeros_like(k)
        for t in range(ks):
            k_shift = k_shift + k_pad[:, t:t + S, :] * shift_k[:, ks - 1 - t][None, None, :]
        kv = k_shift * v
        L = 2 * S
        kv_pad = _pad(kv, ((0, 0), (0, S), (0, 0)))
        kf_pad = _pad(ssm_k, ((0, 0), (0, S)))
        kv_f = (lambda x, axes=(-2,-1): torch.fft.rfft2(x.float(), dim=axes))(kv_pad[:, None, :, :], axes=(1, 2))
        kf_f = (lambda x, axes=(-2,-1): torch.fft.rfft2(x.float(), dim=axes))(kf_pad[:, None, :], axes=(1, 2))
        kf_f = (lambda x, *d: x.permute(*d))(kf_f, 1, 2, 0)
        y_f = kv_f * kf_f[None, :, :, :]
        y = (lambda x, s, axes=(-2,-1): torch.fft.irfft2(x, s=s, dim=axes).to(torch.bfloat16))(y_f, (1, L), axes=(1, 2))[:, 0, :S, :]
        y = y + kv * ssm_D[None, None, :]
        return q * y

    def _B_ref(x, w_gate, w_up, w_down):
        g = torch.einsum("bsd,df->bsf", x, w_gate)
        u = torch.einsum("bsd,df->bsf", x, w_up)
        h = _gelu(g) * u
        return torch.einsum("bsf,fd->bsd", h, w_down)

    x = A_q
    h = x + _A_ref(_layernorm(x, axis=-1), A_k, A_v, A_shift_k, A_ssm_k, A_ssm_D)
    h2 = h + _B_ref(_layernorm(h, axis=-1), B_w_gate, B_w_up, B_w_down)
    return h2
```

```python
class Asm:
    def __init__(self):
        self.lines = []
        self.kernels = []
        self.launches = []
        self._lab = 0
    def e(self, s=""):
        for ln in s.strip("\n").split("\n"):
            self.lines.append("    " + ln.strip() if ln.strip() and not ln.strip().endswith(":") else ln.strip())
    def label(self, name):
        self.lines.append(name + ":")
    def newlabel(self, base="L"):
        self._lab += 1
        return f"{base}_{self._lab}"
    def kernel_begin(self, name):
        self.lines += [f".globl {name}", ".p2align 8", f".type {name},@function", f"{name}:"]
    def kernel_end(self, name, vgpr, sgpr, accum=None):
        if accum is None:
            accum = (vgpr + 3) // 4 * 4
        self.kernels.append((name, vgpr, sgpr, accum))
    def launch(self, name, grid, block, lds):
        self.launches.append(f"; @launch kernel={name} grid=({grid},1,1) block=({block},1,1) lds={lds}")
    def srd(self, d, lo, hi, nbytes):
        self.e(f"s_mov_b32 s{d}, s{lo}")
        self.e(f"s_mov_b32 s{d+1}, s{hi}")
        self.e(f"s_mov_b32 s{d+2}, {nbytes:#x}")
        self.e(f"s_mov_b32 s{d+3}, 0x00020000")
    def srd_off(self, d, lo, hi, off, nbytes):
        o = f"{off:#x}" if isinstance(off, int) else off
        self.e(f"s_add_u32 s{d}, s{lo}, {o}")
        self.e(f"s_addc_u32 s{d+1}, s{hi}, 0")
        self.e(f"s_mov_b32 s{d+2}, {nbytes:#x}")
        self.e(f"s_mov_b32 s{d+3}, 0x00020000")
    def text(self, header=""):
        out = []
        if header:
            out.append(header.rstrip("\n"))
        out += self.launches
        out += ['.amdgcn_target "amdgcn-amd-amdhsa--gfx950"', ".text"]
        out += self.lines
        out += ['.section .rodata,"a"']
        for (name, vgpr, sgpr, accum) in self.kernels:
            out += [".p2align 6", f".amdhsa_kernel {name}",
                    f"  .amdhsa_next_free_vgpr {vgpr}",
                    f"  .amdhsa_next_free_sgpr {sgpr}",
                    f"  .amdhsa_accum_offset {accum}",
                    "  .amdhsa_group_segment_fixed_size 0",
                    "  .amdhsa_kernarg_size 104",
                    "  .amdhsa_user_sgpr_count 2",
                    "  .amdhsa_user_sgpr_kernarg_segment_ptr 1",
                    "  .amdhsa_system_sgpr_workgroup_id_x 1",
                    ".end_amdhsa_kernel"]
        return "\n".join(out) + "\n"

def v(i, n=1):
    return f"v{i}" if n == 1 else f"v[{i}:{i+n-1}]"
def a(i, n=1):
    return f"a{i}" if n == 1 else f"a[{i}:{i+n-1}]"
def s(i, n=1):
    return f"s{i}" if n == 1 else f"s[{i}:{i+n-1}]"
```

```python
import sys
from asmlib import Asm, v, a, s

S, D, F = 2048, 576, 4608
KA_X, KA_K, KA_V, KA_SK, KA_SSMK, KA_SSMD, KA_BX, KA_WG, KA_WU, KA_WD, KA_OUT, KA_DBG, KA_WS = [8 * i for i in range(13)]
import os
WS_R    = int(os.environ.get("WS_BASE_MB", "0")) << 20
WS_YQ   = WS_R + 576 * 8192
WS_XLN  = WS_YQ + S * D * 2
WS_H    = WS_XLN + S * D * 2
WS_HH   = WS_H + S * D * 2
WS_PART = WS_HH + S * F * 2
WS_XQ   = WS_XLN
WS_ST   = WS_PART + 4 * S * D * 4
WS_ST2  = WS_ST + S * 8
WS_CS   = WS_ST2 + S * 8
WS_WP   = (WS_CS + 12 * F * 4 + 4095) // 4096 * 4096
WS_WDP  = WS_WP + 2 * D * F * 2
WS_END  = WS_WDP + D * F * 2

import os
STAMP = os.environ.get("STAMP", "")
SCH = {"1": " sc1", "0": "", "nt": " nt"}[os.environ.get("SCH", "0")]
CODEPF = int(os.environ.get("CODEPF", "1"))
KC_ROT = int(os.environ.get("KC_ROT", "0"))
FUSE = int(os.environ.get("FUSE", "1"))
NP1 = int(os.environ.get("NP1", "3"))
SCP = {"1": " sc1", "0": "", "nt": " nt"}[os.environ.get("SCP", "1")]
KC_MAP = int(os.environ.get("KC_MAP", "1"))
KD_ROT = int(os.environ.get("KD_ROT", "0"))
KD_PRO = int(os.environ.get("KD_PRO", "2"))
KD_SEP = int(os.environ.get("KD_SEP", "1"))
KD_TOUCH = int(os.environ.get("KD_TOUCH", "0"))
KD_TDIST = int(os.environ.get("KD_TDIST", "5"))
WS_STAMP = WS_END + 4096
class Stamps:
    def __init__(self, A, on):
        self.A, self.on, self.n = A, on, 0
    def stamp(self):
        if not self.on or getattr(self, "mute", False): return
        assert self.n < 14
        op = "s_memrealtime" if os.environ.get("RT") else "s_memtime"
        self.A.e(f"{op} s[{72+2*self.n}:{73+2*self.n}]")
        self.n += 1
    def real(self, idx):
        if not self.on: return
        pass
    def dump(self, nwaves, wave_sgpr="s28"):
        if not self.on: return
        e = self.A.e
        e("s_waitcnt vmcnt(0) lgkmcnt(0)")
        self.A.srd_off(60, 26, 27, WS_STAMP, 1 << 20)
        e(f"s_mul_i32 s100, s2, {nwaves}")
        e(f"s_add_u32 s100, s100, {wave_sgpr}")
        e("s_lshl_b32 s100, s100, 7")
        e("v_mov_b32 v1, 0")
        for i in range(16):
            src_ = 72 + 2 * i if i < 14 else (72 if i == 14 else 98)
            e(f"v_mov_b32 v2, s{src_}")
            e(f"buffer_store_dword v2, v1, s[60:63], s100 offen offset:{4*i}")
        e("s_waitcnt vmcnt(0)")

class Cnt:
    def __init__(self, A, name, maxv):
        self.A, self.name, self.maxv = A, name, maxv
        self.q = []
        self.total = 0
    def issue(self, tag):
        self.q.append(tag)
        self.total += 1
    def need(self, tag):
        if tag not in self.q:
            return
        idx = len(self.q) - 1 - self.q[::-1].index(tag)
        n = len(self.q) - 1 - idx
        assert n <= self.maxv, (self.name, n)
        self.A.e(f"s_waitcnt {self.name}({n})")
        self.q = self.q[idx + 1:]
    def drain(self):
        if self.q:
            self.A.e(f"s_waitcnt {self.name}(0)")
            self.q = []

import struct, math
def fbits(x):
    return struct.unpack("<I", struct.pack("<f", x))[0]

def dpp_sum16(A, r):
    for sh in (8, 4, 2, 1):
        A.e("s_nop 1")
        A.e(f"v_add_f32_dpp v{r}, v{r}, v{r} row_ror:{sh} row_mask:0xf bank_mask:0xf")


def emit_w_packer(A, pfx, row0, nrows, fin):
    e = A.e
    nph = nrows // 96
    e(f"""
    s_load_dwordx4 s[4:7], s[0:1], {KA_WG}
    v_lshrrev_b32 v1, 6, v0
    v_and_b32 v2, 63, v0
    v_lshlrev_b32 v3, 4, v2
    v_readfirstlane_b32 s28, v1
    s_cmp_ge_u32 s2, 48
    s_cselect_b32 s30, 1, 0
    s_mul_i32 s31, s30, 48
    s_sub_u32 s31, s2, s31
    s_movk_i32 s34, 5462
    s_movk_i32 s35, 9216
    """)
    for i in range(5):
        e(f"v_add_u32 v4, {256*i}, v0")
        e(f"v_mul_lo_u32 v5, v4, s34")
        e(f"v_lshrrev_b32 v5, 16, v5")
        e(f"v_mul_u32_u24 v6, 12, v5")
        e(f"v_sub_u32 v6, v4, v6")
        e(f"v_mul_lo_u32 v5, v5, s35")
        e(f"v_lshl_add_u32 v{10+i}, v6, 4, v5")
    e(f"""
    s_mul_i32 s32, s31, 192
    s_add_u32 s32, s32, {row0*9216}
    s_lshl_b32 s33, s28, 10
    s_waitcnt lgkmcnt(0)
    s_cmp_eq_u32 s30, 0
    s_cselect_b32 s8, s4, s6
    s_cselect_b32 s9, s5, s7
    s_mov_b32 s10, {D*F*2:#x}
    s_mov_b32 s11, 0x00020000
    """)
    A.srd_off(12, 26, 27, WS_CS, 12 * F * 4)
    A.srd_off(16, 26, 27, WS_WP, 2 * D * F * 2)
    for ph in range(nph):
        lab = A.newlabel(pfx + "_sk")
        e("s_cmp_ge_u32 s28, 2")
        e(f"s_cbranch_scc1 {lab}")
        e(f"s_add_u32 m0, s33, {18432*ph + 4096*4}")
        e("s_nop 0")
        e(f"buffer_load_dwordx4 v14, s[8:11], s32 offen lds")
        A.label(lab)
        for i in range(4):
            e(f"s_add_u32 m0, s33, {18432*ph + 4096*i}")
            e("s_nop 0")
            e(f"buffer_load_dwordx4 v{10+i}, s[8:11], s32 offen lds")
        e(f"s_add_u32 s32, s32, {96*9216}")
    e(f"""
    v_lshrrev_b32 v4, 4, v2
    v_lshlrev_b32 v4, 3, v4
    v_bfe_u32 v5, v2, 2, 2
    v_add_u32 v4, v4, v5
    v_mul_u32_u24 v4, 192, v4
    v_and_b32 v5, 3, v2
    v_lshl_add_u32 v4, v5, 3, v4
    v_mov_b32 v7, 0x3f803f80
    v_lshlrev_b32 v9, 2, v2
    v_cmp_gt_u32 s[46:47], 16, v2
    s_mov_b32 s36, s28
    s_mov_b32 s45, 0
    """)
    assert nph % 2 == 0
    for half in range(nph // 2):
        later = 4 * (nph - 2 * half - 2) + 12 * half
        e(f"s_waitcnt vmcnt({later})" if half == 0 else ("s_waitcnt vmcnt(12)" if os.environ.get("PACKST", "1") == "1" else "s_waitcnt vmcnt(3)"))
        e("s_barrier")
        lab = f"{pfx}_su{half}"
        A.label(lab)
        e(f"""
        s_mul_i32 s38, s36, 43
        s_lshr_b32 s38, s38, 8
        s_mul_i32 s37, s38, 6
        s_sub_u32 s37, s36, s37
        s_lshl_b32 s40, s37, 5
        s_mul_i32 s44, s38, 18432
        s_add_u32 s40, s40, s44
        v_add_u32 v5, s40, v4
        s_mul_i32 s39, s31, 6
        s_add_u32 s39, s39, s37
        """)
        for s_ in range(3):
            e(f"ds_read_b64_tr_b16 {v(16+4*s_,2)}, v5 offset:{32*192*s_}")
            e(f"ds_read_b64_tr_b16 {v(18+4*s_,2)}, v5 offset:{32*192*s_+4*192}")
        e(f"""
        s_mul_i32 s40, s39, 7282
        s_lshr_b32 s40, s40, 16
        s_mul_i32 s41, s40, 9
        s_sub_u32 s41, s39, s41
        s_cmp_lt_u32 s41, {NP1}
        s_cselect_b32 s42, 2, 36
        s_cselect_b32 s43, {2*NP1}, 2
        s_lshl_b32 s43, s43, 10
        s_mul_i32 s42, s42, s41
        s_mul_i32 s40, s40, 324
        s_add_u32 s42, s42, s40
        s_add_u32 s42, s42, s30
        s_lshl_b32 s42, s42, 10
        s_add_u32 s44, s38, {row0//96}
        s_mul_i32 s40, s44, 3
        s_mul_i32 s40, s40, s43
        s_add_u32 s42, s42, s40
        s_lshl_b32 s44, s44, 1
        s_add_u32 s44, s44, s30
        s_mul_i32 s44, s44, {F*4}
        s_lshl_b32 s40, s39, 6
        s_add_u32 s44, s44, s40
        v_mov_b32 v6, 0
        """)
        for s_ in range(3):
            e(f"s_waitcnt lgkmcnt({2*(2-s_)})")
            if os.environ.get("PACKST", "1") == "1": e(f"buffer_store_dwordx4 {v(16+4*s_,4)}, v3, s[16:19], s42 offen{SCP}")
            e("s_add_u32 s42, s42, s43")
            for d in range(4):
                e(f"v_dot2_f32_bf16 v6, v{16+4*s_+d}, v7, v6")
        e("s_nop 2")
        for op in ("v_permlane32_swap_b32", "v_permlane16_swap_b32"):
            e("v_mov_b32 v8, v6")
            e("s_nop 1")
            e(f"{op} v6, v8")
            e("v_add_f32 v6, v6, v8")
        e(f"""
        s_mov_b64 exec, s[46:47]
        buffer_store_dword v6, v9, s[12:15], s44 offen
        s_mov_b64 exec, -1
        s_add_u32 s36, s36, 4
        s_cmp_lt_u32 s36, {12*(half+1)}
        s_cbranch_scc1 {lab}
        """)
    fin()

def k_a(A):
    name = "ka_kernel"
    A.launch(name, 288 + 128 + 96, 256, 36864)
    A.kernel_begin(name)
    e = A.e
    ST = Stamps(A, STAMP == "ka")
    ST.stamp(); ST.real(0)
    if ST.on:
        e("v_lshrrev_b32 v1, 6, v0")
        e("s_nop 0")
        e("v_readfirstlane_b32 s59, v1")
    def fin():
        if not ST.on: return
        n0 = ST.n
        ST.n = 12
        ST.stamp()
        e("s_waitcnt vmcnt(0)")
        ST.stamp(); ST.real(1)
        e("s_mov_b64 exec, -1")
        ST.dump(4, "s59")
        ST.n = n0
    e(f"""
    s_cmp_ge_u32 s2, {288+128+96}
    s_cbranch_scc1 ka_done
    s_cmp_ge_u32 s2, {288+128}
    s_cbranch_scc1 ka_pack
    s_load_dwordx4 s[4:7], s[0:1], {KA_K}
    s_load_dwordx2 s[24:25], s[0:1], {KA_SK}
    s_load_dwordx2 s[26:27], s[0:1], {KA_WS}
    s_load_dwordx2 s[38:39], s[0:1], {KA_X}
    s_cmp_ge_u32 s2, 288
    s_cbranch_scc1 ka_stats
    s_and_b32 s28, s2, 31
    s_lshr_b32 s29, s2, 5
    s_lshl_b32 s30, s28, 6
    v_lshrrev_b32 v1, 3, v0
    v_and_b32 v2, 7, v0
    v_lshlrev_b32 v3, 1, v1
    v_add_u32 v3, s30, v3
    s_movk_i32 s31, 1152
    v_mul_lo_u32 v4, v3, s31
    s_lshl_b32 s32, s29, 7
    v_lshlrev_b32 v5, 4, v2
    v_add3_u32 v4, v4, v5, s32
    """)
    for r in range(6):
        e(f"v_add_u32 v{10+r}, {(r-4)*1152 & 0xffffffff:#x}, v4")
    e(f"""
    s_lshl_b32 s33, s29, 9
    v_lshlrev_b32 v6, 6, v2
    v_add_u32 v6, s33, v6
    s_waitcnt lgkmcnt(0)
    """)
    A.srd(8, 4, 5, S * D * 2)
    A.srd(12, 6, 7, S * D * 2)
    A.srd(16, 24, 25, D * 8)
    A.srd_off(20, 26, 27, WS_R, 576 * 8192)
    A.srd_off(40, 26, 27, WS_PART + 4 * S * D * 2, 8192 + 1024)
    e("""
    s_lshl_b32 s36, s2, 10
    v_lshlrev_b32 v8, 2, v0
    v_mov_b32 v9, 0
    buffer_store_dword v9, v8, s[40:43], s36 offen
    """)
    for r in range(6):
        e(f"buffer_load_dwordx4 {v(16+4*r,4)}, v{10+r}, s[8:11], 0 offen")
    for r in range(3):
        e(f"buffer_load_dwordx4 {v(40+4*r,4)}, v{13+r}, s[12:15], 0 offen")
    for r in range(4):
        e(f"buffer_load_dwordx4 {v(52+4*r,4)}, v6, s[16:19], 0 offen offset:{16*r}")
    e(f"""
    v_sub_u32 v7, 31, v1
    v_lshlrev_b32 v8, 2, v2
    v_xor_b32 v7, v7, v8
    v_lshlrev_b32 v7, 2, v7
    v_lshl_add_u32 v7, v2, 10, v7
    s_mov_b32 s34, 0xffff0000
    """)
    ST.stamp()
    e("s_waitcnt vmcnt(0)")
    ST.stamp()
    e(f"""
    """)
    for ch in range(8):
        d, hi = ch >> 1, ch & 1
        def unp(dst, src):
            if hi: e(f"v_and_b32 v{dst}, s34, v{src}")
            else:  e(f"v_lshlrev_b32 v{dst}, 16, v{src}")
        for r in range(6): unp(70 + r, 16 + 4 * r + d)
        for r in range(3): unp(76 + r, 40 + 4 * r + d)
        sk = 52 + 2 * ch
        e(f"v_lshlrev_b32 v80, 16, v{sk}")
        e(f"v_and_b32 v81, s34, v{sk}")
        e(f"v_lshlrev_b32 v82, 16, v{sk+1}")
        e(f"v_and_b32 v83, s34, v{sk+1}")
        for r in range(3):
            e(f"v_mul_f32 v{84+r}, v{70+r}, v83")
        for r in range(3):
            e(f"v_fmac_f32 v{84+r}, v{71+r}, v82")
        for r in range(3):
            e(f"v_fmac_f32 v{84+r}, v{72+r}, v81")
        for r in range(3):
            e(f"v_fmac_f32 v{84+r}, v{73+r}, v80")
        for r in range(3):
            e(f"v_mul_f32 v{84+r}, v{84+r}, v{76+r}")
        e(f"v_cvt_pk_bf16_f32 v{88+2*(ch&1)}, v85, v84")
        e(f"v_cvt_pk_bf16_f32 v{89+2*(ch&1)}, v86, v85")
        e(f"ds_write_b32 v7, v{88+2*(ch&1)} offset:{ch*128}")
        e(f"ds_write_b32 v7, v{89+2*(ch&1)} offset:{8192+ch*128}")
    ST.stamp()
    e(f"""
    v_lshrrev_b32 v8, 6, v0
    v_xor_b32 v9, v2, v8
    v_lshlrev_b32 v9, 4, v9
    v_lshl_add_u32 v9, v1, 7, v9
    v_xor_b32 v10, 64, v9
    s_lshl_b32 s35, s29, 19
    s_sub_u32 s36, 1984, s30
    s_lshl_b32 s36, s36, 1
    s_add_u32 s35, s35, s36
    v_lshlrev_b32 v11, 13, v1
    v_add3_u32 v11, v11, v5, s35
    v_add_u32 v12, 0x40000, v11
    s_waitcnt lgkmcnt(0)
    s_barrier
    ds_read_b128 v[16:19], v9
    ds_read_b128 v[20:23], v10 offset:4096
    ds_read_b128 v[24:27], v9 offset:8192
    ds_read_b128 v[28:31], v10 offset:12288
    s_movk_i32 s37, 0x1000
    s_waitcnt lgkmcnt(3)
    buffer_store_dwordx4 v[16:19], v11, s[20:23], 0 offen{SCP}
    s_waitcnt lgkmcnt(2)
    buffer_store_dwordx4 v[20:23], v12, s[20:23], 0 offen{SCP}
    s_waitcnt lgkmcnt(1)
    buffer_store_dwordx4 v[24:27], v11, s[20:23], s37 offen{SCP}
    s_waitcnt lgkmcnt(0)
    buffer_store_dwordx4 v[28:31], v12, s[20:23], s37 offen{SCP}
    """)
    fin()
    e("s_endpgm")
    A.label("ka_stats")
    if CODEPF:
        e("s_getpc_b64 s[12:13]")
        A.label("ka_pc")
        e("""
        s_sub_u32 s12, s12, ka_pc-ka_kernel
        s_subb_u32 s13, s13, 0
        s_mov_b32 s14, code_end-ka_kernel
        s_mov_b32 s15, 0x00020000
        s_sub_u32 s28, s2, 288
        s_lshl_b32 s28, s28, 10
        v_lshlrev_b32 v6, 2, v0
        buffer_load_dword v7, v6, s[12:15], s28 offen
        """)
    e(f"""
    s_sub_u32 s28, s2, 288
    s_lshl_b32 s28, s28, 4
    v_lshrrev_b32 v1, 4, v0
    v_add_u32 v1, s28, v1
    v_and_b32 v2, 15, v0
    s_movk_i32 s29, 1152
    v_mul_lo_u32 v3, v1, s29
    v_lshl_add_u32 v3, v2, 3, v3
    v_lshlrev_b32 v4, 3, v1
    s_waitcnt lgkmcnt(0)
    """)
    A.srd(40, 38, 39, S * D * 2)
    A.srd_off(44, 26, 27, WS_ST, 2 * S * 8)
    XR, XF = 16, 34
    for i in range(9):
        e(f"buffer_load_dwordx2 {v(XR+2*i,2)}, v3, s[40:43], 0 offen offset:{128*i}")
    A.srd_off(8, 26, 27, WS_XQ, S * D * 2)
    e("v_lshl_add_u32 v5, v2, 14, v4")
    e("s_mov_b32 s30, 0xffff0000")
    e(f"s_mov_b32 s31, {fbits(1.0/576):#x}")
    e(f"s_mov_b32 s32, {fbits(1e-5):#x}")
    e("s_mov_b32 s33, 0")
    e("s_waitcnt vmcnt(0)")
    for i in range(9):
        e(f"buffer_store_dwordx2 {v(XR+2*i,2)}, v5, s[8:11], s33 offen")
        e(f"s_add_u32 s33, s33, {16*16384}")
    for d in range(18):
        e(f"v_lshlrev_b32 v{XF+2*d}, 16, v{XR+d}")
        e(f"v_and_b32 v{XF+2*d+1}, s30, v{XR+d}")
    e(f"v_pk_add_f32 v[8:9], {v(XF,2)}, {v(XF+2,2)}")
    e(f"v_pk_add_f32 v[10:11], {v(XF+4,2)}, {v(XF+6,2)}")
    for i in range(2, 9):
        e(f"v_pk_add_f32 v[8:9], v[8:9], {v(XF+4*i,2)}")
        e(f"v_pk_add_f32 v[10:11], v[10:11], {v(XF+4*i+2,2)}")
    e("v_pk_add_f32 v[8:9], v[8:9], v[10:11]")
    e("v_add_f32 v8, v8, v9")
    dpp_sum16(A, 8)
    e("v_mul_f32 v8, s31, v8")
    for i in range(18):
        e(f"v_pk_add_f32 {v(XF+2*i,2)}, {v(XF+2*i,2)}, v[8:9] op_sel_hi:[1,0] neg_lo:[0,1] neg_hi:[0,1]")
    e(f"v_pk_mul_f32 v[10:11], {v(XF,2)}, {v(XF,2)}")
    e(f"v_pk_mul_f32 v[12:13], {v(XF+2,2)}, {v(XF+2,2)}")
    for i in range(1, 9):
        e(f"v_pk_fma_f32 v[10:11], {v(XF+4*i,2)}, {v(XF+4*i,2)}, v[10:11]")
        e(f"v_pk_fma_f32 v[12:13], {v(XF+4*i+2,2)}, {v(XF+4*i+2,2)}, v[12:13]")
    e("v_pk_add_f32 v[10:11], v[10:11], v[12:13]")
    e("v_add_f32 v9, v10, v11")
    dpp_sum16(A, 9)
    e("v_mov_b32 v10, s32")
    e("v_fmac_f32 v10, s31, v9")
    e("v_rsq_f32 v9, v10")
    e("v_cmp_eq_u32 vcc, 0, v2")
    e("s_and_saveexec_b64 s[34:35], vcc")
    e("buffer_store_dwordx2 v[8:9], v4, s[44:47], 0 offen")
    e("v_mov_b32 v10, -1")
    e("v_mov_b32 v11, -1")
    e(f"s_movk_i32 s33, {S*8}")
    e("buffer_store_dwordx2 v[10:11], v4, s[44:47], s33 offen")
    fin()
    e("s_endpgm")
    A.label("ka_pack")
    e(f"s_load_dwordx2 s[26:27], s[0:1], {KA_WS}")
    if ST.on: e("s_mov_b32 s58, s2")
    e(f"s_sub_u32 s2, s2, {288+128}")
    def fin2():
        if ST.on: e("s_mov_b32 s2, s58")
        fin()
    emit_w_packer(A, "ka", 0, 192, fin2)
    A.label("ka_done")
    e("s_endpgm")
    A.kernel_end(name, 100, 102 if ST.on else 48)

KB_CH = 25920
KB_KC = 4160
KB_RO = 16640
KB_RC = 4640
def k_b(A):
    name = "kb_kernel"
    A.launch(name, 240, 256, 4 * KB_CH)
    A.kernel_begin(name)
    e = A.e
    ST = Stamps(A, STAMP == "kb")
    ST.stamp(); ST.real(0)
    if ST.on:
        e("v_lshrrev_b32 v1, 6, v0")
        e("s_nop 0")
        e("v_readfirstlane_b32 s59, v1")
    def fin():
        if not ST.on: return
        n0 = ST.n
        ST.n = 12
        ST.stamp()
        e("s_waitcnt vmcnt(0)")
        ST.stamp(); ST.real(1)
        e("s_mov_b64 exec, -1")
        ST.dump(4, "s59")
        ST.n = n0
    e(f"""
    s_cmp_ge_u32 s2, 240
    s_cbranch_scc1 kb_done
    s_load_dwordx2 s[26:27], s[0:1], {KA_WS}
    s_cmp_ge_u32 s2, 144
    s_cbranch_scc1 kb_side
    s_load_dwordx4 s[4:7], s[0:1], {KA_SSMK}
    v_lshrrev_b32 v1, 6, v0
    v_and_b32 v2, 63, v0
    s_nop 0
    v_readfirstlane_b32 s28, v1
    s_nop 3
    s_lshl_b32 s29, s2, 2
    s_add_u32 s29, s29, s28
    s_mul_i32 s30, s28, {KB_CH}
    s_lshl_b32 s31, s29, 12
    s_lshl_b32 s32, s29, 13
    s_add_u32 s32, s32, {WS_R}
    s_lshl_b32 s33, s2, 14
    s_add_u32 s33, s33, {WS_XQ}
    s_lshr_b32 s34, s29, 1
    s_lshl_b32 s34, s34, 2
    v_lshlrev_b32 v3, 4, v2
    s_waitcnt lgkmcnt(0)
    """)
    A.srd_off(8, 4, 5, "s31", 4096)
    A.srd_off(12, 26, 27, "s32", 8192)
    A.srd_off(16, 26, 27, "s33", 16384)
    A.srd_off(20, 26, 27, WS_ST, S * 8)
    e("s_lshr_b32 s33, s2, 1")
    e("s_lshl_b32 s33, s33, 15")
    e(f"s_add_u32 s33, s33, {WS_H}")
    A.srd_off(44, 26, 27, "s33", 32768)
    e(f"""
    s_add_u32 s6, s6, s34
    s_addc_u32 s7, s7, 0
    s_load_dword s35, s[6:7], 0
    """)
    vm = Cnt(A, "vmcnt", 63)
    e(f"""
    v_lshrrev_b32 v4, 4, v2
    v_and_b32 v5, 15, v2
    v_add_u32 v6, v4, v5
    v_add_u32 v6, -15, v6
    v_lshlrev_b32 v6, 2, v6
    buffer_load_dword v7, v6, s[8:11], 0 offen
    """)
    vm.issue("front")
    for p in range(2):
        e(f"s_add_u32 s36, s30, {KB_RO + p * KB_RC}")
        e(f"s_mov_b32 m0, s36")
        e(f"s_movk_i32 s37, {p * 4096}")
        for b in range(4):
            e(f"buffer_load_dwordx4 v3, s[12:15], s37 offen offset:{b*1024} lds")
            vm.issue("R")
    late = []
    def kdma(b, c):
        e(f"s_add_u32 m0, s30, {c * KB_KC + 64}")
        e(f"s_movk_i32 s37, {4 * c + 4}")
        e(f"buffer_load_dwordx4 v3, s[8:11], s37 offen offset:{b*1024} lds")
        vm.issue(f"K{b}")
    for b in range(4):
        for c in range(4):
            if b <= 1: kdma(b, c)
            else: late.append((f"K{b}", lambda b=b, c=c: kdma(b, c)))
    e("v_lshlrev_b32 v18, 4, v0")
    def xsld(r):
        e(f"s_movk_i32 s37, {4096*r}")
        e(f"buffer_load_dwordx4 {v(80+8*r,4)}, v18, s[16:19], s37 offen")
        e(f"buffer_load_dwordx4 {v(84+8*r,4)}, v18, s[20:23], s37 offen")
        vm.issue("xs"); vm.issue("xs")
    for r in range(4): late.append(("xs", lambda r=r: xsld(r)))
    e(f"""
    s_movk_i32 s38, {KB_KC}
    v_mul_lo_u32 v8, v4, s38
    v_lshl_add_u32 v8, v5, 2, v8
    v_add_u32 v8, s30, v8
    v_lshrrev_b32 v9, 5, v2
    s_movk_i32 s38, {KB_RC}
    v_mul_lo_u32 v9, v9, s38
    v_and_b32 v10, 31, v2
    v_lshl_add_u32 v9, v10, 4, v9
    s_add_u32 s39, s30, {KB_RO + 4096}
    v_add_u32 v9, s39, v9
    v_mov_b32 v12, 0
    v_mov_b32 v13, 0
    v_mov_b32 v14, 0
    v_mov_b32 v15, 0
    ds_write_b128 v9, v[12:15]
    """)
    e(f"""
    v_and_b32 v10, 3, v5
    s_movk_i32 s38, {KB_KC}
    v_mul_lo_u32 v10, v10, s38
    v_lshrrev_b32 v11, 2, v5
    v_add_u32 v11, v11, v4
    v_lshl_add_u32 v10, v11, 4, v10
    v_add_u32 v10, s30, v10
    """)
    e(f"""
    v_and_b32 v11, 1, v5
    s_movk_i32 s38, {KB_RC}
    v_mul_lo_u32 v11, v11, s38
    v_lshrrev_b32 v16, 1, v5
    v_lshlrev_b32 v16, 2, v16
    v_sub_u32 v16, v4, v16
    v_add_u32 v16, 28, v16
    v_lshl_add_u32 v11, v16, 4, v11
    s_add_u32 s39, s30, {KB_RO}
    v_add_u32 v11, s39, v11
    """)
    e(f"""
    s_waitcnt lgkmcnt(0)
    s_and_b32 s40, s29, 1
    s_lshl_b32 s40, s40, 4
    s_lshr_b32 s35, s35, s40
    s_and_b32 s35, s35, 0xffff
    v_lshl_add_u32 v16, v4, 2, v5
    v_mov_b32 v17, s35
    """)
    for d in range(4):
        e(f"v_cmp_eq_u32 vcc, {15-d}, v16")
        e("s_nop 1")
        e(f"v_cndmask_b32 v{20+d}, 0, v17, vcc")
    ST.stamp()
    vm.need("front")
    e("ds_write_b32 v8, v7")
    vm.need("K0")
    e("s_waitcnt lgkmcnt(0)")
    ST.stamp()
    ACC = 32
    BR = 64
    NB = 4
    AR = 112
    lg = Cnt(A, "lgkmcnt", 15)
    groups = []
    for ph in range(2):
        for r in range(8):
            groups.append([r + 8 * u for u in range(4 * ph, 4 * ph + 4)])
    mf = []
    for g, il in enumerate(groups):
        for i in il:
            for j in range(7, (i >> 3) - 1, -1):
                mf.append((g, i, j))
    def areg(g, q):
        return AR + 32 * (g & 1) + 4 * ((q + 7) >> 3)
    reads = []
    seen = set()
    bidx = {}
    for x, (g, i, j) in enumerate(mf):
        if ("B", i) not in seen:
            seen.add(("B", i)); bidx[i] = len(bidx); reads.append((("B", i), x))
        t = ("A", g, 8 * j - i)
        if t not in seen:
            seen.add(t); reads.append((t, x))
    last_use = {}
    for x, (g, i, j) in enumerate(mf):
        last_use[("B", i)] = x; last_use[("G", g)] = x
    border = sorted(bidx, key=lambda i: bidx[i])
    rp = 0
    LOOK = 14
    def can_issue(tag, x):
        if tag[0] == "B":
            k = bidx[tag[1]]
            return k < NB or last_use[("B", border[k - NB])] < x
        g = tag[1]
        return g < 2 or last_use[("G", g - 2)] < x
    def issue_read(tag):
        if tag[0] == "B":
            idx = tag[1]
            blk = min(3, max(0, (4 * idx + 6 - 4) // 64))
            while any(t == f"K{blk}" for t, _ in late): late.pop(0)[1]()
            vm.need(f"K{blk}")
            e(f"ds_read_b128 {v(BR + 4 * (bidx[idx] % NB), 4)}, v10 offset:{64 * idx}")
        else:
            e(f"ds_read_b128 {v(areg(tag[1], tag[2]), 4)}, v11 offset:{64 * (56 - tag[2])}")
        lg.issue(tag)
    started = set()
    while rp < 9:
        issue_read(reads[rp][0]); rp += 1
    for x, (g, i, j) in enumerate(mf):
        if j == 7 and i in (2, 4, 32, 36): ST.stamp()
        while rp < len(reads) and reads[rp][1] <= x:
            issue_read(reads[rp][0]); rp += 1
        lg.need(("B", i)); lg.need(("A", g, 8 * j - i))
        c = v(ACC + 4 * j, 4)
        aq = v(areg(g, 8 * j - i), 4)
        if j not in started:
            started.add(j)
            e(f"v_mfma_f32_16x16x32_bf16 {c}, {aq}, v[20:23], 0")
        e(f"v_mfma_f32_16x16x32_bf16 {c}, {aq}, {v(BR+4*(bidx[i]%NB),4)}, {c}")
        if rp < len(reads) and reads[rp][1] <= x + LOOK and len(lg.q) < 14 and can_issue(reads[rp][0], x + 1):
            issue_read(reads[rp][0]); rp += 1
        elif late and x % 4 == 3: late.pop(0)[1]()
    assert rp == len(reads) and not late
    ST.stamp()
    e(f"""
    v_lshlrev_b32 v16, 7, v4
    v_lshl_add_u32 v16, v5, 2, v16
    v_add_u32 v16, s30, v16
    s_nop 7
    """)
    for j in range(8):
        c = ACC + 4 * j
        e(f"v_cvt_pk_bf16_f32 v{c}, v{c}, v{c+1}")
        e(f"v_cvt_pk_bf16_f32 v{c+1}, v{c+2}, v{c+3}")
        e(f"ds_write_b32 v16, v{c} offset:{512*j}")
        e(f"ds_write_b32 v16, v{c+1} offset:{512*j+64}")
    e(f"""
    v_lshlrev_b32 v17, 2, v0
    v_lshlrev_b32 v18, 5, v0
    s_and_b32 s40, s2, 1
    s_lshl_b32 s40, s40, 3
    v_add_u32 v18, s40, v18
    s_mov_b32 s41, 0xffff0000
    v_add_u32 v19, {2*KB_CH}, v17
    s_waitcnt lgkmcnt(0)
    s_barrier
    """)
    ST.stamp()
    for r in range(4):
        for ch in range(4):
            base = "v17" if ch < 2 else "v19"
            e(f"ds_read_b32 v{64+4*r+ch}, {base} offset:{(ch&1)*KB_CH + 1024*r}")
    e("s_waitcnt vmcnt(0)")
    for r in range(4):
        e(f"s_waitcnt lgkmcnt({12-4*r})")
        Y = 64 + 4 * r; X = 80 + 8 * r; M = 84 + 8 * r
        for tq in range(2):
            for d in range(2):
                e(f"v_lshlrev_b32 v{32+2*d}, 16, v{X+2*tq+d}")
                e(f"v_and_b32 v{33+2*d}, s41, v{X+2*tq+d}")
            for ch in range(4):
                if tq == 0: e(f"v_lshlrev_b32 v{36+ch}, 16, v{Y+ch}")
                else: e(f"v_and_b32 v{36+ch}, s41, v{Y+ch}")
            mp = v(M + 2 * tq, 2)
            for p in range(2):
                e(f"v_pk_mul_f32 {v(36+2*p,2)}, {v(36+2*p,2)}, {mp} op_sel:[0,1] op_sel_hi:[1,1]")
                e(f"v_pk_add_f32 {v(40+2*p,2)}, {v(32+2*p,2)}, {mp} op_sel_hi:[1,0] neg_lo:[0,1] neg_hi:[0,1]")
            for p in range(2):
                e(f"v_pk_fma_f32 {v(32+2*p,2)}, {v(40+2*p,2)}, {v(36+2*p,2)}, {v(32+2*p,2)}")
            O = 44 + 4 * (r & 1) + 2 * tq
            e(f"v_cvt_pk_bf16_f32 v{O}, v32, v33")
            e(f"v_cvt_pk_bf16_f32 v{O+1}, v34, v35")
            e(f"s_movk_i32 s37, {8192*r}")
            e(f"buffer_store_dwordx2 {v(O,2)}, v18, s[44:47], s37 offen offset:{16*tq}{SCH}")
    fin()
    e("s_endpgm")
    A.label("kb_side")
    if ST.on: e("s_mov_b32 s58, s2")
    e("s_sub_u32 s2, s2, 144")
    def fin2():
        if ST.on: e("s_mov_b32 s2, s58")
        fin()
    emit_w_packer(A, "kb", 192, 384, fin2)
    A.label("kb_done")
    e("s_endpgm")
    A.kernel_end(name, 176, 102 if ST.on else 48)

def k_ln(A):
    name = "kl_kernel"
    A.launch(name, 256, 128, 0)
    A.kernel_begin(name)
    e = A.e
    e(f"""
    s_cmp_ge_u32 s2, 256
    s_cbranch_scc1 kl_done
    s_load_dwordx2 s[4:5], s[0:1], {KA_X}
    s_load_dwordx2 s[26:27], s[0:1], {KA_WS}
    v_lshrrev_b32 v1, 4, v0
    v_and_b32 v2, 15, v0
    s_lshl_b32 s28, s2, 3
    v_add_u32 v1, s28, v1
    s_movk_i32 s29, 1152
    v_mul_lo_u32 v3, v1, s29
    v_lshl_add_u32 v3, v2, 3, v3
    v_lshlrev_b32 v4, 14, v2
    v_lshl_add_u32 v4, v1, 3, v4
    v_lshrrev_b32 v5, 1, v2
    v_lshlrev_b32 v5, 15, v5
    v_lshl_add_u32 v5, v1, 4, v5
    v_and_b32 v6, 1, v2
    v_lshl_add_u32 v5, v6, 3, v5
    s_waitcnt lgkmcnt(0)
    """)
    A.srd(8, 4, 5, S * D * 2)
    A.srd_off(12, 26, 27, WS_YQ, S * D * 2)
    A.srd_off(16, 26, 27, WS_XLN, S * D * 2)
    A.srd_off(20, 26, 27, WS_H, S * D * 2)
    XR, YR, XF = 16, 34, 52
    A.srd_off(44, 26, 27, WS_PART + 4 * S * D * 2, 8192)
    e("""
    s_lshl_b32 s43, s2, 9
    v_lshlrev_b32 v7, 2, v0
    v_add_u32 v7, s43, v7
    v_mov_b32 v8, 0
    buffer_store_dword v8, v7, s[44:47], 0 offen
    """)
    for i in range(9):
        e(f"buffer_load_dwordx2 {v(XR+2*i,2)}, v3, s[8:11], 0 offen offset:{128*i}")
    for i in range(9):
        e(f"s_mov_b32 s{30+i}, {i*262144:#x}")
    for i in range(9):
        e(f"buffer_load_dwordx2 {v(YR+2*i,2)}, v4, s[12:15], s{30+i} offen")
    e("s_mov_b32 s40, 0xffff0000")
    e(f"s_mov_b32 s41, {fbits(1.0/576):#x}")
    e(f"s_mov_b32 s42, {fbits(1e-5):#x}")
    e("s_waitcnt vmcnt(9)")
    def unpack(dst, src):
        for d in range(18):
            e(f"v_lshlrev_b32 v{dst+2*d}, 16, v{src+d}")
            e(f"v_and_b32 v{dst+2*d+1}, s40, v{src+d}")
    def stats():
        for k in range(4):
            e(f"v_add_f32 v{8+k}, v{XF+k}, v{XF+4+k}")
        for i in range(2, 9):
            for k in range(4):
                e(f"v_add_f32 v{8+k}, v{8+k}, v{XF+4*i+k}")
        e("v_add_f32 v8, v8, v9")
        e("v_add_f32 v10, v10, v11")
        e("v_add_f32 v8, v8, v10")
        dpp_sum16(A, 8)
        e("v_mul_f32 v8, s41, v8")
        for i in range(36):
            e(f"v_sub_f32 v{XF+i}, v{XF+i}, v8")
        for k in range(4):
            e(f"v_mul_f32 v{9+k}, v{XF+k}, v{XF+k}")
        for i in range(1, 9):
            for k in range(4):
                e(f"v_fmac_f32 v{9+k}, v{XF+4*i+k}, v{XF+4*i+k}")
        e("v_add_f32 v9, v9, v10")
        e("v_add_f32 v11, v11, v12")
        e("v_add_f32 v9, v9, v11")
        dpp_sum16(A, 9)
        e("v_mov_b32 v10, s42")
        e("v_fmac_f32 v10, s41, v9")
        e("v_rsq_f32 v9, v10")
        e("s_nop 0")
    unpack(XF, XR)
    stats()
    e("s_waitcnt vmcnt(0)")
    for d in range(18):
        e(f"v_lshlrev_b32 v10, 16, v{YR+d}")
        e(f"v_and_b32 v11, s40, v{YR+d}")
        e(f"v_fma_f32 v10, v10, v9, 1.0")
        e(f"v_fma_f32 v11, v11, v9, 1.0")
        e(f"v_fma_f32 v10, v{XF+2*d}, v10, v8")
        e(f"v_fma_f32 v11, v{XF+2*d+1}, v11, v8")
        e(f"v_cvt_pk_bf16_f32 v{XR+d}, v10, v11")
    for i in range(9):
        e(f"buffer_store_dwordx2 {v(XR+2*i,2)}, v5, s[20:23], s{30+i} offen")
    unpack(XF, XR)
    stats()
    for d in range(18):
        e(f"v_mul_f32 v10, v{XF+2*d}, v9")
        e(f"v_mul_f32 v11, v{XF+2*d+1}, v9")
        e(f"v_cvt_pk_bf16_f32 v{YR+d}, v10, v11")
    for i in range(9):
        e(f"buffer_store_dwordx2 {v(YR+2*i,2)}, v5, s[16:19], s{30+i} offen")
    A.label("kl_done")
    e("s_endpgm")
    A.kernel_end(name, 88, 48)


def emit_piece_voffsets(A, vdst, n, vP0, row_stride, tmp=(4, 5, 6, 7, 8)):
    e = A.e
    t0, t1, t2, t3, t4 = tmp
    e("s_movk_i32 s34, 3641")
    e(f"s_movk_i32 s35, {row_stride}")
    for i in range(n):
        e(f"v_add_u32 v{t0}, {256*i}, v{vP0}")
        e(f"v_mul_lo_u32 v{t1}, v{t0}, s34")
        e(f"v_lshrrev_b32 v{t1}, 16, v{t1}")
        e(f"v_mul_u32_u24 v{t2}, 18, v{t1}")
        e(f"v_sub_u32 v{t2}, v{t0}, v{t2}")
        e(f"v_and_b32 v{t3}, 0xfffffff3, v{t1}")
        e(f"v_and_b32 v{t4}, 4, v{t1}")
        e(f"v_lshl_or_b32 v{t3}, v{t4}, 1, v{t3}")
        e(f"v_and_b32 v{t4}, 8, v{t1}")
        e(f"v_lshrrev_b32 v{t4}, 1, v{t4}")
        e(f"v_or_b32 v{t3}, v{t3}, v{t4}")
        e(f"v_mul_lo_u32 v{t3}, v{t3}, s35")
        e(f"v_lshl_add_u32 v{vdst+i}, v{t2}, 4, v{t3}")

def emit_tr_base(A, vdst, vlane, stage, nstage):
    e = A.e
    e(f"""
    v_lshrrev_b32 v6, 5, v{vlane}
    v_lshlrev_b32 v6, 4, v6
    v_bfe_u32 v7, v{vlane}, 4, 1
    v_lshl_add_u32 v6, v7, 2, v6
    v_bfe_u32 v7, v{vlane}, 2, 2
    v_add_u32 v6, v6, v7
    v_mul_u32_u24 v6, 288, v6
    v_and_b32 v7, 3, v{vlane}
    v_lshl_add_u32 v{vdst}, v7, 3, v6
    """)
    for sidx in range(1, nstage):
        e(f"v_add_u32 v{vdst+sidx}, {sidx*stage}, v{vdst}")

KC_UP = 18432
KC_STAGE = 36864
SC1 = " sc1" if os.environ.get("SC1", "1") == "1" else ""
SC1C = {"1": " sc1", "0": "", "nt": " nt", "sc0": " sc0", "sc01": " sc0 sc1"}[os.environ.get("SC1C", "1")]

def emit_d_tail(A, ACC, srd, s_tt, s_nt, s_ks, s_r, s_h):
    e = A.e
    l0, l1 = A.newlabel("kd_h0"), A.newlabel("kd_hj")
    e(f"""
    s_mul_i32 s33, s28, 9216
    v_lshlrev_b32 v3, 4, v2
    v_add_u32 v4, s33, v3
    s_xor_b32 s34, s28, 4
    s_mul_i32 s34, s34, 9216
    v_add_u32 v5, s34, v3
    s_barrier
    s_cmp_eq_u32 s{s_h}, 0
    s_cbranch_scc1 {l0}
    """)
    for j in range(9):
        e(f"ds_write_b128 v4, {v(ACC+4*j,4)} offset:{1024*j}")
    for j in range(9):
        for r in range(4):
            e(f"v_mov_b32 v{ACC+4*j+r}, v{ACC+36+4*j+r}")
    e(f"s_branch {l1}")
    A.label(l0)
    for j in range(9):
        e(f"ds_write_b128 v4, {v(ACC+36+4*j,4)} offset:{1024*j}")
    A.label(l1)
    e("s_waitcnt lgkmcnt(0)")
    e("s_barrier")
    for j in range(9):
        e(f"ds_read_b128 {v(40+4*j,4)}, v5 offset:{1024*j}")
    e(f"""
    s_lshl_b32 s42, s{s_tt}, 2
    s_add_u32 s42, s42, s{s_nt}
    s_lshl_b32 s42, s42, 2
    s_add_u32 s43, s42, s{s_r}
    s_lshl_b32 s43, s43, 2
    s_add_u32 s43, s43, s{s_ks}
    s_mul_i32 s44, s43, 9216
    s_lshl_b32 s33, s{s_h}, 8
    s_add_u32 s44, s44, s33
    v_and_b32 v6, 15, v2
    v_lshlrev_b32 v6, 4, v6
    v_bfe_u32 v7, v2, 4, 1
    v_lshl_add_u32 v8, v7, 10, v6
    v_lshrrev_b32 v24, 5, v2
    v_lshl_add_u32 v8, v24, 9, v8
    v_lshl_add_u32 v6, v24, 9, v6
    v_lshl_add_u32 v6, v7, 3, v6
    s_add_u32 s45, s44, 4096
    s_add_u32 s46, s44, 8192
    """)
    for j in range(9):
        e(f"s_waitcnt lgkmcnt({8-j})")
        e(f"v_pk_add_f32 {v(ACC+4*j,2)}, {v(ACC+4*j,2)}, {v(40+4*j,2)}")
        e(f"v_pk_add_f32 {v(ACC+4*j+2,2)}, {v(ACC+4*j+2,2)}, {v(40+4*j+2,2)}")
        O = 80 + 2 * j
        e(f"v_cvt_pk_bf16_f32 v{O}, v{ACC+4*j}, v{ACC+4*j+1}")
        e(f"v_cvt_pk_bf16_f32 v{O+1}, v{ACC+4*j+2}, v{ACC+4*j+3}")
        if j >= 2 and j % 2 == 0:
            jp = j // 2 - 1
            P_ = 80 + 4 * jp
            e(f"v_permlane16_swap_b32 v{P_}, v{P_+2}")
            e(f"v_permlane16_swap_b32 v{P_+1}, v{P_+3}")
            e(f"buffer_store_dwordx4 {v(P_,4)}, v8, s[{srd}:{srd+3}], s{44+jp//2} offen offset:{2048*(jp%2)} sc1")
    e(f"buffer_store_dwordx2 v[96:97], v6, s[{srd}:{srd+3}], s46 offen sc1")

FLAG_OFF = 4 * S * D * 2
def k_c(A):
    name = "kc_kernel"
    CS_L = 4 * KC_STAGE
    A.launch(name, 256, 512, 4 * KC_STAGE + 2048 + 8192)
    A.kernel_begin(name)
    e = A.e
    XR = 112
    ACC = 64
    WR = 44
    NW = 5
    T, O, CS = 24, 32, 36
    K = 16
    PK = int(os.environ.get("KC_PK", "0"))
    ST = Stamps(A, STAMP in ("kc", "kd2"))
    ST.stamp(); ST.real(0)
    ST.mute = STAMP == "kd2"
    e(f"""
    s_cmp_ge_u32 s2, 256
    s_cbranch_scc1 kc_done
    s_load_dwordx2 s[26:27], s[0:1], {KA_WS}
    s_load_dwordx2 s[4:5], s[0:1], {KA_WD}
    v_lshrrev_b32 v1, 6, v0
    v_and_b32 v2, 63, v0
    v_lshlrev_b32 v3, 4, v2
    v_readfirstlane_b32 s28, v1
    s_and_b32 s33, s2, 7
    s_lshr_b32 s34, s2, 3
    s_lshr_b32 s29, s33, 1
    s_lshl_b32 s29, s29, 3
    s_and_b32 s31, s34, 7
    s_add_u32 s29, s29, s31
    s_and_b32 s30, s33, 1
    s_lshl_b32 s30, s30, 2
    s_lshr_b32 s31, s34, 3
    s_add_u32 s30, s30, s31
    s_lshl_b32 s33, s30, 8
    s_lshl_b32 s34, s28, 5
    s_add_u32 s33, s33, s34
    v_and_b32 v4, 15, v2
    v_add_u32 v4, s33, v4
    v_lshrrev_b32 v5, 4, v2
    v_lshlrev_b32 v5, 15, v5
    v_lshl_add_u32 v9, v4, 4, v5
    s_lshl_b32 s36, s28, 12
    s_mul_i32 s37, s29, {324*1024}
    s_lshl_b32 s31, s28, 10
    s_add_u32 s31, s31, 32768
    s_and_b32 s64, s29, {7 if KC_ROT else 0}
    s_mul_i32 s65, s64, {4096*NP1}
    s_add_u32 s66, s65, s36
    s_add_u32 s67, s65, s31
    s_lshl_b32 s65, s64, 12
    s_add_u32 s68, s65, s36
    s_add_u32 s69, s65, s31
    s_sub_u32 s65, s68, {KC_STAGE}
    s_cmp_ge_u32 s68, {KC_STAGE}
    s_cselect_b32 s68, s65, s68
    s_sub_u32 s65, s69, {KC_STAGE}
    s_cmp_ge_u32 s69, {KC_STAGE}
    s_cselect_b32 s69, s65, s69
    s_add_u32 s68, s68, s37
    s_add_u32 s69, s69, s37
    s_lshl_b32 s70, s64, 18
    s_waitcnt lgkmcnt(0)
    """)
    A.srd_off(8, 26, 27, WS_WP, 2 * D * F * 2)
    A.srd_off(12, 26, 27, WS_H, S * D * 2)
    vm = Cnt(A, "vmcnt", 63)
    lg = Cnt(A, "lgkmcnt", 15)
    issued = set()
    done_st = lambda vm_, iss: iss
    def soff(c, sfirst, slater):
        if c >= NP1:
            e(f"s_add_u32 s38, s{slater}, {c*KC_STAGE}")
        else:
            e(f"s_add_u32 s38, s{sfirst}, {c*KC_STAGE}")
            e(f"s_sub_u32 s65, s38, {NP1*KC_STAGE}")
            e(f"s_cmp_ge_u32 s38, {NP1*KC_STAGE}")
            e("s_cselect_b32 s38, s65, s38")
            e("s_add_u32 s38, s38, s37")
    def dma_ops(c):
        st = c % 4
        def opt():
            lab = A.newlabel("kc_skip")
            e("s_cmp_ge_u32 s28, 4")
            e(f"s_cbranch_scc1 {lab}")
            e(f"s_add_u32 m0, s31, {st*KC_STAGE}")
            soff(c, 67, 69)
            e(f"buffer_load_dwordx4 v3, s[8:11], s38 offen lds")
            A.label(lab)
        ops = [opt, lambda: e(f"s_add_u32 m0, s36, {st*KC_STAGE}"), lambda: soff(c, 66, 68)]
        for i in range(4):
            def ld(i=i):
                e(f"buffer_load_dwordx4 v3, s[8:11], s38 offen offset:{1024*i} lds")
                vm.issue(("W", c))
            ops.append(ld)
        return [("W", c, op) for op in ops]
    def x_ops(sx):
        def so():
            e("s_mov_b32 s40, s70")
            e(f"s_add_u32 s70, s70, {4*32768:#x}")
            e(f"s_cmp_ge_u32 s70, {72*32768:#x}")
            e("s_cselect_b32 s70, 0, s70")
        ops = [so]
        for tt in range(2):
            def ld(tt=tt):
                e(f"buffer_load_dwordx4 {v(XR+8*sx+4*tt,4)}, v9, s[12:15], s40 offen offset:{256*tt}")
                vm.issue(("X", sx))
            ops.append(ld)
        return [("X", sx, op) for op in ops]
    def run_ops(ops):
        for op in ops: op[2]()
    PF8 = int(os.environ.get("PF8", "2"))
    NXP = int(os.environ.get("KC_NXP", "4"))
    NX0 = int(os.environ.get("KC_NX0", "2"))
    run_ops(dma_ops(0))
    for sx in range(NX0): run_ops(x_ops(sx))
    A.srd_off(48, 26, 27, WS_ST2, S * 8)
    e(f"""
    s_lshl_b32 s52, s30, 8
    s_lshl_b32 s53, s29, 3
    s_add_u32 s52, s52, s53
    s_add_u32 s52, s52, s28
    s_lshl_b32 s53, s52, 4
    s_add_u32 s54, s53, {36*32768}
    v_lshlrev_b32 v4, 15, v2
    v_mov_b32 v5, 0x7ffffff0
    v_cmp_gt_u32 s[56:57], 36, v2
    s_lshl_b32 s52, s52, 3
    s_nop 0
    v_cndmask_b32 v4, v5, v4, s[56:57]
    buffer_load_dwordx4 v[{T}:{T+3}], v4, s[12:15], s53 offen
    buffer_load_dwordx4 v[{T+4}:{T+7}], v4, s[12:15], s54 offen
    """)
    vm.issue("row"); vm.issue("row")
    A.srd_off(16, 26, 27, WS_HH, S * F * 2)
    A.srd_off(20, 26, 27, WS_CS, 12 * F * 4)
    e(f"""
    v_and_b32 v4, 31, v2
    v_add_u32 v4, s33, v4
    v_lshrrev_b32 v5, 5, v2
    v_lshlrev_b32 v5, 15, v5
    v_lshl_add_u32 v1, v4, 4, v5
    v_add_u32 v6, {KC_STAGE}, v3
    v_add_u32 v7, {2*KC_STAGE}, v3
    v_add_u32 v8, {3*KC_STAGE}, v3
    v_lshrrev_b32 v10, 4, v2
    v_lshlrev_b32 v10, 4, v10
    v_add_u32 v10, {CS_L}, v10
    s_lshr_b32 s32, s28, 2
    s_mul_i32 s33, s32, {F*4}
    s_mul_i32 s34, s29, 576
    s_add_u32 s33, s33, s34
    v_mov_b32 v5, 0x7ffffff0
    v_cmp_gt_u32 vcc, 36, v2
    s_lshl_b32 s32, s32, 10
    s_add_u32 s32, s32, {CS_L}
    v_cndmask_b32 v13, v5, v3, vcc
    v_add_u32 v11, s32, v3
    s_mov_b32 s55, s33
    s_mov_b32 s47, 0xffff0000
    s_mul_i32 s42, s29, {18*32768}
    """)
    e(f"""
    s_mov_b32 s44, {fbits(1.0/576):#x}
    v_and_b32 v12, 0x7fff, v9
    v_lshrrev_b32 v12, 1, v12
    """)
    def pub_ops():
        L = [lambda: vm.need("row")]
        q = lambda s_: L.append(lambda: e(s_))
        def wave_sum(r, t):
            for sh in (8, 4, 2, 1):
                q(f"s_nop 1\nv_add_f32_dpp v{r}, v{r}, v{r} row_ror:{sh} row_mask:0xf bank_mask:0xf")
            for op in ("v_permlane16_swap_b32", "v_permlane32_swap_b32"):
                q(f"v_mov_b32 v{t}, v{r}")
                q(f"s_nop 1\n{op} v{r}, v{t}")
                q(f"v_add_f32 v{r}, v{r}, v{t}")
        for d in range(8):
            q(f"v_lshlrev_b32 v{K+4+(d&1)*2}, 16, v{T+d}")
            q(f"v_and_b32 v{K+5+(d&1)*2}, s47, v{T+d}")
            if d == 0:
                q(f"v_add_f32 v{K}, v{K+4}, v{K+5}")
            else:
                q(f"v_add_f32 v{K}, v{K}, v{K+4+(d&1)*2}")
                q(f"v_add_f32 v{K}, v{K}, v{K+5+(d&1)*2}")
        wave_sum(K, K + 1)
        q(f"v_mul_f32 v{K}, s44, v{K}")
        q(f"v_mov_b32 v{K+2}, 0")
        for d in range(8):
            u = K + 4 + (d & 1) * 2
            q(f"v_lshlrev_b32 v{u}, 16, v{T+d}")
            q(f"v_and_b32 v{u+1}, s47, v{T+d}")
            q(f"v_sub_f32 v{u}, v{u}, v{K}")
            q(f"v_sub_f32 v{u+1}, v{u+1}, v{K}")
            q(f"v_fmac_f32 v{K+2}, v{u}, v{u}")
            q(f"v_fmac_f32 v{K+2}, v{u+1}, v{u+1}")
        q(f"v_cndmask_b32 v{K+2}, 0, v{K+2}, s[56:57]")
        wave_sum(K + 2, K + 3)
        q(f"v_mov_b32 v{K+1}, {fbits(1e-5):#x}")
        q(f"v_fmac_f32 v{K+1}, s44, v{K+2}")
        q("v_mov_b32 v4, 0")
        def st():
            e("s_mov_b64 exec, 1")
            e(f"buffer_store_dwordx2 v[{K}:{K+1}], v4, s[48:51], s52 offen sc1")
            e("s_mov_b64 exec, -1")
            vm.issue("pub")
        L.append(st)
        return L
    RB = [3, 6, 7, 8]
    def finfo(f):
        b = f // 36
        if b < NP1: return (f // (2 * NP1), (f % (2 * NP1)) >> 1, f & 1)
        return ((f % 36) // 2, b, f & 1)
    def wread(f):
        e(f"ds_read_b128 {v(WR+4*(f%NW),4)}, v{RB[(f//36)%4]} offset:{1024*(f%36)}")
        lg.issue(("w", f))
    def stat_ops(sx):
        ops = []
        for tt in range(2):
            for d in range(4):
                r = XR + 8 * sx + 4 * tt + d
                k = K + 4 * tt
                ops.append(lambda r=r: e(f"v_lshlrev_b32 v4, 16, v{r}"))
                ops.append(lambda r=r: e(f"v_and_b32 v5, s47, v{r}"))
                ops.append(lambda k=k: e(f"v_add_f32 v{k}, v{k}, v4"))
                ops.append(lambda k=k: e(f"v_add_f32 v{k+1}, v{k+1}, v5"))
                ops.append(lambda k=k: e(f"v_fmac_f32 v{k+2}, v4, v4"))
                ops.append(lambda k=k: e(f"v_fmac_f32 v{k+3}, v5, v5"))
        return ops
    c0 = -2.0 * math.sqrt(2.0 / math.pi) * math.log2(math.e)
    c1 = c0 * 0.044715
    def statld_ops():
        L = []
        for tt in range(2):
            def ld(tt=tt):
                e(f"buffer_load_dwordx2 v[{K+4*tt}:{K+4*tt+1}], v12, s[48:51], 0 offen offset:{128*tt} sc1")
                vm.issue("stat")
            L.append(ld)
        return L
    def statfin_ops():
        L = []
        q = lambda s_: L.append(lambda: e(s_))
        def chk():
            vm.need("stat")
            e(f"v_cmp_eq_u32 vcc, -1, v{K+1}")
            e(f"v_cmp_eq_u32 s[58:59], -1, v{K+5}")
            e("s_nop 1")
            e("s_or_b64 vcc, vcc, s[58:59]")
            e("s_cbranch_vccnz kc_slowstat" if not os.environ.get("KC_FORCESLOW") else "s_branch kc_slowstat")
            A.label("kc_statok")
        L.append(chk)
        q(f"s_mov_b32 s45, {fbits(c0):#x}")
        q(f"s_mov_b32 s46, {fbits(c1):#x}")
        for tt in range(2):
            k = K + 4 * tt
            q(f"v_rsq_f32 v{k+2}, v{k+1}")
            q(f"v_sub_f32 v{k}, 0, v{k}")
            q(f"v_mul_f32 v{k+3}, v{k+2}, v{k+2}")
            q(f"v_mul_f32 v{k+3}, v{k+3}, v{k+2}")
            q(f"v_mul_f32 v{k+3}, s46, v{k+3}")
            q(f"v_mul_f32 v{k+2}, s45, v{k+2}")
        return L
    def slowstat():
        A.label("kc_slowstat")
        for r in range(8): e(f"v_mov_b32 v{K+r}, 0")
        for sx in range(18):
            for op in stat_ops(sx): op()
        R4 = [K, K + 2, K + 4, K + 6]
        for r in R4: e(f"v_add_f32 v{r}, v{r}, v{r+1}")
        for op in ("v_permlane32_swap_b32", "v_permlane16_swap_b32"):
            for r in R4: e(f"v_mov_b32 v{r+1}, v{r}")
            e("s_nop 1")
            for r in R4: e(f"{op} v{r}, v{r+1}")
            for r in R4: e(f"v_add_f32 v{r}, v{r}, v{r+1}")
        for tt in range(2):
            k = K + 4 * tt
            e(f"v_mul_f32 v{k}, s44, v{k}")
            e(f"v_mul_f32 v{k+1}, s44, v{k+2}")
            e(f"v_fma_f32 v{k+1}, -v{k}, v{k}, v{k+1}")
            e(f"v_max_f32 v{k+1}, 0, v{k+1}")
            e(f"v_add_f32 v{k+1}, {fbits(1e-5):#x}, v{k+1}")
        e("s_branch kc_statok")
    def cs_rd(j):
        if j > 8: return
        e(f"ds_read_b128 {v(CS,4)}, v10 offset:{64*j}"); lg.issue(("cs", j))
        e(f"ds_read_b128 {v(CS+4,4)}, v10 offset:{1024+64*j}"); lg.issue(("cs", j))
    def epi_ops(j):
        L = []
        q = lambda s_: L.append(lambda: e(s_))
        g0 = ACC + 16 * (j % 3)
        L.append(lambda: lg.need(("cs", j)))
        kk = lambda r: K + 4 * (r // 4)
        P = lambda r: v(r, 2)
        if PK:
            for m in range(2):
                for r in range(0, 8, 2):
                    q(f"v_pk_fma_f32 {P(g0+8*m+r)}, {P(CS+4*m+(r%4))}, {P(kk(r))}, {P(g0+8*m+r)} op_sel_hi:[1,0,1]")
            L.append(lambda: cs_rd(j + 1))
            for r in range(0, 8, 2): q(f"v_pk_mul_f32 {P(T+r)}, {P(g0+r)}, {P(g0+r)}")
            for r in range(0, 8, 2): q(f"v_pk_fma_f32 {P(T+r)}, {P(T+r)}, {P(kk(r)+2)}, {P(kk(r)+2)} op_sel:[0,1,0] op_sel_hi:[1,1,0]")
            for r in range(0, 8, 2): q(f"v_pk_mul_f32 {P(T+r)}, {P(T+r)}, {P(g0+r)}")
            for r in range(8): q(f"v_exp_f32 v{T+r}, v{T+r}")
            for r in range(0, 8, 2): q(f"v_pk_mul_f32 {P(g0+r)}, {P(g0+r)}, {P(g0+8+r)}")
            for r in range(0, 8, 2): q(f"v_pk_fma_f32 {P(T+r)}, {P(T+r)}, {P(kk(r))}, {P(kk(r))} op_sel:[0,1,1] op_sel_hi:[1,1,1]")
            for r in range(8): q(f"v_rcp_f32 v{T+r}, v{T+r}")
            q("s_nop 0")
            for r in range(0, 8, 2): q(f"v_pk_mul_f32 {P(g0+r)}, {P(g0+r)}, {P(T+r)}")
        else:
            for m in range(2):
                for r in range(8): q(f"v_fmac_f32 v{g0+8*m+r}, v{CS+4*m+(r%4)}, v{kk(r)}")
            L.append(lambda: cs_rd(j + 1))
            for r in range(8): q(f"v_mul_f32 v{T+r}, v{g0+r}, v{g0+r}")
            for r in range(8): q(f"v_fma_f32 v{T+r}, v{T+r}, v{kk(r)+3}, v{kk(r)+2}")
            for r in range(8): q(f"v_mul_f32 v{T+r}, v{T+r}, v{g0+r}")
            for r in range(8):
                q(f"v_exp_f32 v{T+r}, v{T+r}")
                q(f"v_mul_f32 v{g0+r}, v{g0+r}, v{g0+8+r}")
            for r in range(8): q(f"v_fma_f32 v{T+r}, v{T+r}, v{kk(r)+1}, v{kk(r)+1}")
            for r in range(8): q(f"v_rcp_f32 v{T+r}, v{T+r}")
            q("s_nop 0")
            for r in range(8): q(f"v_mul_f32 v{g0+r}, v{g0+r}, v{T+r}")
        for d in range(4): q(f"v_cvt_pk_bf16_f32 v{O+d}, v{g0+2*d}, v{g0+2*d+1}")
        q(f"s_add_u32 s43, s42, {2*j*32768}")
        q("s_nop 0")
        q(f"v_permlane16_swap_b32 v{O}, v{O+2}")
        q(f"v_permlane16_swap_b32 v{O+1}, v{O+3}")
        def st_():
            e(f"buffer_store_dwordx4 {v(O,4)}, v1, s[16:19], s43 offen{SC1C}")
            vm.issue(("st", j)); issued.add(("st", j))
        L.append(st_)
        q("s_nop 0")
        return L
    def wd_setup_ops():
        L = []
        q = lambda s_: L.append(lambda: e(s_))
        for s_ in f"""s_mov_b32 s6, {F*D*2:#x}
        s_mov_b32 s7, 0x00020000
        s_add_u32 s60, s26, {WS_WDP:#x}
        s_addc_u32 s61, s27, 0
        s_mov_b32 s62, {F*D*2:#x}
        s_mov_b32 s63, 0x00020000
        s_lshl_b32 s24, s2, 3
        s_add_u32 s24, s24, s28
        s_mul_i32 s25, s24, 7282
        s_lshr_b32 s25, s25, 16
        s_mul_i32 s39, s25, 9
        s_sub_u32 s24, s24, s39
        s_mul_i32 s39, s25, 36864
        s_lshl_b32 s41, s24, 7
        s_add_u32 s39, s39, s41
        s_mul_i32 s41, s25, 1821
        s_lshr_b32 s41, s41, 16
        s_mul_i32 s52, s41, 36
        s_sub_u32 s25, s25, s52
        s_mul_i32 s41, s41, {4*36*9}
        s_mul_i32 s25, s25, 9
        s_add_u32 s41, s41, s25
        s_lshl_b32 s24, s24, 2
        v_lshrrev_b32 v4, 3, v2
        v_mul_u32_u24 v4, 1152, v4
        v_and_b32 v5, 7, v2
        v_lshl_add_u32 v13, v5, 4, v4
        v_lshrrev_b32 v4, 4, v2
        v_lshlrev_b32 v4, 3, v4
        v_bfe_u32 v5, v2, 2, 2
        v_add_u32 v4, v4, v5
        v_lshlrev_b32 v4, 7, v4
        v_and_b32 v5, 3, v2
        v_lshl_add_u32 v14, v5, 3, v4
        v_add_u32 v14, s36, v14""".split("\n"):
            q(s_.strip())
        L[2:4] = [lambda: (e(f"s_add_u32 s60, s26, {WS_WDP:#x}"), e("s_addc_u32 s61, s27, 0"))]
        for q4 in range(4):
            d = 52 + q4
            q(f"s_add_u32 s25, s24, {q4}")
            q(f"s_mul_i32 s{d}, s25, 7282")
            q(f"s_lshr_b32 s{d}, s{d}, 16")
            q(f"s_mul_i32 s{d}, s{d}, {36*9-9}")
            q(f"s_add_u32 s{d}, s{d}, s25")
            q(f"s_add_u32 s{d}, s{d}, s41")
            q(f"s_lshl_b32 s{d}, s{d}, 10")
        return L
    def wd_dma_ops():
        ops = []
        for i in range(4):
            ops.append(lambda i=i: e(f"s_add_u32 m0, s36, {KC_STAGE + 1024*i}"))
            def ld(i=i):
                e(f"buffer_load_dwordx4 v13, s[4:7], s39 offen lds")
                e(f"s_add_u32 s39, s39, {8*1152}")
                vm.issue("wd")
            ops.append(ld)
        return [("P", 99, op) for op in ops]
    def wd_pack_ops():
        L = [lambda: vm.need("wd")]
        for q4 in range(4):
            def rd(q4=q4):
                e(f"ds_read_b64_tr_b16 {v(ACC+4*q4,2)}, v14 offset:{KC_STAGE+32*q4}"); lg.issue(("wdr", q4))
                e(f"ds_read_b64_tr_b16 {v(ACC+4*q4+2,2)}, v14 offset:{KC_STAGE+32*q4+512}"); lg.issue(("wdr", q4))
            L.append(rd)
        L += [lambda: None] * 12
        for q4 in range(4):
            def st(q4=q4):
                lg.need(("wdr", q4))
                e(f"buffer_store_dwordx4 {v(ACC+4*q4,4)}, v3, s[60:63], s{52+q4} offen{SCP}")
                vm.issue("wds")
            L.append(st)
        return L
    DA, DH, DACC, DWR, DNW, DNH = 112, 128, 184, 44, 8, 6
    PK_L = CS_L + 2048
    def d_salu_ops():
        L = []
        q = lambda s_: L.append(lambda: e(s_))
        for s_ in f"""s_mov_b32 s6, {F*D*2:#x}
        s_mov_b32 s7, 0x00020000
        s_mov_b32 s62, {FLAG_OFF+8192+1024:#x}
        s_mov_b32 s63, 0x00020000
        s_mov_b32 s22, {F*D*2:#x}
        s_and_b32 s24, s2, 7
        s_lshr_b32 s25, s2, 3
        s_lshr_b32 s52, s24, 1
        s_and_b32 s24, s24, 1
        s_lshl_b32 s24, s24, 3
        s_lshr_b32 s53, s25, 2
        s_add_u32 s53, s53, s24
        s_and_b32 s54, s25, 3
        s_and_b32 s56, s28, 3
        s_lshr_b32 s57, s28, 2
        s_lshl_b32 s24, s52, 2
        s_add_u32 s24, s24, s54
        s_mul_i32 s39, s24, {324*1024}
        s_lshl_b32 s24, s24, 6
        s_add_u32 s32, s24, {FLAG_OFF+8192}
        s_lshl_b32 s24, s53, 2
        s_add_u32 s33, s32, s24
        s_mul_i32 s41, s52, {144*32768}
        s_mul_i32 s24, s57, {36*32768}
        s_add_u32 s41, s41, s24
        s_lshl_b32 s24, s30, 3
        s_add_u32 s24, s24, s28
        s_lshl_b32 s24, s24, 5
        s_add_u32 s24, s24, s29
        s_lshl_b32 s24, s24, 2
        s_add_u32 s55, s24, {FLAG_OFF}
        s_lshl_b32 s24, s53, 7
        s_lshl_b32 s25, s52, 3
        s_add_u32 s24, s24, s25
        s_lshl_b32 s24, s24, 2
        s_add_u32 s71, s24, {FLAG_OFF}
        s_lshl_b32 s24, s53, 3
        s_add_u32 s24, s24, s28
        s_mul_i32 s35, s24, 3072
        s_add_u32 s35, s35, s39
        s_mul_i32 s25, s24, 171
        s_lshr_b32 s25, s25, 9
        s_mul_i32 s34, s25, 3
        s_sub_u32 s34, s24, s34
        s_mul_i32 s34, s34, 96
        s_mul_i32 s64, s54, 288
        s_add_u32 s34, s34, s64
        s_lshr_b32 s64, s25, 2
        s_and_b32 s25, s25, 3
        s_mul_i32 s25, s25, 288
        s_lshl_b32 s64, s64, 4
        s_add_u32 s25, s25, s64
        s_mul_i32 s64, s52, 1152
        s_add_u32 s25, s25, s64
        s_mul_i32 s25, s25, 1152
        s_add_u32 s34, s34, s25""".split("\n"):
            q(s_.strip())
        L.append(lambda: (e("s_cmp_ge_u32 s24, 108"), e(f"s_cselect_b32 s34, {F*D*2:#x}, s34"), e(f"s_cselect_b32 s35, {F*D*2:#x}, s35")))
        L.append(lambda: (e(f"s_add_u32 s60, s26, {WS_PART:#x}"), e("s_addc_u32 s61, s27, 0")))
        L.append(lambda: (e(f"s_add_u32 s20, s26, {WS_WDP:#x}"), e("s_addc_u32 s21, s27, 0")))
        return L
    def pk_addr_ops():
        L = []
        q = lambda s_: L.append(lambda: e(s_))
        for s_ in f"""v_lshrrev_b32 v4, 5, v2
        v_mul_u32_u24 v4, 144, v4
        v_bfe_u32 v5, v2, 1, 4
        v_add_u32 v4, v4, v5
        v_mul_u32_u24 v4, 1152, v4
        v_and_b32 v5, 1, v2
        v_lshl_add_u32 v9, v5, 4, v4
        v_lshrrev_b32 v4, 4, v2
        v_lshlrev_b32 v4, 3, v4
        v_bfe_u32 v5, v2, 2, 2
        v_add_u32 v4, v4, v5
        v_lshlrev_b32 v4, 5, v4
        v_and_b32 v5, 3, v2
        v_lshl_add_u32 v4, v5, 3, v4
        s_lshl_b32 s64, s28, 10
        s_add_u32 s64, s64, {PK_L}
        v_add_u32 v11, s64, v4""".split("\n"):
            q(s_.strip())
        return L
    def pk_touch_ops():
        L = []
        q = lambda s_: L.append(lambda: e(s_))
        for s_ in f"""v_lshrrev_b32 v4, 5, v2
        v_mul_u32_u24 v4, 144, v4
        v_bfe_u32 v5, v2, 1, 4
        v_add_u32 v4, v4, v5
        v_mul_u32_u24 v4, 1152, v4
        v_and_b32 v5, 1, v2
        v_mul_u32_u24 v5, 92, v5
        v_add_u32 v{T}, v5, v4""".split("\n"):
            q(s_.strip())
        def ld():
            e(f"buffer_load_dword v{T+1}, v{T}, s[4:7], s34 offen")
            vm.issue("pkt")
        L.append(ld)
        return L
    def pk_dma_ops(i):
        def ld():
            e("s_mov_b32 m0, s64")
            e("s_nop 0")
            e(f"buffer_load_dwordx4 v9, s[4:7], s34 offen lds")
            e("s_add_u32 s34, s34, 32")
            vm.issue(("pkd", i))
        return [("P", 99, ld)]
    def pk_rd_ops(i):
        def rd():
            vm.need(("pkd", i))
            e("ds_read_b64_tr_b16 v[12:13], v11"); lg.issue(("pkr", i))
            e("ds_read_b64_tr_b16 v[14:15], v11 offset:128"); lg.issue(("pkr", i))
        def st():
            lg.need(("pkr", i))
            e(f"buffer_store_dwordx4 v[12:15], v3, s[20:23], s35 offen offset:{1024*i} sc1")
            vm.issue(("pks", i)); issued.add(("pks", i))
            if i < 2: mem.extend(pk_dma_ops(i + 1))
        return [rd], [st]
    def publish(level):
        e(f"v_mov_b32 v4, {level}")
        e("v_mov_b32 v5, 0")
        e("s_mov_b64 exec, 1")
        e("buffer_store_dword v4, v5, s[60:63], s55 offen sc1")
        e("s_mov_b64 exec, -1")
        vm.issue("prog")
    def retired_level():
        lv = 0
        while ("st", lv) in issued and ("st", lv) not in vm.q: lv += 1
        return lv
    def d_valu_ops():
        L = []
        q = lambda s_: L.append(lambda: e(s_))
        for s_ in f"""s_lshl_b32 s24, s53, 7
        s_lshl_b32 s25, s56, 5
        s_add_u32 s24, s24, s25
        v_and_b32 v4, 15, v2
        v_add_u32 v4, s24, v4
        v_lshrrev_b32 v5, 5, v2
        v_mul_u32_u24 v5, 18, v5
        v_bfe_u32 v{DA}, v2, 4, 1
        v_add_u32 v5, v5, v{DA}
        v_lshlrev_b32 v5, 15, v5
        v_lshl_add_u32 v{DA+5}, v4, 4, v5
        s_mul_i32 s24, s57, 9216
        v_add_u32 v{DA+6}, s24, v3
        v_add_u32 v{DA+7}, s24, v6
        v_add_u32 v{DA+8}, s24, v7
        v_add_u32 v{DA+9}, s24, v8
        s_add_u32 s68, s39, s36
        s_add_u32 s69, s39, s31""".split("\n"):
            q(s_.strip())
        return L
    def d_dma_ops(c):
        st = (c + 1) % 4
        def opt():
            lab = A.newlabel("kc_skip")
            e("s_cmp_ge_u32 s28, 4")
            e(f"s_cbranch_scc1 {lab}")
            e(f"s_add_u32 m0, s31, {st*KC_STAGE}")
            e(f"s_add_u32 s38, s69, {c*KC_STAGE}")
            e(f"buffer_load_dwordx4 v3, s[20:23], s38 offen sc1 lds")
            A.label(lab)
        ops = [opt, lambda: e(f"s_add_u32 m0, s36, {st*KC_STAGE}"), lambda: e(f"s_add_u32 s38, s68, {c*KC_STAGE}")]
        for i in range(4):
            def ld(i=i):
                e(f"buffer_load_dwordx4 v3, s[20:23], s38 offen offset:{1024*i} sc1 lds")
                vm.issue(("DW", c))
            ops.append(ld)
        return [("DW", c, op) for op in ops]
    def d_h_ops(sx):
        c, hlf = divmod(sx, 2)
        sr = [40, 70, 65, 66][sx % 4]
        ops = [lambda: e(f"s_add_u32 s{sr}, s41, {(72*hlf + 2*c)*32768:#x}")]
        for tt in range(2):
            def ld(tt=tt):
                e(f"buffer_load_dwordx4 {v(DH+8*(sx%DNH)+4*tt,4)}, v{DA+5}, s[16:19], s{sr} offen offset:{256*tt} sc1")
                vm.issue(("H", sx))
            ops.append(ld)
        return [("H", sx, op) for op in ops]
    FV, FX = 12, 13
    def flag_addr_ops():
        L = []
        q = lambda s_: L.append(lambda: e(s_))
        for s_ in f"""v_and_b32 v4, 7, v2
        v_bfe_u32 v5, v2, 3, 2
        v_lshlrev_b32 v5, 5, v5
        v_add_u32 v4, v4, v5
        v_lshlrev_b32 v4, 2, v4
        v_add_u32 v4, s71, v4
        v_and_b32 v5, 15, v2
        v_lshlrev_b32 v5, 2, v5
        v_add_u32 v5, s32, v5
        v_cmp_gt_u32 vcc, 32, v2
        s_nop 1
        v_cndmask_b32 v{FV}, v5, v4, vcc""".split("\n"):
            q(s_.strip())
        return L
    mark = [0]
    def flag_ld():
        lab = A.newlabel("kc_fl")
        e("s_cmp_lg_u32 s28, 0")
        e(f"s_cbranch_scc1 {lab}")
        e(f"buffer_load_dword v{FX}, v{FV}, s[60:63], 0 offen sc1")
        A.label(lab)
        mark[0] = vm.total
    spins = []
    def flag_chk(level):
        ok, sp = A.newlabel("kc_fok"), A.newlabel("kc_spin")
        e("s_cmp_lg_u32 s28, 0")
        e(f"s_cbranch_scc1 {ok}")
        e(f"s_waitcnt vmcnt({min(vm.total - mark[0], 63)})")
        e(f"v_cmp_gt_u32 vcc, {level}, v{FX}")
        e("s_nop 1")
        e(f"s_cbranch_vccnz {sp}")
        A.label(ok)
        spins.append((ok, sp, level))
    def emit_spins():
        for ok, sp, level in spins:
            A.label(sp)
            e("s_mov_b32 s67, 0")
            lp = A.newlabel("kc_sl")
            A.label(lp)
            e(f"""
            buffer_load_dword v{FX}, v{FV}, s[60:63], 0 offen sc1
            s_add_u32 s67, s67, 1
            s_waitcnt vmcnt(0)
            v_cmp_gt_u32 vcc, {level}, v{FX}
            s_cmp_ge_u32 s67, 0x8000
            s_cbranch_scc1 {ok}
            s_cbranch_vccnz {lp}
            s_branch {ok}
            """)
    def cs_ld_ops(grp):
        L = []
        dst = [CS, CS + 4, T] if grp == 0 else [CS + 4, T, T + 4]
        for i in range(3):
            def ld(i=i):
                e(f"buffer_load_dwordx4 {v(dst[i],4)}, v13, s[20:23], s55 offen")
                e(f"s_add_u32 s55, s55, {2*F*4}")
                vm.issue(("cs", grp))
            L.append(ld)
        return L
    def cs_add_ops(grp):
        L = [lambda: vm.need(("cs", grp))]
        for sr in ([CS + 4, T] if grp == 0 else [CS + 4, T, T + 4]):
            for r in range(4): L.append(lambda r=r, sr=sr: e(f"v_add_f32 v{CS+r}, v{CS+r}, v{sr+r}"))
        if grp == 1:
            def w():
                e(f"ds_write_b128 v11, {v(CS,4)}"); lg.issue("csw"); issued.add("csw")
            L.append(w)
        return L
    ST.stamp()
    vm.need(("W", 0))
    e("s_barrier")
    ST.stamp()
    NF = 324
    AHEAD = NW - 1
    KC_D1 = int(os.environ.get("KC_D1", "1"))
    mem = dma_ops(1) + ([] if KC_D1 else dma_ops(2))
    val = [lambda: None] * 16 + pub_ops()
    nr = 0
    F1 = 36 * NP1
    def flush(kind, idx):
        while any(p[0] == kind and p[1] <= idx for p in mem):
            mem.pop(0)[2]()
    def next_read():
        nonlocal nr, mem
        if nr >= NF: return
        if nr % 36 == 0 and nr > 0:
            c = nr // 36
            lg.drain()
            flush("W", c)
            vm.need(("W", c))
            if FUSE and c == 6:
                assert ("pks", 2) in issued
                vm.need(("pks", 2))
            if FUSE and c >= 6: vm.need(("st", c - 3))
            if FUSE and c == 8: flag_chk(4)
            e("s_barrier")
            ST.stamp()
            if c == NP1 - 1: assert "csw" in issued
            if KC_D1 and c <= NP1: mem += dma_ops(c + 1)
            if c + 2 < 9 and (not KC_D1 or c >= NP1): mem += dma_ops(c + 2)
            if not FUSE:
                if c == 7: mem += wd_dma_ops()
            else:
                if c >= 6: publish(retired_level())
                if c == 6:
                    lab = A.newlabel("kc_pkf")
                    e("s_cmp_lg_u32 s28, 0")
                    e(f"s_cbranch_scc1 {lab}")
                    e("v_mov_b32 v4, 15")
                    e("s_mov_b64 exec, 1")
                    e("buffer_store_dword v4, v5, s[60:63], s33 offen sc1")
                    e("s_mov_b64 exec, -1")
                    A.label(lab)
        wread(nr); nr += 1
    for _ in range(AHEAD): next_read()
    xq = []
    for sx in range(NX0, NXP): xq += x_ops(sx)
    for f in range(NF):
        s_, j, m = finfo(f)
        if f < F1 and f % (2 * NP1) == 0:
            while any(p[1] <= s_ for p in xq): xq.pop(0)[2]()
            vm.need(("X", s_))
            if s_ + NXP < 18: xq += x_ops(s_ + NXP)
            if s_ == 1: val += cs_ld_ops(0)
            if s_ == 7: val += cs_add_ops(0) + cs_ld_ops(1)
            if s_ == 10: val += cs_add_ops(1)
            if s_ == 11: val += (d_salu_ops() + pk_touch_ops()) if FUSE else wd_setup_ops()
            if s_ == 14: val += statld_ops()
            if s_ == 17: val += [lambda: cs_rd(0)] + statfin_ops()
        if f == F1:
            if NP1 == 3:
                while val: val.pop(0)()
                e("s_nop 3")
                for op in epi_ops(0): op()
                val += epi_ops(1) + epi_ops(2)
            else:
                val += [lambda: None] * 4 + epi_ops(0) + epi_ops(1)
        if f > F1 and f % 36 == 2 and f // 36 > NP1:
            ep = epi_ops(f // 36 - 1)
            if f // 36 == 8 and not FUSE:
                wp = wd_pack_ops()
                ep = ep[:60] + wp[:5] + ep[60:] + wp[17:]
            val += ep
        if FUSE and f in (F1 + 30, F1 + 56, F1 + 82):
            rd_, st_2 = pk_rd_ops((f - F1 - 30) // 26)
            val = rd_ + val[:8] + st_2 + val[8:]
        if FUSE and f == 216 + 4: val = flag_addr_ops() + val
        if FUSE and f == 252 + 8: val = [flag_ld] + val
        if FUSE and f == F1 + 2:
            val = pk_addr_ops() + [lambda: mem.extend(pk_dma_ops(0))] + val
        if f >= 108 and f % 36 == 0:
            need = ("st", f // 36 - 3)
            while need not in issued:
                val.pop(0)()
        if FUSE and f == 288 + 4:
            dv = d_valu_ops()
            val = dv + [lambda: xq.extend(d_dma_ops(0) + (d_dma_ops(1) if PF8 >= 2 else []))] + val
        if FUSE and f == 288 + 17:
            for sx in range(2 * PF8): xq.extend(d_h_ops(sx))
        lg.need(("w", f))
        for tt in range(2):
            c_ = v(ACC + 16 * (j % 3) + 8 * m + 4 * tt, 4)
            src_c = "0" if s_ == 0 else c_
            e(f"v_mfma_f32_16x16x32_bf16 {c_}, {v(WR+4*(f%NW),4)}, {v(XR+8*s_+4*tt,4)}, {src_c}")
            if tt == 0: next_read()
            if tt == 1 or f < 12 or (FUSE and f >= 288):
                if xq: xq.pop(0)[2]()
                elif mem: mem.pop(0)[2]()
            if f < F1: nv = 2
            else:
                rem = (36 - f % 36) * 2 - tt
                nv = min(-(-len(val) // max(rem - 6, 1)), 3 if f < F1 + 72 else 99)
                if f < F1 + 72: nv = min(nv, 2)
                if FUSE and 288 + 4 <= f < 288 + 9: nv = 3
            for _ in range(nv):
                if val: val.pop(0)()
    ST.mute = False
    ST.stamp()
    while val: val.pop(0)()
    if not FUSE:
        e("s_nop 7")
        for op in epi_ops(8): op()
        assert not mem
        ST.stamp()
        if ST.on: e("s_waitcnt vmcnt(0)")
        ST.stamp(); ST.real(1)
        ST.dump(8)
        A.label("kc_done")
        e("s_endpgm")
        slowstat()
        A.kernel_end(name, 256, 102 if ST.on else 72)
        return
    while xq: xq.pop(0)[2]()
    while mem: mem.pop(0)[2]()
    vm.need(("st", 6))
    publish(retired_level())
    flag_ld()
    for op in epi_ops(8): op()
    val = []
    pend = []
    for c_ in range(PF8, 3):
        if c_ >= 2 or c_ >= PF8: pend += d_dma_ops(c_)
        pend += d_h_ops(2 * c_) + d_h_ops(2 * c_ + 1)
    if PF8 == 3: pend = d_dma_ops(2)
    DNF = 18 * 9
    DAH = 6
    nh = 0
    def dflush(kind, idx):
        while any(p[0] == kind and p[1] <= idx for p in pend):
            pend.pop(0)[2]()
    def d_read(h):
        f, hf = divmod(h, 2)
        st_, j = divmod(f, 9)
        c, ks = divmod(st_, 2)
        r = DWR + 4 * (f % DNW)
        if hf: return
        e(f"ds_read_b128 {v(r,4)}, v{DA+6+(c+1)%4} offset:{18432*ks + 1024*j}")
        lg.issue(("dw", f))
    def d_next_read():
        nonlocal nh, pend
        if nh >= 2 * DNF: return
        if nh % 36 == 0:
            c = nh // 36
            lg.drain()
            dflush("DW", c)
            vm.need(("DW", c))
            if c in (1, 3, 5): flag_chk({1: 6, 3: 7, 5: 9}[c])
            e("s_barrier")
            if c == 5: pend = defer + pend
            if STAMP == "kd2": ST2.stamp()
            if c + 3 < 9: pend += d_dma_ops(c + 3)
            if c == 1:
                vm.need(("st", 8))
                publish(9)
        d_read(nh); nh += 1
    defer = []
    ST2 = ST
    for _ in range(2 * DAH): d_next_read()
    for f in range(DNF):
        st_, j = divmod(f, 9)
        if j == 0:
            dflush("H", st_)
            vm.need(("H", st_))
            if st_ == 3: flag_ld()
        if f == 56: flag_ld()
        if f % 2 == 0:
            lg.need(("dw", min(f + 1, DNF - 1)))
        for tt in range(2):
            c_ = v(DACC + 36 * tt + 4 * j, 4)
            src_c = "0" if st_ == 0 else c_
            e(f"v_mfma_f32_16x16x32_bf16 {c_}, {v(DWR+4*(f%DNW),4)}, {v(DH+8*(st_%DNH)+4*tt,4)}, {src_c}")
            d_next_read()
            if pend and (tt == 1 or f < 18): pend.pop(0)[2]()
            if f >= 2:
                for _ in range(3):
                    if val: val.pop(0)()
        if j == 8 and st_ + DNH < 18:
            nx = st_ + DNH
            if nx == 14:
                defer.extend(d_h_ops(nx)); continue

            pend = d_h_ops(nx) + pend
    assert not pend and not val
    ST.n = 12
    ST.stamp()
    emit_d_tail(A, DACC, 60, 53, 54, 52, 56, 57)
    if ST.on: e("s_waitcnt vmcnt(0)")
    ST.stamp(); ST.real(1)
    ST.dump(8)
    A.label("kc_done")
    e("s_endpgm")
    slowstat()
    emit_spins()
    A.kernel_end(name, 256, 102 if ST.on else 72)

KD_STAGE = 36864
FLAG_OFF = 4 * S * D * 2
def k_d(A):
    name = "kd_kernel"
    A.launch(name, 256, 512, 4 * KD_STAGE)
    A.kernel_begin(name)
    e = A.e
    ACC = 184
    WR = 136
    NW = 12
    HR = 40
    NH = int(os.environ.get("KD_NH", "6"))
    DW = int(os.environ.get("KD_DW", "3"))
    XP = os.environ.get("XP", "")
    ST = Stamps(A, STAMP == "kd")
    ST.stamp(); ST.real(0)
    e(f"""
    s_cmp_ge_u32 s2, 256
    s_cbranch_scc1 kd_done
    s_load_dwordx4 s[4:7], s[0:1], {KA_WD}
    s_load_dwordx2 s[26:27], s[0:1], {KA_WS}
    v_lshrrev_b32 v1, 6, v0
    v_and_b32 v2, 63, v0
    s_nop 0
    v_readfirstlane_b32 s28, v1
    s_nop 3
    s_and_b32 s29, s2, 7
    s_lshr_b32 s30, s2, 3
    s_lshr_b32 s31, s29, 1
    s_and_b32 s29, s29, 1
    s_lshl_b32 s29, s29, 3
    s_lshr_b32 s32, s30, 2
    s_add_u32 s29, s29, s32
    s_and_b32 s30, s30, 3
    s_and_b32 s56, s28, 3
    s_lshr_b32 s57, s28, 2
    """)
    e(f"""
    s_lshl_b32 s33, s29, 7
    s_lshl_b32 s34, s56, 5
    s_add_u32 s33, s33, s34
    v_and_b32 v4, 15, v2
    v_add_u32 v4, s33, v4
    v_lshrrev_b32 v5, 4, v2
    v_lshlrev_b32 v5, 15, v5
    v_lshl_add_u32 v9, v4, 4, v5
    """)
    e(f"""
    v_lshlrev_b32 v3, 4, v2
    s_mul_i32 s33, s57, 9216
    v_add_u32 v16, s33, v3
    v_add_u32 v17, {KD_STAGE}, v16
    v_add_u32 v18, {2*KD_STAGE}, v16
    v_add_u32 v19, {3*KD_STAGE}, v16
    """)
    e("s_waitcnt lgkmcnt(0)")
    A.srd_off(8, 26, 27, WS_WDP, F * D * 2)
    A.srd_off(12, 26, 27, WS_HH, S * F * 2)
    A.srd_off(16, 26, 27, WS_PART, FLAG_OFF + 8192)
    A.srd_off(20, 26, 27, WS_H, S * D * 2)
    A.srd(48, 6, 7, S * D * 2)
    e(f"""
    s_lshl_b32 s36, s28, 12
    s_lshl_b32 s33, s31, 2
    s_add_u32 s33, s33, s30
    s_mul_i32 s33, s33, {36*9216}
    s_add_u32 s37, s33, s36
    s_lshl_b32 s25, s28, 10
    s_add_u32 s25, s25, 32768
    s_add_u32 s35, s33, s25
    s_mul_i32 s41, s31, {144*32768}
    s_lshl_b32 s33, s57, 17
    s_add_u32 s41, s41, s33
    """)
    vm = Cnt(A, "vmcnt", 63)
    lg = Cnt(A, "lgkmcnt", 15)
    def dma_ops(c):
        st = c % 4
        def opt():
            lab = A.newlabel("kd_skip")
            e("s_cmp_ge_u32 s28, 4")
            e(f"s_cbranch_scc1 {lab}")
            e(f"s_add_u32 m0, s25, {st*KD_STAGE}")
            e(f"s_add_u32 s38, s35, {c*KD_STAGE}")
            e(f"buffer_load_dwordx4 v3, s[8:11], s38 offen lds")
            A.label(lab)
        ops = [opt, lambda: e(f"s_add_u32 m0, s36, {st*KD_STAGE}"), lambda: e(f"s_add_u32 s38, s37, {c*KD_STAGE}")]
        for i in range(4):
            def ld(i=i):
                e(f"buffer_load_dwordx4 v3, s[8:11], s38 offen offset:{1024*i} lds")
                vm.issue(("W", c))
            ops.append(ld)
        return [("W", c, op) for op in ops]
    def h_ops(sx):
        sr = [40, 58, 59, 24][sx % 4]
        ops = [lambda: e(f"s_add_u32 s{sr}, s41, {sx*8*32768:#x}")]
        for tt in range(2):
            def ld(tt=tt):
                e(f"buffer_load_dwordx4 {v(HR+8*(sx%NH)+4*tt,4)}, v9, s[12:15], s{sr} offen offset:{256*tt}")
                vm.issue(("H", sx))
            ops.append(ld)
        return [("H", sx, op) for op in ops]
    def run_ops(ops):
        for op in ops:
            op[2]()
    def wread_half(h):
        f, hf = divmod(h, 2)
        st_, j = divmod(f, 9)
        c, ks = divmod(st_, 2)
        base = 16 + c % 4
        r = WR + 4 * (f % NW)
        if hf: return
        e(f"ds_read_b128 {v(r,4)}, v{base} offset:{18432*ks + 1024*j}")
        lg.issue(("w", f))
    PRO = KD_PRO
    for c in range(PRO):
        run_ops(dma_ops(c))
        for sx in range(2 * c, min(2 * c + 2, NH)): run_ops(h_ops(sx))
    ST.stamp()
    vm.need(("W", 0))
    e("s_barrier")
    ST.stamp()
    NF = 18 * 9
    AHEAD = 6
    GRP = int(os.environ.get("GRP", "2"))
    pend = []
    for c in range(PRO, max(DW + 1, (NH + 1) // 2)):
        if c <= DW and c < 4: pend += dma_ops(c)
        for sx in range(2 * c, min(2 * c + 2, NH)): pend += h_ops(sx)
    nh = 0
    def flush(kind, idx):
        while any(p[0] == kind and p[1] <= idx for p in pend):
            run_ops([pend.pop(0)])
    def next_read():
        nonlocal nh, pend
        if nh >= 2 * NF: return
        if nh % 36 == 0 and nh > 0:
            c = nh // 36
            lg.drain()
            flush("W", c)
            vm.need(("W", c))
            e("s_barrier")
            ST.stamp()
            if c + DW < 9:
                pend += dma_ops(c + DW)
        wread_half(nh); nh += 1
    for _ in range(2 * AHEAD): next_read()
    for f in range(NF):
        st_, j = divmod(f, 9)
        if j == 0:
            flush("H", st_)
            vm.need(("H", st_))
        if f % GRP == 0:
            lg.need(("w", min(f + GRP - 1, NF - 1)))
        for tt in range(2):
            c_ = v(ACC + 36 * tt + 4 * j, 4)
            src_c = "0" if st_ == 0 else c_
            e(f"v_mfma_f32_16x16x32_bf16 {c_}, {v(WR+4*(f%NW),4)}, {v(HR+8*(st_%NH)+4*tt,4)}, {src_c}")
            next_read()
            if pend and tt == 1:
                pend.pop(0)[2]()
        if j == 8 and st_ + NH < 18:
            pend = h_ops(st_ + NH) + pend
    assert not pend
    ST.stamp()
    e(f"""
    s_mul_i32 s33, s28, 9216
    v_lshlrev_b32 v3, 4, v2
    v_add_u32 v4, s33, v3
    s_xor_b32 s34, s28, 4
    s_mul_i32 s34, s34, 9216
    v_add_u32 v5, s34, v3
    s_barrier
    s_cmp_eq_u32 s57, 0
    s_cbranch_scc1 kd_h0
    """)
    for j in range(9):
        e(f"ds_write_b128 v4, {v(ACC+4*j,4)} offset:{1024*j}")
    for j in range(9):
        for r in range(4):
            e(f"v_mov_b32 v{ACC+4*j+r}, v{ACC+36+4*j+r}")
    e("s_branch kd_hj")
    A.label("kd_h0")
    for j in range(9):
        e(f"ds_write_b128 v4, {v(ACC+36+4*j,4)} offset:{1024*j}")
    A.label("kd_hj")
    e("s_waitcnt lgkmcnt(0)")
    e("s_barrier")
    for j in range(9):
        e(f"ds_read_b128 {v(40+4*j,4)}, v5 offset:{1024*j}")
    e(f"""
    s_lshl_b32 s42, s29, 2
    s_add_u32 s42, s42, s30
    s_lshl_b32 s42, s42, 2
    s_add_u32 s43, s42, s56
    s_lshl_b32 s43, s43, 2
    s_add_u32 s43, s43, s31
    s_mul_i32 s44, s43, 9216
    s_lshl_b32 s33, s57, 8
    s_add_u32 s44, s44, s33
    v_and_b32 v6, 15, v2
    v_lshlrev_b32 v6, 4, v6
    v_bfe_u32 v7, v2, 4, 1
    v_lshl_add_u32 v8, v7, 10, v6
    v_lshrrev_b32 v24, 5, v2
    v_lshl_add_u32 v8, v24, 9, v8
    v_lshl_add_u32 v6, v24, 9, v6
    v_lshl_add_u32 v6, v7, 3, v6
    s_add_u32 s45, s44, 4096
    s_add_u32 s46, s44, 8192
    """)
    for j in range(9):
        e(f"s_waitcnt lgkmcnt({8-j})")
        e(f"v_pk_add_f32 {v(ACC+4*j,2)}, {v(ACC+4*j,2)}, {v(40+4*j,2)}")
        e(f"v_pk_add_f32 {v(ACC+4*j+2,2)}, {v(ACC+4*j+2,2)}, {v(40+4*j+2,2)}")
        O = 80 + 2 * j
        e(f"v_cvt_pk_bf16_f32 v{O}, v{ACC+4*j}, v{ACC+4*j+1}")
        e(f"v_cvt_pk_bf16_f32 v{O+1}, v{ACC+4*j+2}, v{ACC+4*j+3}")
        if j >= 2 and j % 2 == 0:
            jp = j // 2 - 1
            P_ = 80 + 4 * jp
            e(f"v_permlane16_swap_b32 v{P_}, v{P_+2}")
            e(f"v_permlane16_swap_b32 v{P_+1}, v{P_+3}")
            e(f"buffer_store_dwordx4 {v(P_,4)}, v8, s[16:19], s{44+jp//2} offen offset:{2048*(jp%2)} sc1")
    e(f"buffer_store_dwordx2 v[96:97], v6, s[16:19], s46 offen sc1")
    if KD_SEP:
        ST.stamp()
        if ST.on: e("s_waitcnt vmcnt(0)")
        ST.stamp(); ST.real(1)
        ST.dump(8)
        A.label("kd_done")
        e("s_endpgm")
        A.kernel_end(name, 256, 102 if ST.on else 60)
        return
    e(f"""
    v_lshlrev_b32 v20, 4, v0
    v_lshrrev_b32 v4, 5, v0
    v_and_b32 v5, 31, v0
    s_lshl_b32 s33, s29, 7
    s_lshl_b32 s34, s31, 5
    s_add_u32 s33, s33, s34
    v_add_u32 v5, s33, v5
    s_mul_i32 s34, s30, 18
    v_add_u32 v4, s34, v4
    v_lshlrev_b32 v21, 15, v4
    v_lshl_add_u32 v21, v5, 4, v21
    s_movk_i32 s35, 1152
    v_mul_lo_u32 v22, v5, s35
    v_lshl_add_u32 v22, v4, 4, v22
    s_lshl_b32 s45, s43, 1
    s_add_u32 s45, s45, s57
    s_lshl_b32 s45, s45, 2
    s_add_u32 s45, s45, {FLAG_OFF}
    v_mov_b32 v23, 1
    v_mov_b32 v24, 0
    s_add_u32 s46, s42, s31
    s_lshl_b32 s47, s46, 5
    s_add_u32 s47, s47, {FLAG_OFF}
    s_mul_i32 s46, s46, {4*9216}
    v_and_b32 v25, 7, v2
    v_lshlrev_b32 v25, 2, v25
    s_waitcnt vmcnt(0)
    v_cmp_eq_u32 vcc, 0, v2
    s_and_saveexec_b64 s[52:53], vcc
    buffer_store_dword v23, v24, s[16:19], s45 offen sc1
    s_mov_b64 exec, s[52:53]
    """)
    ST.stamp()
    e(f"""
    s_cmp_ge_u32 s28, 5
    s_cbranch_scc1 kd_fin
    v_cmp_gt_u32 vcc, 288, v0
    s_and_saveexec_b64 s[52:53], vcc
    s_mov_b32 s54, {9*32768}
    buffer_load_dwordx4 v[28:31], v21, s[20:23], 0 offen
    buffer_load_dwordx4 v[32:35], v21, s[20:23], s54 offen
    s_mov_b32 s55, 0
    """)
    A.label("kd_poll")
    e(f"""
    buffer_load_dword v26, v25, s[16:19], s47 offen sc1
    s_add_u32 s55, s55, 1
    s_waitcnt vmcnt(0)
    v_cmp_ne_u32 vcc, 1, v26
    s_cmp_ge_u32 s55, 0x40000
    s_cbranch_scc1 kd_go
    s_cbranch_vccnz kd_poll
    """)
    A.label("kd_go")
    for sr in range(4):
        e(f"buffer_load_dwordx4 {v(40+8*sr,4)}, v20, s[16:19], s46 offen sc1")
        e(f"s_add_u32 s54, s46, {288*16}")
        e(f"buffer_load_dwordx4 {v(44+8*sr,4)}, v20, s[16:19], s54 offen sc1")
        e(f"s_add_u32 s46, s46, 9216")
    e("s_mov_b32 s40, 0xffff0000")
    for it in range(2):
        for d in range(4):
            e(f"v_lshlrev_b32 v{104+8*it+2*d}, 16, v{28+4*it+d}")
            e(f"v_and_b32 v{105+8*it+2*d}, s40, v{28+4*it+d}")
    for sr in range(4):
        e(f"s_waitcnt vmcnt({6-2*sr})")
        for it in range(2):
            for d in range(4):
                r = 40 + 8 * sr + 4 * it + d
                e(f"v_lshlrev_b32 v120, 16, v{r}")
                e(f"v_and_b32 v121, s40, v{r}")
                e(f"v_pk_add_f32 {v(104+8*it+2*d,2)}, {v(104+8*it+2*d,2)}, v[120:121]")
    for it in range(2):
        for d in range(4):
            e(f"v_cvt_pk_bf16_f32 v{28+4*it+d}, v{104+8*it+2*d}, v{105+8*it+2*d}")
    e("buffer_store_dwordx4 v[28:31], v22, s[48:51], 0 offen")
    e("buffer_store_dwordx4 v[32:35], v22, s[48:51], 0 offen offset:144")
    e("s_mov_b64 exec, s[52:53]")
    A.label("kd_fin")
    if ST.on: e("s_waitcnt vmcnt(0)")
    ST.stamp(); ST.real(1)
    ST.dump(8)
    A.label("kd_done")
    e("s_endpgm")
    A.kernel_end(name, 256, 102 if ST.on else 60)


def k_e(A):
    name = "ke_kernel"
    A.launch(name, 256, 576, 0)
    A.kernel_begin(name)
    e = A.e
    e(f"""
    s_cmp_ge_u32 s2, 256
    s_cbranch_scc1 ke_done
    s_load_dwordx2 s[6:7], s[0:1], {KA_OUT}
    s_load_dwordx2 s[26:27], s[0:1], {KA_WS}
    s_lshr_b32 s29, s2, 4
    s_bfe_u32 s30, s2, 0x20002
    s_and_b32 s31, s2, 3
    v_lshlrev_b32 v20, 4, v0
    v_lshrrev_b32 v4, 5, v0
    v_and_b32 v5, 31, v0
    s_lshl_b32 s33, s29, 7
    s_lshl_b32 s34, s31, 5
    s_add_u32 s33, s33, s34
    v_add_u32 v5, s33, v5
    s_mul_i32 s34, s30, 18
    v_add_u32 v4, s34, v4
    v_lshlrev_b32 v21, 15, v4
    v_lshl_add_u32 v21, v5, 4, v21
    s_movk_i32 s35, 1152
    v_mul_lo_u32 v22, v5, s35
    v_lshl_add_u32 v22, v4, 4, v22
    s_mul_i32 s46, s2, {4*9216}
    s_waitcnt lgkmcnt(0)
    """)
    A.srd_off(16, 26, 27, WS_PART, FLAG_OFF)
    A.srd_off(20, 26, 27, WS_H, S * D * 2)
    A.srd(8, 6, 7, S * D * 2)
    e("buffer_load_dwordx4 v[28:31], v21, s[20:23], 0 offen")
    for sr in range(4):
        e(f"buffer_load_dwordx4 {v(32+4*sr,4)}, v20, s[16:19], s46 offen")
        e(f"s_add_u32 s46, s46, 9216")
    e("s_mov_b32 s40, 0xffff0000")
    e("s_waitcnt vmcnt(4)")
    for d in range(4):
        e(f"v_lshlrev_b32 v{8+2*d}, 16, v{28+d}")
        e(f"v_and_b32 v{9+2*d}, s40, v{28+d}")
    for sr in range(4):
        e(f"s_waitcnt vmcnt({3-sr})")
        for d in range(4):
            r = 32 + 4 * sr + d
            e(f"v_lshlrev_b32 v16, 16, v{r}")
            e(f"v_and_b32 v17, s40, v{r}")
            e(f"v_pk_add_f32 {v(8+2*d,2)}, {v(8+2*d,2)}, v[16:17]")
    for d in range(4):
        e(f"v_cvt_pk_bf16_f32 v{28+d}, v{8+2*d}, v{9+2*d}")
    e("buffer_store_dwordx4 v[28:31], v22, s[8:11], 0 offen")
    A.label("ke_done")
    e("s_endpgm")
    A.kernel_end(name, 48, 48)

HEADER = open("sequential_preLN__ssm_conv_h3__glu_gated_geglu__prompt.s.ref").read().split("; Override launch")[0]

def main():
    A = Asm()
    k_a(A)
    k_b(A)
    k_c(A)
    if not FUSE: k_d(A)
    if KD_SEP: k_e(A)
    A.label("code_end")
    A.e("s_endpgm")
    out = sys.argv[1] if len(sys.argv) > 1 else "k.s"
    open(out, "w").write(A.text(HEADER))

if __name__ == "__main__":
    main()
```

```python
import sys
from asmlib import Asm, v, a, s

S, D, F = 2048, 576, 4608
KA_X, KA_K, KA_V, KA_SK, KA_SSMK, KA_SSMD, KA_BX, KA_WG, KA_WU, KA_WD, KA_OUT, KA_DBG, KA_WS = [8 * i for i in range(13)]
import os
WS_R    = int(os.environ.get("WS_BASE_MB", "0")) << 20
WS_YQ   = WS_R + 576 * 8192
WS_XLN  = WS_YQ + S * D * 2
WS_H    = WS_XLN + S * D * 2
WS_HH   = WS_H + S * D * 2
WS_PART = WS_HH + S * F * 2
WS_XQ   = WS_XLN
WS_ST   = WS_PART + 4 * S * D * 4
WS_ST2  = WS_ST + S * 8
WS_CS   = WS_ST2 + S * 8
WS_WP   = (WS_CS + 12 * F * 4 + 4095) // 4096 * 4096
WS_WDP  = WS_WP + 2 * D * F * 2
WS_END  = WS_WDP + D * F * 2

import os
STAMP = os.environ.get("STAMP", "")
SCH = {"1": " sc1", "0": "", "nt": " nt"}[os.environ.get("SCH", "0")]
CODEPF = int(os.environ.get("CODEPF", "1"))
KC_ROT = int(os.environ.get("KC_ROT", "0"))
FUSE = int(os.environ.get("FUSE", "1"))
FUSE_E = int(os.environ.get("FUSE_E", "1"))
SENT = int(os.environ.get("SENT", "1"))
SENTW = int(os.environ.get("SENTW", "2"))
NP1 = int(os.environ.get("NP1", "3"))
SCP = {"1": " sc1", "0": "", "nt": " nt"}[os.environ.get("SCP", "1")]
KC_MAP = int(os.environ.get("KC_MAP", "1"))
KD_ROT = int(os.environ.get("KD_ROT", "0"))
KD_PRO = int(os.environ.get("KD_PRO", "2"))
KD_SEP = int(os.environ.get("KD_SEP", "1"))
KD_TOUCH = int(os.environ.get("KD_TOUCH", "0"))
KD_TDIST = int(os.environ.get("KD_TDIST", "5"))
WS_STAMP = WS_END + 4096
class Stamps:
    def __init__(self, A, on):
        self.A, self.on, self.n = A, on, 0
    def stamp(self):
        if not self.on or getattr(self, "mute", False): return
        assert self.n < 14
        op = "s_memrealtime" if os.environ.get("RT") else "s_memtime"
        self.A.e(f"{op} s[{72+2*self.n}:{73+2*self.n}]")
        self.n += 1
    def real(self, idx):
        if not self.on: return
        pass
    def dump(self, nwaves, wave_sgpr="s28"):
        if not self.on: return
        e = self.A.e
        e("s_waitcnt vmcnt(0) lgkmcnt(0)")
        self.A.srd_off(60, 26, 27, WS_STAMP, 1 << 20)
        e(f"s_mul_i32 s100, s2, {nwaves}")
        e(f"s_add_u32 s100, s100, {wave_sgpr}")
        e("s_lshl_b32 s100, s100, 7")
        e("v_mov_b32 v1, 0")
        for i in range(16):
            src_ = 72 + 2 * i if i < 14 else (72 if i == 14 else 98)
            e(f"v_mov_b32 v2, s{src_}")
            e(f"buffer_store_dword v2, v1, s[60:63], s100 offen offset:{4*i}")
        e("s_waitcnt vmcnt(0)")

class Cnt:
    def __init__(self, A, name, maxv):
        self.A, self.name, self.maxv = A, name, maxv
        self.q = []
        self.total = 0
    def issue(self, tag):
        self.q.append(tag)
        self.total += 1
    def need(self, tag):
        if tag not in self.q:
            return
        idx = len(self.q) - 1 - self.q[::-1].index(tag)
        n = len(self.q) - 1 - idx
        assert n <= self.maxv, (self.name, n)
        self.A.e(f"s_waitcnt {self.name}({n})")
        self.q = self.q[idx + 1:]
    def drain(self):
        if self.q:
            self.A.e(f"s_waitcnt {self.name}(0)")
            self.q = []

import struct, math
def fbits(x):
    return struct.unpack("<I", struct.pack("<f", x))[0]

def dpp_sum16(A, r):
    for sh in (8, 4, 2, 1):
        A.e("s_nop 1")
        A.e(f"v_add_f32_dpp v{r}, v{r}, v{r} row_ror:{sh} row_mask:0xf bank_mask:0xf")


def emit_w_packer(A, pfx, row0, nrows, fin):
    e = A.e
    nph = nrows // 96
    e(f"""
    s_load_dwordx4 s[4:7], s[0:1], {KA_WG}
    v_lshrrev_b32 v1, 6, v0
    v_and_b32 v2, 63, v0
    v_lshlrev_b32 v3, 4, v2
    v_readfirstlane_b32 s28, v1
    s_cmp_ge_u32 s2, 48
    s_cselect_b32 s30, 1, 0
    s_mul_i32 s31, s30, 48
    s_sub_u32 s31, s2, s31
    s_movk_i32 s34, 5462
    s_movk_i32 s35, 9216
    """)
    for i in range(5):
        e(f"v_add_u32 v4, {256*i}, v0")
        e(f"v_mul_lo_u32 v5, v4, s34")
        e(f"v_lshrrev_b32 v5, 16, v5")
        e(f"v_mul_u32_u24 v6, 12, v5")
        e(f"v_sub_u32 v6, v4, v6")
        e(f"v_mul_lo_u32 v5, v5, s35")
        e(f"v_lshl_add_u32 v{10+i}, v6, 4, v5")
    e(f"""
    s_mul_i32 s32, s31, 192
    s_add_u32 s32, s32, {row0*9216}
    s_lshl_b32 s33, s28, 10
    s_waitcnt lgkmcnt(0)
    s_cmp_eq_u32 s30, 0
    s_cselect_b32 s8, s4, s6
    s_cselect_b32 s9, s5, s7
    s_mov_b32 s10, {D*F*2:#x}
    s_mov_b32 s11, 0x00020000
    """)
    A.srd_off(12, 26, 27, WS_CS, 12 * F * 4)
    A.srd_off(16, 26, 27, WS_WP, 2 * D * F * 2)
    for ph in range(nph):
        lab = A.newlabel(pfx + "_sk")
        e("s_cmp_ge_u32 s28, 2")
        e(f"s_cbranch_scc1 {lab}")
        e(f"s_add_u32 m0, s33, {18432*ph + 4096*4}")
        e("s_nop 0")
        e(f"buffer_load_dwordx4 v14, s[8:11], s32 offen lds")
        A.label(lab)
        for i in range(4):
            e(f"s_add_u32 m0, s33, {18432*ph + 4096*i}")
            e("s_nop 0")
            e(f"buffer_load_dwordx4 v{10+i}, s[8:11], s32 offen lds")
        e(f"s_add_u32 s32, s32, {96*9216}")
    e(f"""
    v_lshrrev_b32 v4, 4, v2
    v_lshlrev_b32 v4, 3, v4
    v_bfe_u32 v5, v2, 2, 2
    v_add_u32 v4, v4, v5
    v_mul_u32_u24 v4, 192, v4
    v_and_b32 v5, 3, v2
    v_lshl_add_u32 v4, v5, 3, v4
    v_mov_b32 v7, 0x3f803f80
    v_lshlrev_b32 v9, 2, v2
    v_cmp_gt_u32 s[46:47], 16, v2
    s_mov_b32 s36, s28
    s_mov_b32 s45, 0
    """)
    assert nph % 2 == 0
    for half in range(nph // 2):
        later = 4 * (nph - 2 * half - 2) + 12 * half
        e(f"s_waitcnt vmcnt({later})" if half == 0 else ("s_waitcnt vmcnt(12)" if os.environ.get("PACKST", "1") == "1" else "s_waitcnt vmcnt(3)"))
        e("s_barrier")
        lab = f"{pfx}_su{half}"
        A.label(lab)
        e(f"""
        s_mul_i32 s38, s36, 43
        s_lshr_b32 s38, s38, 8
        s_mul_i32 s37, s38, 6
        s_sub_u32 s37, s36, s37
        s_lshl_b32 s40, s37, 5
        s_mul_i32 s44, s38, 18432
        s_add_u32 s40, s40, s44
        v_add_u32 v5, s40, v4
        s_mul_i32 s39, s31, 6
        s_add_u32 s39, s39, s37
        """)
        for s_ in range(3):
            e(f"ds_read_b64_tr_b16 {v(16+4*s_,2)}, v5 offset:{32*192*s_}")
            e(f"ds_read_b64_tr_b16 {v(18+4*s_,2)}, v5 offset:{32*192*s_+4*192}")
        e(f"""
        s_mul_i32 s40, s39, 7282
        s_lshr_b32 s40, s40, 16
        s_mul_i32 s41, s40, 9
        s_sub_u32 s41, s39, s41
        s_cmp_lt_u32 s41, {NP1}
        s_cselect_b32 s42, 2, 36
        s_cselect_b32 s43, {2*NP1}, 2
        s_lshl_b32 s43, s43, 10
        s_mul_i32 s42, s42, s41
        s_mul_i32 s40, s40, 324
        s_add_u32 s42, s42, s40
        s_add_u32 s42, s42, s30
        s_lshl_b32 s42, s42, 10
        s_add_u32 s44, s38, {row0//96}
        s_mul_i32 s40, s44, 3
        s_mul_i32 s40, s40, s43
        s_add_u32 s42, s42, s40
        s_lshl_b32 s44, s44, 1
        s_add_u32 s44, s44, s30
        s_mul_i32 s44, s44, {F*4}
        s_lshl_b32 s40, s39, 6
        s_add_u32 s44, s44, s40
        v_mov_b32 v6, 0
        """)
        for s_ in range(3):
            e(f"s_waitcnt lgkmcnt({2*(2-s_)})")
            if os.environ.get("PACKST", "1") == "1": e(f"buffer_store_dwordx4 {v(16+4*s_,4)}, v3, s[16:19], s42 offen{SCP}")
            e("s_add_u32 s42, s42, s43")
            for d in range(4):
                e(f"v_dot2_f32_bf16 v6, v{16+4*s_+d}, v7, v6")
        e("s_nop 2")
        for op in ("v_permlane32_swap_b32", "v_permlane16_swap_b32"):
            e("v_mov_b32 v8, v6")
            e("s_nop 1")
            e(f"{op} v6, v8")
            e("v_add_f32 v6, v6, v8")
        e(f"""
        s_mov_b64 exec, s[46:47]
        buffer_store_dword v6, v9, s[12:15], s44 offen
        s_mov_b64 exec, -1
        s_add_u32 s36, s36, 4
        s_cmp_lt_u32 s36, {12*(half+1)}
        s_cbranch_scc1 {lab}
        """)
    fin()

def k_a(A):
    name = "ka_kernel"
    A.launch(name, 288 + 128 + 96, 256, 36864)
    A.kernel_begin(name)
    e = A.e
    ST = Stamps(A, STAMP == "ka")
    ST.stamp(); ST.real(0)
    if ST.on:
        e("v_lshrrev_b32 v1, 6, v0")
        e("s_nop 0")
        e("v_readfirstlane_b32 s59, v1")
    def fin():
        if not ST.on: return
        n0 = ST.n
        ST.n = 12
        ST.stamp()
        e("s_waitcnt vmcnt(0)")
        ST.stamp(); ST.real(1)
        e("s_mov_b64 exec, -1")
        ST.dump(4, "s59")
        ST.n = n0
    e(f"""
    s_cmp_ge_u32 s2, {288+128+96}
    s_cbranch_scc1 ka_done
    s_cmp_ge_u32 s2, {288+128}
    s_cbranch_scc1 ka_pack
    s_load_dwordx4 s[4:7], s[0:1], {KA_K}
    s_load_dwordx2 s[24:25], s[0:1], {KA_SK}
    s_load_dwordx2 s[26:27], s[0:1], {KA_WS}
    s_load_dwordx2 s[38:39], s[0:1], {KA_X}
    s_cmp_ge_u32 s2, 288
    s_cbranch_scc1 ka_stats
    s_and_b32 s28, s2, 31
    s_lshr_b32 s29, s2, 5
    s_lshl_b32 s30, s28, 6
    v_lshrrev_b32 v1, 3, v0
    v_and_b32 v2, 7, v0
    v_lshlrev_b32 v3, 1, v1
    v_add_u32 v3, s30, v3
    s_movk_i32 s31, 1152
    v_mul_lo_u32 v4, v3, s31
    s_lshl_b32 s32, s29, 7
    v_lshlrev_b32 v5, 4, v2
    v_add3_u32 v4, v4, v5, s32
    """)
    for r in range(6):
        e(f"v_add_u32 v{10+r}, {(r-4)*1152 & 0xffffffff:#x}, v4")
    e(f"""
    s_lshl_b32 s33, s29, 9
    v_lshlrev_b32 v6, 6, v2
    v_add_u32 v6, s33, v6
    s_waitcnt lgkmcnt(0)
    """)
    A.srd(8, 4, 5, S * D * 2)
    A.srd(12, 6, 7, S * D * 2)
    A.srd(16, 24, 25, D * 8)
    A.srd_off(20, 26, 27, WS_R, 576 * 8192)
    A.srd_off(40, 26, 27, WS_PART + 4 * S * D * 2, 8192 + 1024 + 32768)
    e("""
    s_lshl_b32 s36, s2, 10
    v_lshlrev_b32 v8, 2, v0
    v_mov_b32 v9, 0
    buffer_store_dword v9, v8, s[40:43], s36 offen
    """)
    for r in range(6):
        e(f"buffer_load_dwordx4 {v(16+4*r,4)}, v{10+r}, s[8:11], 0 offen")
    for r in range(3):
        e(f"buffer_load_dwordx4 {v(40+4*r,4)}, v{13+r}, s[12:15], 0 offen")
    for r in range(4):
        e(f"buffer_load_dwordx4 {v(52+4*r,4)}, v6, s[16:19], 0 offen offset:{16*r}")
    e(f"""
    v_sub_u32 v7, 31, v1
    v_lshlrev_b32 v8, 2, v2
    v_xor_b32 v7, v7, v8
    v_lshlrev_b32 v7, 2, v7
    v_lshl_add_u32 v7, v2, 10, v7
    s_mov_b32 s34, 0xffff0000
    """)
    ST.stamp()
    e("s_waitcnt vmcnt(0)")
    ST.stamp()
    e(f"""
    """)
    for ch in range(8):
        d, hi = ch >> 1, ch & 1
        def unp(dst, src):
            if hi: e(f"v_and_b32 v{dst}, s34, v{src}")
            else:  e(f"v_lshlrev_b32 v{dst}, 16, v{src}")
        for r in range(6): unp(70 + r, 16 + 4 * r + d)
        for r in range(3): unp(76 + r, 40 + 4 * r + d)
        sk = 52 + 2 * ch
        e(f"v_lshlrev_b32 v80, 16, v{sk}")
        e(f"v_and_b32 v81, s34, v{sk}")
        e(f"v_lshlrev_b32 v82, 16, v{sk+1}")
        e(f"v_and_b32 v83, s34, v{sk+1}")
        for r in range(3):
            e(f"v_mul_f32 v{84+r}, v{70+r}, v83")
        for r in range(3):
            e(f"v_fmac_f32 v{84+r}, v{71+r}, v82")
        for r in range(3):
            e(f"v_fmac_f32 v{84+r}, v{72+r}, v81")
        for r in range(3):
            e(f"v_fmac_f32 v{84+r}, v{73+r}, v80")
        for r in range(3):
            e(f"v_mul_f32 v{84+r}, v{84+r}, v{76+r}")
        e(f"v_cvt_pk_bf16_f32 v{88+2*(ch&1)}, v85, v84")
        e(f"v_cvt_pk_bf16_f32 v{89+2*(ch&1)}, v86, v85")
        e(f"ds_write_b32 v7, v{88+2*(ch&1)} offset:{ch*128}")
        e(f"ds_write_b32 v7, v{89+2*(ch&1)} offset:{8192+ch*128}")
    ST.stamp()
    e(f"""
    v_lshrrev_b32 v8, 6, v0
    v_xor_b32 v9, v2, v8
    v_lshlrev_b32 v9, 4, v9
    v_lshl_add_u32 v9, v1, 7, v9
    v_xor_b32 v10, 64, v9
    s_lshl_b32 s35, s29, 19
    s_sub_u32 s36, 1984, s30
    s_lshl_b32 s36, s36, 1
    s_add_u32 s35, s35, s36
    v_lshlrev_b32 v11, 13, v1
    v_add3_u32 v11, v11, v5, s35
    v_add_u32 v12, 0x40000, v11
    s_waitcnt lgkmcnt(0)
    s_barrier
    ds_read_b128 v[16:19], v9
    ds_read_b128 v[20:23], v10 offset:4096
    ds_read_b128 v[24:27], v9 offset:8192
    ds_read_b128 v[28:31], v10 offset:12288
    s_movk_i32 s37, 0x1000
    s_waitcnt lgkmcnt(3)
    buffer_store_dwordx4 v[16:19], v11, s[20:23], 0 offen{SCP}
    s_waitcnt lgkmcnt(2)
    buffer_store_dwordx4 v[20:23], v12, s[20:23], 0 offen{SCP}
    s_waitcnt lgkmcnt(1)
    buffer_store_dwordx4 v[24:27], v11, s[20:23], s37 offen{SCP}
    s_waitcnt lgkmcnt(0)
    buffer_store_dwordx4 v[28:31], v12, s[20:23], s37 offen{SCP}
    """)
    fin()
    e("s_endpgm")
    A.label("ka_stats")
    if CODEPF:
        e("s_getpc_b64 s[12:13]")
        A.label("ka_pc")
        e("""
        s_sub_u32 s12, s12, ka_pc-ka_kernel
        s_subb_u32 s13, s13, 0
        s_mov_b32 s14, code_end-ka_kernel
        s_mov_b32 s15, 0x00020000
        s_sub_u32 s28, s2, 288
        s_lshl_b32 s28, s28, 10
        v_lshlrev_b32 v6, 2, v0
        buffer_load_dword v7, v6, s[12:15], s28 offen
        """)
    e(f"""
    s_sub_u32 s28, s2, 288
    s_lshl_b32 s28, s28, 4
    v_lshrrev_b32 v1, 4, v0
    v_add_u32 v1, s28, v1
    v_and_b32 v2, 15, v0
    s_movk_i32 s29, 1152
    v_mul_lo_u32 v3, v1, s29
    v_lshl_add_u32 v3, v2, 3, v3
    v_lshlrev_b32 v4, 3, v1
    s_waitcnt lgkmcnt(0)
    """)
    A.srd(40, 38, 39, S * D * 2)
    A.srd_off(44, 26, 27, WS_ST, 2 * S * 8)
    XR, XF = 16, 34
    for i in range(9):
        e(f"buffer_load_dwordx2 {v(XR+2*i,2)}, v3, s[40:43], 0 offen offset:{128*i}")
    A.srd_off(8, 26, 27, WS_XQ, S * D * 2)
    e("v_lshl_add_u32 v5, v2, 14, v4")
    e("s_mov_b32 s30, 0xffff0000")
    e(f"s_mov_b32 s31, {fbits(1.0/576):#x}")
    e(f"s_mov_b32 s32, {fbits(1e-5):#x}")
    e("s_mov_b32 s33, 0")
    e("s_waitcnt vmcnt(0)")
    for i in range(9):
        e(f"buffer_store_dwordx2 {v(XR+2*i,2)}, v5, s[8:11], s33 offen")
        e(f"s_add_u32 s33, s33, {16*16384}")
    for d in range(18):
        e(f"v_lshlrev_b32 v{XF+2*d}, 16, v{XR+d}")
        e(f"v_and_b32 v{XF+2*d+1}, s30, v{XR+d}")
    e(f"v_pk_add_f32 v[8:9], {v(XF,2)}, {v(XF+2,2)}")
    e(f"v_pk_add_f32 v[10:11], {v(XF+4,2)}, {v(XF+6,2)}")
    for i in range(2, 9):
        e(f"v_pk_add_f32 v[8:9], v[8:9], {v(XF+4*i,2)}")
        e(f"v_pk_add_f32 v[10:11], v[10:11], {v(XF+4*i+2,2)}")
    e("v_pk_add_f32 v[8:9], v[8:9], v[10:11]")
    e("v_add_f32 v8, v8, v9")
    dpp_sum16(A, 8)
    e("v_mul_f32 v8, s31, v8")
    for i in range(18):
        e(f"v_pk_add_f32 {v(XF+2*i,2)}, {v(XF+2*i,2)}, v[8:9] op_sel_hi:[1,0] neg_lo:[0,1] neg_hi:[0,1]")
    e(f"v_pk_mul_f32 v[10:11], {v(XF,2)}, {v(XF,2)}")
    e(f"v_pk_mul_f32 v[12:13], {v(XF+2,2)}, {v(XF+2,2)}")
    for i in range(1, 9):
        e(f"v_pk_fma_f32 v[10:11], {v(XF+4*i,2)}, {v(XF+4*i,2)}, v[10:11]")
        e(f"v_pk_fma_f32 v[12:13], {v(XF+4*i+2,2)}, {v(XF+4*i+2,2)}, v[12:13]")
    e("v_pk_add_f32 v[10:11], v[10:11], v[12:13]")
    e("v_add_f32 v9, v10, v11")
    dpp_sum16(A, 9)
    e("v_mov_b32 v10, s32")
    e("v_fmac_f32 v10, s31, v9")
    e("v_rsq_f32 v9, v10")
    e("v_cmp_eq_u32 vcc, 0, v2")
    e("s_and_saveexec_b64 s[34:35], vcc")
    e("buffer_store_dwordx2 v[8:9], v4, s[44:47], 0 offen")
    e("v_mov_b32 v10, -1")
    e("v_mov_b32 v11, -1")
    e(f"s_movk_i32 s33, {S*8}")
    e("buffer_store_dwordx2 v[10:11], v4, s[44:47], s33 offen")
    fin()
    e("s_endpgm")
    A.label("ka_pack")
    e(f"s_load_dwordx2 s[26:27], s[0:1], {KA_WS}")
    if ST.on: e("s_mov_b32 s58, s2")
    e(f"s_sub_u32 s2, s2, {288+128}")
    def fin2():
        if ST.on: e("s_mov_b32 s2, s58")
        fin()
    emit_w_packer(A, "ka", 0, 192, fin2)
    A.label("ka_done")
    e("s_endpgm")
    A.kernel_end(name, 100, 102 if ST.on else 48)

KB_CH = 25920
KB_KC = 4160
KB_RO = 16640
KB_RC = 4640
def k_b(A):
    name = "kb_kernel"
    A.launch(name, 240, 256, 4 * KB_CH)
    A.kernel_begin(name)
    e = A.e
    ST = Stamps(A, STAMP == "kb")
    ST.stamp(); ST.real(0)
    if ST.on:
        e("v_lshrrev_b32 v1, 6, v0")
        e("s_nop 0")
        e("v_readfirstlane_b32 s59, v1")
    def fin():
        if not ST.on: return
        n0 = ST.n
        ST.n = 12
        ST.stamp()
        e("s_waitcnt vmcnt(0)")
        ST.stamp(); ST.real(1)
        e("s_mov_b64 exec, -1")
        ST.dump(4, "s59")
        ST.n = n0
    e(f"""
    s_cmp_ge_u32 s2, 240
    s_cbranch_scc1 kb_done
    s_load_dwordx2 s[26:27], s[0:1], {KA_WS}
    s_cmp_ge_u32 s2, 144
    s_cbranch_scc1 kb_side
    s_load_dwordx4 s[4:7], s[0:1], {KA_SSMK}
    v_lshrrev_b32 v1, 6, v0
    v_and_b32 v2, 63, v0
    s_nop 0
    v_readfirstlane_b32 s28, v1
    s_nop 3
    s_lshl_b32 s29, s2, 2
    s_add_u32 s29, s29, s28
    s_mul_i32 s30, s28, {KB_CH}
    s_lshl_b32 s31, s29, 12
    s_lshl_b32 s32, s29, 13
    s_add_u32 s32, s32, {WS_R}
    s_lshl_b32 s33, s2, 14
    s_add_u32 s33, s33, {WS_XQ}
    s_lshr_b32 s34, s29, 1
    s_lshl_b32 s34, s34, 2
    v_lshlrev_b32 v3, 4, v2
    s_waitcnt lgkmcnt(0)
    """)
    A.srd_off(8, 4, 5, "s31", 4096)
    A.srd_off(12, 26, 27, "s32", 8192)
    A.srd_off(16, 26, 27, "s33", 16384)
    A.srd_off(20, 26, 27, WS_ST, S * 8)
    e("s_lshr_b32 s33, s2, 1")
    e("s_lshl_b32 s33, s33, 15")
    e(f"s_add_u32 s33, s33, {WS_H}")
    A.srd_off(44, 26, 27, "s33", 32768)
    e(f"""
    s_add_u32 s6, s6, s34
    s_addc_u32 s7, s7, 0
    s_load_dword s35, s[6:7], 0
    """)
    vm = Cnt(A, "vmcnt", 63)
    e(f"""
    v_lshrrev_b32 v4, 4, v2
    v_and_b32 v5, 15, v2
    v_add_u32 v6, v4, v5
    v_add_u32 v6, -15, v6
    v_lshlrev_b32 v6, 2, v6
    buffer_load_dword v7, v6, s[8:11], 0 offen
    """)
    vm.issue("front")
    for p in range(2):
        e(f"s_add_u32 s36, s30, {KB_RO + p * KB_RC}")
        e(f"s_mov_b32 m0, s36")
        e(f"s_movk_i32 s37, {p * 4096}")
        for b in range(4):
            e(f"buffer_load_dwordx4 v3, s[12:15], s37 offen offset:{b*1024} lds")
            vm.issue("R")
    late = []
    def kdma(b, c):
        e(f"s_add_u32 m0, s30, {c * KB_KC + 64}")
        e(f"s_movk_i32 s37, {4 * c + 4}")
        e(f"buffer_load_dwordx4 v3, s[8:11], s37 offen offset:{b*1024} lds")
        vm.issue(f"K{b}")
    for b in range(4):
        for c in range(4):
            if b <= 1: kdma(b, c)
            else: late.append((f"K{b}", lambda b=b, c=c: kdma(b, c)))
    e("v_lshlrev_b32 v18, 4, v0")
    def xsld(r):
        e(f"s_movk_i32 s37, {4096*r}")
        e(f"buffer_load_dwordx4 {v(80+8*r,4)}, v18, s[16:19], s37 offen")
        e(f"buffer_load_dwordx4 {v(84+8*r,4)}, v18, s[20:23], s37 offen")
        vm.issue("xs"); vm.issue("xs")
    for r in range(4): late.append(("xs", lambda r=r: xsld(r)))
    e(f"""
    s_movk_i32 s38, {KB_KC}
    v_mul_lo_u32 v8, v4, s38
    v_lshl_add_u32 v8, v5, 2, v8
    v_add_u32 v8, s30, v8
    v_lshrrev_b32 v9, 5, v2
    s_movk_i32 s38, {KB_RC}
    v_mul_lo_u32 v9, v9, s38
    v_and_b32 v10, 31, v2
    v_lshl_add_u32 v9, v10, 4, v9
    s_add_u32 s39, s30, {KB_RO + 4096}
    v_add_u32 v9, s39, v9
    v_mov_b32 v12, 0
    v_mov_b32 v13, 0
    v_mov_b32 v14, 0
    v_mov_b32 v15, 0
    ds_write_b128 v9, v[12:15]
    """)
    e(f"""
    v_and_b32 v10, 3, v5
    s_movk_i32 s38, {KB_KC}
    v_mul_lo_u32 v10, v10, s38
    v_lshrrev_b32 v11, 2, v5
    v_add_u32 v11, v11, v4
    v_lshl_add_u32 v10, v11, 4, v10
    v_add_u32 v10, s30, v10
    """)
    e(f"""
    v_and_b32 v11, 1, v5
    s_movk_i32 s38, {KB_RC}
    v_mul_lo_u32 v11, v11, s38
    v_lshrrev_b32 v16, 1, v5
    v_lshlrev_b32 v16, 2, v16
    v_sub_u32 v16, v4, v16
    v_add_u32 v16, 28, v16
    v_lshl_add_u32 v11, v16, 4, v11
    s_add_u32 s39, s30, {KB_RO}
    v_add_u32 v11, s39, v11
    """)
    e(f"""
    s_waitcnt lgkmcnt(0)
    s_and_b32 s40, s29, 1
    s_lshl_b32 s40, s40, 4
    s_lshr_b32 s35, s35, s40
    s_and_b32 s35, s35, 0xffff
    v_lshl_add_u32 v16, v4, 2, v5
    v_mov_b32 v17, s35
    """)
    for d in range(4):
        e(f"v_cmp_eq_u32 vcc, {15-d}, v16")
        e("s_nop 1")
        e(f"v_cndmask_b32 v{20+d}, 0, v17, vcc")
    ST.stamp()
    vm.need("front")
    e("ds_write_b32 v8, v7")
    vm.need("K0")
    e("s_waitcnt lgkmcnt(0)")
    ST.stamp()
    ACC = 32
    BR = 64
    NB = 4
    AR = 112
    lg = Cnt(A, "lgkmcnt", 15)
    groups = []
    for ph in range(2):
        for r in range(8):
            groups.append([r + 8 * u for u in range(4 * ph, 4 * ph + 4)])
    mf = []
    for g, il in enumerate(groups):
        for i in il:
            for j in range(7, (i >> 3) - 1, -1):
                mf.append((g, i, j))
    def areg(g, q):
        return AR + 32 * (g & 1) + 4 * ((q + 7) >> 3)
    reads = []
    seen = set()
    bidx = {}
    for x, (g, i, j) in enumerate(mf):
        if ("B", i) not in seen:
            seen.add(("B", i)); bidx[i] = len(bidx); reads.append((("B", i), x))
        t = ("A", g, 8 * j - i)
        if t not in seen:
            seen.add(t); reads.append((t, x))
    last_use = {}
    for x, (g, i, j) in enumerate(mf):
        last_use[("B", i)] = x; last_use[("G", g)] = x
    border = sorted(bidx, key=lambda i: bidx[i])
    rp = 0
    LOOK = 14
    def can_issue(tag, x):
        if tag[0] == "B":
            k = bidx[tag[1]]
            return k < NB or last_use[("B", border[k - NB])] < x
        g = tag[1]
        return g < 2 or last_use[("G", g - 2)] < x
    def issue_read(tag):
        if tag[0] == "B":
            idx = tag[1]
            blk = min(3, max(0, (4 * idx + 6 - 4) // 64))
            while any(t == f"K{blk}" for t, _ in late): late.pop(0)[1]()
            vm.need(f"K{blk}")
            e(f"ds_read_b128 {v(BR + 4 * (bidx[idx] % NB), 4)}, v10 offset:{64 * idx}")
        else:
            e(f"ds_read_b128 {v(areg(tag[1], tag[2]), 4)}, v11 offset:{64 * (56 - tag[2])}")
        lg.issue(tag)
    started = set()
    while rp < 9:
        issue_read(reads[rp][0]); rp += 1
    for x, (g, i, j) in enumerate(mf):
        if j == 7 and i in (2, 4, 32, 36): ST.stamp()
        while rp < len(reads) and reads[rp][1] <= x:
            issue_read(reads[rp][0]); rp += 1
        lg.need(("B", i)); lg.need(("A", g, 8 * j - i))
        c = v(ACC + 4 * j, 4)
        aq = v(areg(g, 8 * j - i), 4)
        if j not in started:
            started.add(j)
            e(f"v_mfma_f32_16x16x32_bf16 {c}, {aq}, v[20:23], 0")
        e(f"v_mfma_f32_16x16x32_bf16 {c}, {aq}, {v(BR+4*(bidx[i]%NB),4)}, {c}")
        if rp < len(reads) and reads[rp][1] <= x + LOOK and len(lg.q) < 14 and can_issue(reads[rp][0], x + 1):
            issue_read(reads[rp][0]); rp += 1
        elif late and x % 4 == 3: late.pop(0)[1]()
    assert rp == len(reads) and not late
    ST.stamp()
    e(f"""
    v_lshlrev_b32 v16, 7, v4
    v_lshl_add_u32 v16, v5, 2, v16
    v_add_u32 v16, s30, v16
    s_nop 7
    """)
    for j in range(8):
        c = ACC + 4 * j
        e(f"v_cvt_pk_bf16_f32 v{c}, v{c}, v{c+1}")
        e(f"v_cvt_pk_bf16_f32 v{c+1}, v{c+2}, v{c+3}")
        e(f"ds_write_b32 v16, v{c} offset:{512*j}")
        e(f"ds_write_b32 v16, v{c+1} offset:{512*j+64}")
    e(f"""
    v_lshlrev_b32 v17, 2, v0
    v_lshlrev_b32 v18, 5, v0
    s_and_b32 s40, s2, 1
    s_lshl_b32 s40, s40, 3
    v_add_u32 v18, s40, v18
    s_mov_b32 s41, 0xffff0000
    v_add_u32 v19, {2*KB_CH}, v17
    s_waitcnt lgkmcnt(0)
    s_barrier
    """)
    ST.stamp()
    for r in range(4):
        for ch in range(4):
            base = "v17" if ch < 2 else "v19"
            e(f"ds_read_b32 v{64+4*r+ch}, {base} offset:{(ch&1)*KB_CH + 1024*r}")
    e("s_waitcnt vmcnt(0)")
    for r in range(4):
        e(f"s_waitcnt lgkmcnt({12-4*r})")
        Y = 64 + 4 * r; X = 80 + 8 * r; M = 84 + 8 * r
        for tq in range(2):
            for d in range(2):
                e(f"v_lshlrev_b32 v{32+2*d}, 16, v{X+2*tq+d}")
                e(f"v_and_b32 v{33+2*d}, s41, v{X+2*tq+d}")
            for ch in range(4):
                if tq == 0: e(f"v_lshlrev_b32 v{36+ch}, 16, v{Y+ch}")
                else: e(f"v_and_b32 v{36+ch}, s41, v{Y+ch}")
            mp = v(M + 2 * tq, 2)
            for p in range(2):
                e(f"v_pk_mul_f32 {v(36+2*p,2)}, {v(36+2*p,2)}, {mp} op_sel:[0,1] op_sel_hi:[1,1]")
                e(f"v_pk_add_f32 {v(40+2*p,2)}, {v(32+2*p,2)}, {mp} op_sel_hi:[1,0] neg_lo:[0,1] neg_hi:[0,1]")
            for p in range(2):
                e(f"v_pk_fma_f32 {v(32+2*p,2)}, {v(40+2*p,2)}, {v(36+2*p,2)}, {v(32+2*p,2)}")
            O = 44 + 4 * (r & 1) + 2 * tq
            e(f"v_cvt_pk_bf16_f32 v{O}, v32, v33")
            e(f"v_cvt_pk_bf16_f32 v{O+1}, v34, v35")
            e(f"s_movk_i32 s37, {8192*r}")
            e(f"buffer_store_dwordx2 {v(O,2)}, v18, s[44:47], s37 offen offset:{16*tq}{SCH}")
    fin()
    e("s_endpgm")
    A.label("kb_side")
    if ST.on: e("s_mov_b32 s58, s2")
    e("s_sub_u32 s2, s2, 144")
    def fin2():
        if ST.on: e("s_mov_b32 s2, s58")
        fin()
    emit_w_packer(A, "kb", 192, 384, fin2)
    A.label("kb_done")
    e("s_endpgm")
    A.kernel_end(name, 176, 102 if ST.on else 48)

def k_ln(A):
    name = "kl_kernel"
    A.launch(name, 256, 128, 0)
    A.kernel_begin(name)
    e = A.e
    e(f"""
    s_cmp_ge_u32 s2, 256
    s_cbranch_scc1 kl_done
    s_load_dwordx2 s[4:5], s[0:1], {KA_X}
    s_load_dwordx2 s[26:27], s[0:1], {KA_WS}
    v_lshrrev_b32 v1, 4, v0
    v_and_b32 v2, 15, v0
    s_lshl_b32 s28, s2, 3
    v_add_u32 v1, s28, v1
    s_movk_i32 s29, 1152
    v_mul_lo_u32 v3, v1, s29
    v_lshl_add_u32 v3, v2, 3, v3
    v_lshlrev_b32 v4, 14, v2
    v_lshl_add_u32 v4, v1, 3, v4
    v_lshrrev_b32 v5, 1, v2
    v_lshlrev_b32 v5, 15, v5
    v_lshl_add_u32 v5, v1, 4, v5
    v_and_b32 v6, 1, v2
    v_lshl_add_u32 v5, v6, 3, v5
    s_waitcnt lgkmcnt(0)
    """)
    A.srd(8, 4, 5, S * D * 2)
    A.srd_off(12, 26, 27, WS_YQ, S * D * 2)
    A.srd_off(16, 26, 27, WS_XLN, S * D * 2)
    A.srd_off(20, 26, 27, WS_H, S * D * 2)
    XR, YR, XF = 16, 34, 52
    A.srd_off(44, 26, 27, WS_PART + 4 * S * D * 2, 8192)
    e("""
    s_lshl_b32 s43, s2, 9
    v_lshlrev_b32 v7, 2, v0
    v_add_u32 v7, s43, v7
    v_mov_b32 v8, 0
    buffer_store_dword v8, v7, s[44:47], 0 offen
    """)
    for i in range(9):
        e(f"buffer_load_dwordx2 {v(XR+2*i,2)}, v3, s[8:11], 0 offen offset:{128*i}")
    for i in range(9):
        e(f"s_mov_b32 s{30+i}, {i*262144:#x}")
    for i in range(9):
        e(f"buffer_load_dwordx2 {v(YR+2*i,2)}, v4, s[12:15], s{30+i} offen")
    e("s_mov_b32 s40, 0xffff0000")
    e(f"s_mov_b32 s41, {fbits(1.0/576):#x}")
    e(f"s_mov_b32 s42, {fbits(1e-5):#x}")
    e("s_waitcnt vmcnt(9)")
    def unpack(dst, src):
        for d in range(18):
            e(f"v_lshlrev_b32 v{dst+2*d}, 16, v{src+d}")
            e(f"v_and_b32 v{dst+2*d+1}, s40, v{src+d}")
    def stats():
        for k in range(4):
            e(f"v_add_f32 v{8+k}, v{XF+k}, v{XF+4+k}")
        for i in range(2, 9):
            for k in range(4):
                e(f"v_add_f32 v{8+k}, v{8+k}, v{XF+4*i+k}")
        e("v_add_f32 v8, v8, v9")
        e("v_add_f32 v10, v10, v11")
        e("v_add_f32 v8, v8, v10")
        dpp_sum16(A, 8)
        e("v_mul_f32 v8, s41, v8")
        for i in range(36):
            e(f"v_sub_f32 v{XF+i}, v{XF+i}, v8")
        for k in range(4):
            e(f"v_mul_f32 v{9+k}, v{XF+k}, v{XF+k}")
        for i in range(1, 9):
            for k in range(4):
                e(f"v_fmac_f32 v{9+k}, v{XF+4*i+k}, v{XF+4*i+k}")
        e("v_add_f32 v9, v9, v10")
        e("v_add_f32 v11, v11, v12")
        e("v_add_f32 v9, v9, v11")
        dpp_sum16(A, 9)
        e("v_mov_b32 v10, s42")
        e("v_fmac_f32 v10, s41, v9")
        e("v_rsq_f32 v9, v10")
        e("s_nop 0")
    unpack(XF, XR)
    stats()
    e("s_waitcnt vmcnt(0)")
    for d in range(18):
        e(f"v_lshlrev_b32 v10, 16, v{YR+d}")
        e(f"v_and_b32 v11, s40, v{YR+d}")
        e(f"v_fma_f32 v10, v10, v9, 1.0")
        e(f"v_fma_f32 v11, v11, v9, 1.0")
        e(f"v_fma_f32 v10, v{XF+2*d}, v10, v8")
        e(f"v_fma_f32 v11, v{XF+2*d+1}, v11, v8")
        e(f"v_cvt_pk_bf16_f32 v{XR+d}, v10, v11")
    for i in range(9):
        e(f"buffer_store_dwordx2 {v(XR+2*i,2)}, v5, s[20:23], s{30+i} offen")
    unpack(XF, XR)
    stats()
    for d in range(18):
        e(f"v_mul_f32 v10, v{XF+2*d}, v9")
        e(f"v_mul_f32 v11, v{XF+2*d+1}, v9")
        e(f"v_cvt_pk_bf16_f32 v{YR+d}, v10, v11")
    for i in range(9):
        e(f"buffer_store_dwordx2 {v(YR+2*i,2)}, v5, s[16:19], s{30+i} offen")
    A.label("kl_done")
    e("s_endpgm")
    A.kernel_end(name, 88, 48)


def emit_piece_voffsets(A, vdst, n, vP0, row_stride, tmp=(4, 5, 6, 7, 8)):
    e = A.e
    t0, t1, t2, t3, t4 = tmp
    e("s_movk_i32 s34, 3641")
    e(f"s_movk_i32 s35, {row_stride}")
    for i in range(n):
        e(f"v_add_u32 v{t0}, {256*i}, v{vP0}")
        e(f"v_mul_lo_u32 v{t1}, v{t0}, s34")
        e(f"v_lshrrev_b32 v{t1}, 16, v{t1}")
        e(f"v_mul_u32_u24 v{t2}, 18, v{t1}")
        e(f"v_sub_u32 v{t2}, v{t0}, v{t2}")
        e(f"v_and_b32 v{t3}, 0xfffffff3, v{t1}")
        e(f"v_and_b32 v{t4}, 4, v{t1}")
        e(f"v_lshl_or_b32 v{t3}, v{t4}, 1, v{t3}")
        e(f"v_and_b32 v{t4}, 8, v{t1}")
        e(f"v_lshrrev_b32 v{t4}, 1, v{t4}")
        e(f"v_or_b32 v{t3}, v{t3}, v{t4}")
        e(f"v_mul_lo_u32 v{t3}, v{t3}, s35")
        e(f"v_lshl_add_u32 v{vdst+i}, v{t2}, 4, v{t3}")

def emit_tr_base(A, vdst, vlane, stage, nstage):
    e = A.e
    e(f"""
    v_lshrrev_b32 v6, 5, v{vlane}
    v_lshlrev_b32 v6, 4, v6
    v_bfe_u32 v7, v{vlane}, 4, 1
    v_lshl_add_u32 v6, v7, 2, v6
    v_bfe_u32 v7, v{vlane}, 2, 2
    v_add_u32 v6, v6, v7
    v_mul_u32_u24 v6, 288, v6
    v_and_b32 v7, 3, v{vlane}
    v_lshl_add_u32 v{vdst}, v7, 3, v6
    """)
    for sidx in range(1, nstage):
        e(f"v_add_u32 v{vdst+sidx}, {sidx*stage}, v{vdst}")

KC_UP = 18432
KC_STAGE = 36864
SC1 = " sc1" if os.environ.get("SC1", "1") == "1" else ""
SC1C = {"1": " sc1", "0": "", "nt": " nt", "sc0": " sc0", "sc01": " sc0 sc1"}[os.environ.get("SC1C", "1")]

def emit_d_tail(A, ACC, srd, s_tt, s_nt, s_ks, s_r, s_h):
    e = A.e
    l0, l1 = A.newlabel("kd_h0"), A.newlabel("kd_hj")
    e(f"""
    s_mul_i32 s33, s28, 9216
    v_lshlrev_b32 v3, 4, v2
    v_add_u32 v4, s33, v3
    s_xor_b32 s34, s28, 4
    s_mul_i32 s34, s34, 9216
    v_add_u32 v5, s34, v3
    s_barrier
    s_cmp_eq_u32 s{s_h}, 0
    s_cbranch_scc1 {l0}
    """)
    for j in range(9):
        e(f"ds_write_b128 v4, {v(ACC+4*j,4)} offset:{1024*j}")
    for j in range(9):
        for r in range(4):
            e(f"v_mov_b32 v{ACC+4*j+r}, v{ACC+36+4*j+r}")
    e(f"s_branch {l1}")
    A.label(l0)
    for j in range(9):
        e(f"ds_write_b128 v4, {v(ACC+36+4*j,4)} offset:{1024*j}")
    A.label(l1)
    e("s_waitcnt lgkmcnt(0)")
    e("s_barrier")
    for j in range(9):
        e(f"ds_read_b128 {v(40+4*j,4)}, v5 offset:{1024*j}")
    e(f"""
    s_lshl_b32 s42, s{s_tt}, 2
    s_add_u32 s42, s42, s{s_nt}
    s_lshl_b32 s42, s42, 2
    s_add_u32 s43, s42, s{s_r}
    s_lshl_b32 s43, s43, 2
    s_add_u32 s43, s43, s{s_ks}
    s_mul_i32 s44, s43, 9216
    s_lshl_b32 s33, s{s_h}, 8
    s_add_u32 s44, s44, s33
    v_and_b32 v6, 15, v2
    v_lshlrev_b32 v6, 4, v6
    v_bfe_u32 v7, v2, 4, 1
    v_lshl_add_u32 v8, v7, 10, v6
    v_lshrrev_b32 v24, 5, v2
    v_lshl_add_u32 v8, v24, 9, v8
    v_lshl_add_u32 v6, v24, 9, v6
    v_lshl_add_u32 v6, v7, 3, v6
    s_add_u32 s45, s44, 4096
    s_add_u32 s46, s44, 8192
    """)
    for j in range(9):
        e(f"s_waitcnt lgkmcnt({8-j})")
        e(f"v_pk_add_f32 {v(ACC+4*j,2)}, {v(ACC+4*j,2)}, {v(40+4*j,2)}")
        e(f"v_pk_add_f32 {v(ACC+4*j+2,2)}, {v(ACC+4*j+2,2)}, {v(40+4*j+2,2)}")
        O = 80 + 2 * j
        e(f"v_cvt_pk_bf16_f32 v{O}, v{ACC+4*j}, v{ACC+4*j+1}")
        e(f"v_cvt_pk_bf16_f32 v{O+1}, v{ACC+4*j+2}, v{ACC+4*j+3}")
        if j >= 2 and j % 2 == 0:
            jp = j // 2 - 1
            P_ = 80 + 4 * jp
            e(f"v_permlane16_swap_b32 v{P_}, v{P_+2}")
            e(f"v_permlane16_swap_b32 v{P_+1}, v{P_+3}")
            e(f"buffer_store_dwordx4 {v(P_,4)}, v8, s[{srd}:{srd+3}], s{44+jp//2} offen offset:{2048*(jp%2)} sc1")
    e(f"buffer_store_dwordx2 v[96:97], v6, s[{srd}:{srd+3}], s46 offen sc1")

FLAG_OFF = 4 * S * D * 2
def k_c(A):
    name = "kc_kernel"
    CS_L = 4 * KC_STAGE
    A.launch(name, 256, 512, 4 * KC_STAGE + 2048 + 8192)
    A.kernel_begin(name)
    e = A.e
    XR = 112
    ACC = 64
    WR = 44
    NW = 5
    T, O, CS = 24, 32, 36
    K = 16
    PK = int(os.environ.get("KC_PK", "0"))
    ST = Stamps(A, STAMP in ("kc", "kd2"))
    ST.stamp(); ST.real(0)
    ST.mute = STAMP == "kd2"
    e(f"""
    s_cmp_ge_u32 s2, 256
    s_cbranch_scc1 kc_done
    s_load_dwordx2 s[26:27], s[0:1], {KA_WS}
    s_load_dwordx2 s[4:5], s[0:1], {KA_WD}
    v_lshrrev_b32 v1, 6, v0
    v_and_b32 v2, 63, v0
    v_lshlrev_b32 v3, 4, v2
    v_readfirstlane_b32 s28, v1
    s_and_b32 s33, s2, 7
    s_lshr_b32 s34, s2, 3
    s_lshr_b32 s29, s33, 1
    s_lshl_b32 s29, s29, 3
    s_and_b32 s31, s34, 7
    s_add_u32 s29, s29, s31
    s_and_b32 s30, s33, 1
    s_lshl_b32 s30, s30, 2
    s_lshr_b32 s31, s34, 3
    s_add_u32 s30, s30, s31
    s_lshl_b32 s33, s30, 8
    s_lshl_b32 s34, s28, 5
    s_add_u32 s33, s33, s34
    v_and_b32 v4, 15, v2
    v_add_u32 v4, s33, v4
    v_lshrrev_b32 v5, 4, v2
    v_lshlrev_b32 v5, 15, v5
    v_lshl_add_u32 v9, v4, 4, v5
    s_lshl_b32 s36, s28, 12
    s_mul_i32 s37, s29, {324*1024}
    s_lshl_b32 s31, s28, 10
    s_add_u32 s31, s31, 32768
    s_and_b32 s64, s29, {7 if KC_ROT else 0}
    s_mul_i32 s65, s64, {4096*NP1}
    s_add_u32 s66, s65, s36
    s_add_u32 s67, s65, s31
    s_lshl_b32 s65, s64, 12
    s_add_u32 s68, s65, s36
    s_add_u32 s69, s65, s31
    s_sub_u32 s65, s68, {KC_STAGE}
    s_cmp_ge_u32 s68, {KC_STAGE}
    s_cselect_b32 s68, s65, s68
    s_sub_u32 s65, s69, {KC_STAGE}
    s_cmp_ge_u32 s69, {KC_STAGE}
    s_cselect_b32 s69, s65, s69
    s_add_u32 s68, s68, s37
    s_add_u32 s69, s69, s37
    s_lshl_b32 s70, s64, 18
    s_waitcnt lgkmcnt(0)
    """)
    A.srd_off(8, 26, 27, WS_WP, 2 * D * F * 2)
    A.srd_off(12, 26, 27, WS_H, S * D * 2)
    vm = Cnt(A, "vmcnt", 63)
    lg = Cnt(A, "lgkmcnt", 15)
    issued = set()
    done_st = lambda vm_, iss: iss
    def soff(c, sfirst, slater):
        if c >= NP1:
            e(f"s_add_u32 s38, s{slater}, {c*KC_STAGE}")
        else:
            e(f"s_add_u32 s38, s{sfirst}, {c*KC_STAGE}")
            e(f"s_sub_u32 s65, s38, {NP1*KC_STAGE}")
            e(f"s_cmp_ge_u32 s38, {NP1*KC_STAGE}")
            e("s_cselect_b32 s38, s65, s38")
            e("s_add_u32 s38, s38, s37")
    def dma_ops(c):
        st = c % 4
        def opt():
            lab = A.newlabel("kc_skip")
            e("s_cmp_ge_u32 s28, 4")
            e(f"s_cbranch_scc1 {lab}")
            e(f"s_add_u32 m0, s31, {st*KC_STAGE}")
            soff(c, 67, 69)
            e(f"buffer_load_dwordx4 v3, s[8:11], s38 offen lds")
            A.label(lab)
        ops = [opt, lambda: e(f"s_add_u32 m0, s36, {st*KC_STAGE}"), lambda: soff(c, 66, 68)]
        for i in range(4):
            def ld(i=i):
                e(f"buffer_load_dwordx4 v3, s[8:11], s38 offen offset:{1024*i} lds")
                vm.issue(("W", c))
            ops.append(ld)
        return [("W", c, op) for op in ops]
    def x_ops(sx):
        def so():
            e("s_mov_b32 s40, s70")
            e(f"s_add_u32 s70, s70, {4*32768:#x}")
            e(f"s_cmp_ge_u32 s70, {72*32768:#x}")
            e("s_cselect_b32 s70, 0, s70")
        ops = [so]
        for tt in range(2):
            def ld(tt=tt):
                e(f"buffer_load_dwordx4 {v(XR+8*sx+4*tt,4)}, v9, s[12:15], s40 offen offset:{256*tt}")
                vm.issue(("X", sx))
            ops.append(ld)
        return [("X", sx, op) for op in ops]
    def run_ops(ops):
        for op in ops: op[2]()
    PF8 = int(os.environ.get("PF8", "3"))
    NXP = int(os.environ.get("KC_NXP", "4"))
    NX0 = int(os.environ.get("KC_NX0", "2"))
    run_ops(dma_ops(0))
    for sx in range(NX0): run_ops(x_ops(sx))
    A.srd_off(48, 26, 27, WS_ST2, S * 8)
    e(f"""
    s_lshl_b32 s52, s30, 8
    s_lshl_b32 s53, s29, 3
    s_add_u32 s52, s52, s53
    s_add_u32 s52, s52, s28
    s_lshl_b32 s53, s52, 4
    s_add_u32 s54, s53, {36*32768}
    v_lshlrev_b32 v4, 15, v2
    v_mov_b32 v5, 0x7ffffff0
    v_cmp_gt_u32 s[56:57], 36, v2
    s_lshl_b32 s52, s52, 3
    s_nop 0
    v_cndmask_b32 v4, v5, v4, s[56:57]
    buffer_load_dwordx4 v[{T}:{T+3}], v4, s[12:15], s53 offen
    buffer_load_dwordx4 v[{T+4}:{T+7}], v4, s[12:15], s54 offen
    """)
    vm.issue("row"); vm.issue("row")
    A.srd_off(16, 26, 27, WS_HH, S * F * 2)
    A.srd_off(20, 26, 27, WS_CS, 12 * F * 4)
    e(f"""
    v_and_b32 v4, 31, v2
    v_add_u32 v4, s33, v4
    v_lshrrev_b32 v5, 5, v2
    v_lshlrev_b32 v5, 15, v5
    v_lshl_add_u32 v1, v4, 4, v5
    v_add_u32 v6, {KC_STAGE}, v3
    v_add_u32 v7, {2*KC_STAGE}, v3
    v_add_u32 v8, {3*KC_STAGE}, v3
    v_lshrrev_b32 v10, 4, v2
    v_lshlrev_b32 v10, 4, v10
    v_add_u32 v10, {CS_L}, v10
    s_lshr_b32 s32, s28, 2
    s_mul_i32 s33, s32, {F*4}
    s_mul_i32 s34, s29, 576
    s_add_u32 s33, s33, s34
    v_mov_b32 v5, 0x7ffffff0
    v_cmp_gt_u32 vcc, 36, v2
    s_lshl_b32 s32, s32, 10
    s_add_u32 s32, s32, {CS_L}
    v_cndmask_b32 v13, v5, v3, vcc
    v_add_u32 v11, s32, v3
    s_mov_b32 s55, s33
    s_mov_b32 s47, 0xffff0000
    s_mul_i32 s42, s29, {18*32768}
    """)
    e(f"""
    s_mov_b32 s44, {fbits(1.0/576):#x}
    v_and_b32 v12, 0x7fff, v9
    v_lshrrev_b32 v12, 1, v12
    """)
    def pub_ops():
        L = [lambda: vm.need("row")]
        q = lambda s_: L.append(lambda: e(s_))
        def wave_sum(r, t):
            for sh in (8, 4, 2, 1):
                q(f"s_nop 1\nv_add_f32_dpp v{r}, v{r}, v{r} row_ror:{sh} row_mask:0xf bank_mask:0xf")
            for op in ("v_permlane16_swap_b32", "v_permlane32_swap_b32"):
                q(f"v_mov_b32 v{t}, v{r}")
                q(f"s_nop 1\n{op} v{r}, v{t}")
                q(f"v_add_f32 v{r}, v{r}, v{t}")
        for d in range(8):
            q(f"v_lshlrev_b32 v{K+4+(d&1)*2}, 16, v{T+d}")
            q(f"v_and_b32 v{K+5+(d&1)*2}, s47, v{T+d}")
            if d == 0:
                q(f"v_add_f32 v{K}, v{K+4}, v{K+5}")
            else:
                q(f"v_add_f32 v{K}, v{K}, v{K+4+(d&1)*2}")
                q(f"v_add_f32 v{K}, v{K}, v{K+5+(d&1)*2}")
        wave_sum(K, K + 1)
        q(f"v_mul_f32 v{K}, s44, v{K}")
        q(f"v_mov_b32 v{K+2}, 0")
        for d in range(8):
            u = K + 4 + (d & 1) * 2
            q(f"v_lshlrev_b32 v{u}, 16, v{T+d}")
            q(f"v_and_b32 v{u+1}, s47, v{T+d}")
            q(f"v_sub_f32 v{u}, v{u}, v{K}")
            q(f"v_sub_f32 v{u+1}, v{u+1}, v{K}")
            q(f"v_fmac_f32 v{K+2}, v{u}, v{u}")
            q(f"v_fmac_f32 v{K+2}, v{u+1}, v{u+1}")
        q(f"v_cndmask_b32 v{K+2}, 0, v{K+2}, s[56:57]")
        wave_sum(K + 2, K + 3)
        q(f"v_mov_b32 v{K+1}, {fbits(1e-5):#x}")
        q(f"v_fmac_f32 v{K+1}, s44, v{K+2}")
        q("v_mov_b32 v4, 0")
        def st():
            e("s_mov_b64 exec, 1")
            e(f"buffer_store_dwordx2 v[{K}:{K+1}], v4, s[48:51], s52 offen sc1")
            e("s_mov_b64 exec, -1")
            vm.issue("pub")
        L.append(st)
        return L
    RB = [3, 6, 7, 8]
    def finfo(f):
        b = f // 36
        if b < NP1: return (f // (2 * NP1), (f % (2 * NP1)) >> 1, f & 1)
        return ((f % 36) // 2, b, f & 1)
    def wread(f):
        e(f"ds_read_b128 {v(WR+4*(f%NW),4)}, v{RB[(f//36)%4]} offset:{1024*(f%36)}")
        lg.issue(("w", f))
    def stat_ops(sx):
        ops = []
        for tt in range(2):
            for d in range(4):
                r = XR + 8 * sx + 4 * tt + d
                k = K + 4 * tt
                ops.append(lambda r=r: e(f"v_lshlrev_b32 v4, 16, v{r}"))
                ops.append(lambda r=r: e(f"v_and_b32 v5, s47, v{r}"))
                ops.append(lambda k=k: e(f"v_add_f32 v{k}, v{k}, v4"))
                ops.append(lambda k=k: e(f"v_add_f32 v{k+1}, v{k+1}, v5"))
                ops.append(lambda k=k: e(f"v_fmac_f32 v{k+2}, v4, v4"))
                ops.append(lambda k=k: e(f"v_fmac_f32 v{k+3}, v5, v5"))
        return ops
    c0 = -2.0 * math.sqrt(2.0 / math.pi) * math.log2(math.e)
    c1 = c0 * 0.044715
    def statld_ops():
        L = []
        for tt in range(2):
            def ld(tt=tt):
                e(f"buffer_load_dwordx2 v[{K+4*tt}:{K+4*tt+1}], v12, s[48:51], 0 offen offset:{128*tt} sc1")
                vm.issue("stat")
            L.append(ld)
        return L
    def statfin_ops():
        L = []
        q = lambda s_: L.append(lambda: e(s_))
        def chk():
            vm.need("stat")
            e(f"v_cmp_eq_u32 vcc, -1, v{K+1}")
            e(f"v_cmp_eq_u32 s[58:59], -1, v{K+5}")
            e("s_nop 1")
            e("s_or_b64 vcc, vcc, s[58:59]")
            e("s_cbranch_vccnz kc_slowstat" if not os.environ.get("KC_FORCESLOW") else "s_branch kc_slowstat")
            A.label("kc_statok")
        L.append(chk)
        q(f"s_mov_b32 s45, {fbits(c0):#x}")
        q(f"s_mov_b32 s46, {fbits(c1):#x}")
        for tt in range(2):
            k = K + 4 * tt
            q(f"v_rsq_f32 v{k+2}, v{k+1}")
            q(f"v_sub_f32 v{k}, 0, v{k}")
            q(f"v_mul_f32 v{k+3}, v{k+2}, v{k+2}")
            q(f"v_mul_f32 v{k+3}, v{k+3}, v{k+2}")
            q(f"v_mul_f32 v{k+3}, s46, v{k+3}")
            q(f"v_mul_f32 v{k+2}, s45, v{k+2}")
        return L
    def slowstat():
        A.label("kc_slowstat")
        for r in range(8): e(f"v_mov_b32 v{K+r}, 0")
        for sx in range(18):
            for op in stat_ops(sx): op()
        R4 = [K, K + 2, K + 4, K + 6]
        for r in R4: e(f"v_add_f32 v{r}, v{r}, v{r+1}")
        for op in ("v_permlane32_swap_b32", "v_permlane16_swap_b32"):
            for r in R4: e(f"v_mov_b32 v{r+1}, v{r}")
            e("s_nop 1")
            for r in R4: e(f"{op} v{r}, v{r+1}")
            for r in R4: e(f"v_add_f32 v{r}, v{r}, v{r+1}")
        for tt in range(2):
            k = K + 4 * tt
            e(f"v_mul_f32 v{k}, s44, v{k}")
            e(f"v_mul_f32 v{k+1}, s44, v{k+2}")
            e(f"v_fma_f32 v{k+1}, -v{k}, v{k}, v{k+1}")
            e(f"v_max_f32 v{k+1}, 0, v{k+1}")
            e(f"v_add_f32 v{k+1}, {fbits(1e-5):#x}, v{k+1}")
        e("s_branch kc_statok")
    def cs_rd(j):
        if j > 8: return
        e(f"ds_read_b128 {v(CS,4)}, v10 offset:{64*j}"); lg.issue(("cs", j))
        e(f"ds_read_b128 {v(CS+4,4)}, v10 offset:{1024+64*j}"); lg.issue(("cs", j))
    def epi_ops(j):
        L = []
        q = lambda s_: L.append(lambda: e(s_))
        g0 = ACC + 16 * (j % 3)
        L.append(lambda: lg.need(("cs", j)))
        kk = lambda r: K + 4 * (r // 4)
        P = lambda r: v(r, 2)
        if PK:
            for m in range(2):
                for r in range(0, 8, 2):
                    q(f"v_pk_fma_f32 {P(g0+8*m+r)}, {P(CS+4*m+(r%4))}, {P(kk(r))}, {P(g0+8*m+r)} op_sel_hi:[1,0,1]")
            L.append(lambda: cs_rd(j + 1))
            for r in range(0, 8, 2): q(f"v_pk_mul_f32 {P(T+r)}, {P(g0+r)}, {P(g0+r)}")
            for r in range(0, 8, 2): q(f"v_pk_fma_f32 {P(T+r)}, {P(T+r)}, {P(kk(r)+2)}, {P(kk(r)+2)} op_sel:[0,1,0] op_sel_hi:[1,1,0]")
            for r in range(0, 8, 2): q(f"v_pk_mul_f32 {P(T+r)}, {P(T+r)}, {P(g0+r)}")
            for r in range(8): q(f"v_exp_f32 v{T+r}, v{T+r}")
            for r in range(0, 8, 2): q(f"v_pk_mul_f32 {P(g0+r)}, {P(g0+r)}, {P(g0+8+r)}")
            for r in range(0, 8, 2): q(f"v_pk_fma_f32 {P(T+r)}, {P(T+r)}, {P(kk(r))}, {P(kk(r))} op_sel:[0,1,1] op_sel_hi:[1,1,1]")
            for r in range(8): q(f"v_rcp_f32 v{T+r}, v{T+r}")
            q("s_nop 0")
            for r in range(0, 8, 2): q(f"v_pk_mul_f32 {P(g0+r)}, {P(g0+r)}, {P(T+r)}")
        else:
            for m in range(2):
                for r in range(8): q(f"v_fmac_f32 v{g0+8*m+r}, v{CS+4*m+(r%4)}, v{kk(r)}")
            L.append(lambda: cs_rd(j + 1))
            for r in range(8): q(f"v_mul_f32 v{T+r}, v{g0+r}, v{g0+r}")
            for r in range(8): q(f"v_fma_f32 v{T+r}, v{T+r}, v{kk(r)+3}, v{kk(r)+2}")
            for r in range(8): q(f"v_mul_f32 v{T+r}, v{T+r}, v{g0+r}")
            for r in range(8):
                q(f"v_exp_f32 v{T+r}, v{T+r}")
                q(f"v_mul_f32 v{g0+r}, v{g0+r}, v{g0+8+r}")
            for r in range(8): q(f"v_fma_f32 v{T+r}, v{T+r}, v{kk(r)+1}, v{kk(r)+1}")
            for r in range(8): q(f"v_rcp_f32 v{T+r}, v{T+r}")
            q("s_nop 0")
            for r in range(8): q(f"v_mul_f32 v{g0+r}, v{g0+r}, v{T+r}")
        for d in range(4): q(f"v_cvt_pk_bf16_f32 v{O+d}, v{g0+2*d}, v{g0+2*d+1}")
        q(f"s_add_u32 s43, s42, {2*j*32768}")
        q("s_nop 0")
        q(f"v_permlane16_swap_b32 v{O}, v{O+2}")
        q(f"v_permlane16_swap_b32 v{O+1}, v{O+3}")
        def st_():
            e(f"buffer_store_dwordx4 {v(O,4)}, v1, s[16:19], s43 offen{SC1C}")
            vm.issue(("st", j)); issued.add(("st", j))
        L.append(st_)
        q("s_nop 0")
        return L
    def wd_setup_ops():
        L = []
        q = lambda s_: L.append(lambda: e(s_))
        for s_ in f"""s_mov_b32 s6, {F*D*2:#x}
        s_mov_b32 s7, 0x00020000
        s_add_u32 s60, s26, {WS_WDP:#x}
        s_addc_u32 s61, s27, 0
        s_mov_b32 s62, {F*D*2:#x}
        s_mov_b32 s63, 0x00020000
        s_lshl_b32 s24, s2, 3
        s_add_u32 s24, s24, s28
        s_mul_i32 s25, s24, 7282
        s_lshr_b32 s25, s25, 16
        s_mul_i32 s39, s25, 9
        s_sub_u32 s24, s24, s39
        s_mul_i32 s39, s25, 36864
        s_lshl_b32 s41, s24, 7
        s_add_u32 s39, s39, s41
        s_mul_i32 s41, s25, 1821
        s_lshr_b32 s41, s41, 16
        s_mul_i32 s52, s41, 36
        s_sub_u32 s25, s25, s52
        s_mul_i32 s41, s41, {4*36*9}
        s_mul_i32 s25, s25, 9
        s_add_u32 s41, s41, s25
        s_lshl_b32 s24, s24, 2
        v_lshrrev_b32 v4, 3, v2
        v_mul_u32_u24 v4, 1152, v4
        v_and_b32 v5, 7, v2
        v_lshl_add_u32 v13, v5, 4, v4
        v_lshrrev_b32 v4, 4, v2
        v_lshlrev_b32 v4, 3, v4
        v_bfe_u32 v5, v2, 2, 2
        v_add_u32 v4, v4, v5
        v_lshlrev_b32 v4, 7, v4
        v_and_b32 v5, 3, v2
        v_lshl_add_u32 v14, v5, 3, v4
        v_add_u32 v14, s36, v14""".split("\n"):
            q(s_.strip())
        L[2:4] = [lambda: (e(f"s_add_u32 s60, s26, {WS_WDP:#x}"), e("s_addc_u32 s61, s27, 0"))]
        for q4 in range(4):
            d = 52 + q4
            q(f"s_add_u32 s25, s24, {q4}")
            q(f"s_mul_i32 s{d}, s25, 7282")
            q(f"s_lshr_b32 s{d}, s{d}, 16")
            q(f"s_mul_i32 s{d}, s{d}, {36*9-9}")
            q(f"s_add_u32 s{d}, s{d}, s25")
            q(f"s_add_u32 s{d}, s{d}, s41")
            q(f"s_lshl_b32 s{d}, s{d}, 10")
        return L
    def wd_dma_ops():
        ops = []
        for i in range(4):
            ops.append(lambda i=i: e(f"s_add_u32 m0, s36, {KC_STAGE + 1024*i}"))
            def ld(i=i):
                e(f"buffer_load_dwordx4 v13, s[4:7], s39 offen lds")
                e(f"s_add_u32 s39, s39, {8*1152}")
                vm.issue("wd")
            ops.append(ld)
        return [("P", 99, op) for op in ops]
    def wd_pack_ops():
        L = [lambda: vm.need("wd")]
        for q4 in range(4):
            def rd(q4=q4):
                e(f"ds_read_b64_tr_b16 {v(ACC+4*q4,2)}, v14 offset:{KC_STAGE+32*q4}"); lg.issue(("wdr", q4))
                e(f"ds_read_b64_tr_b16 {v(ACC+4*q4+2,2)}, v14 offset:{KC_STAGE+32*q4+512}"); lg.issue(("wdr", q4))
            L.append(rd)
        L += [lambda: None] * 12
        for q4 in range(4):
            def st(q4=q4):
                lg.need(("wdr", q4))
                e(f"buffer_store_dwordx4 {v(ACC+4*q4,4)}, v3, s[60:63], s{52+q4} offen{SCP}")
                vm.issue("wds")
            L.append(st)
        return L
    DA, DH, DACC, DWR, DNW, DNH = 112, 128, 184, 44, 8, 6
    PK_L = CS_L + 2048
    def d_salu_ops():
        L = []
        q = lambda s_: L.append(lambda: e(s_))
        for s_ in f"""s_mov_b32 s6, {F*D*2:#x}
        s_mov_b32 s7, 0x00020000
        s_mov_b32 s62, {FLAG_OFF+8192+1024+32768:#x}
        s_mov_b32 s63, 0x00020000
        s_mov_b32 s22, {F*D*2:#x}
        s_and_b32 s24, s2, 7
        s_lshr_b32 s25, s2, 3
        s_lshr_b32 s52, s24, 1
        s_and_b32 s24, s24, 1
        s_lshl_b32 s24, s24, 3
        s_lshr_b32 s53, s25, 2
        s_add_u32 s53, s53, s24
        s_and_b32 s54, s25, 3
        s_and_b32 s56, s28, 3
        s_lshr_b32 s57, s28, 2
        s_lshl_b32 s24, s52, 2
        s_add_u32 s24, s24, s54
        s_mul_i32 s39, s24, {324*1024}
        s_lshl_b32 s24, s24, 6
        s_add_u32 s32, s24, {FLAG_OFF+8192}
        s_lshl_b32 s24, s53, 2
        s_add_u32 s33, s32, s24
        s_mul_i32 s41, s52, {144*32768}
        s_mul_i32 s24, s57, {36*32768}
        s_add_u32 s41, s41, s24
        s_lshl_b32 s24, s30, 3
        s_add_u32 s24, s24, s28
        s_lshl_b32 s24, s24, 5
        s_add_u32 s24, s24, s29
        s_lshl_b32 s24, s24, 2
        s_add_u32 s55, s24, {FLAG_OFF}
        s_lshl_b32 s24, s53, 7
        s_lshl_b32 s25, s52, 3
        s_add_u32 s24, s24, s25
        s_lshl_b32 s24, s24, 2
        s_add_u32 s71, s24, {FLAG_OFF}
        s_lshl_b32 s24, s53, 3
        s_add_u32 s24, s24, s28
        s_mul_i32 s35, s24, 3072
        s_add_u32 s35, s35, s39
        s_mul_i32 s25, s24, 171
        s_lshr_b32 s25, s25, 9
        s_mul_i32 s34, s25, 3
        s_sub_u32 s34, s24, s34
        s_mul_i32 s34, s34, 96
        s_mul_i32 s64, s54, 288
        s_add_u32 s34, s34, s64
        s_lshr_b32 s64, s25, 2
        s_and_b32 s25, s25, 3
        s_mul_i32 s25, s25, 288
        s_lshl_b32 s64, s64, 4
        s_add_u32 s25, s25, s64
        s_mul_i32 s64, s52, 1152
        s_add_u32 s25, s25, s64
        s_mul_i32 s25, s25, 1152
        s_add_u32 s34, s34, s25""".split("\n"):
            q(s_.strip())
        L.append(lambda: (e("s_cmp_ge_u32 s24, 108"), e(f"s_cselect_b32 s34, {F*D*2:#x}, s34"), e(f"s_cselect_b32 s35, {F*D*2:#x}, s35")))
        L.append(lambda: (e(f"s_add_u32 s60, s26, {WS_PART:#x}"), e("s_addc_u32 s61, s27, 0")))
        L.append(lambda: (e(f"s_add_u32 s20, s26, {WS_WDP:#x}"), e("s_addc_u32 s21, s27, 0")))
        return L
    def pk_addr_ops():
        L = []
        q = lambda s_: L.append(lambda: e(s_))
        for s_ in f"""v_lshrrev_b32 v4, 5, v2
        v_mul_u32_u24 v4, 144, v4
        v_bfe_u32 v5, v2, 1, 4
        v_add_u32 v4, v4, v5
        v_mul_u32_u24 v4, 1152, v4
        v_and_b32 v5, 1, v2
        v_lshl_add_u32 v9, v5, 4, v4
        v_lshrrev_b32 v4, 4, v2
        v_lshlrev_b32 v4, 3, v4
        v_bfe_u32 v5, v2, 2, 2
        v_add_u32 v4, v4, v5
        v_lshlrev_b32 v4, 5, v4
        v_and_b32 v5, 3, v2
        v_lshl_add_u32 v4, v5, 3, v4
        s_lshl_b32 s64, s28, 10
        s_add_u32 s64, s64, {PK_L}
        v_add_u32 v11, s64, v4""".split("\n"):
            q(s_.strip())
        return L
    def prefill_ops():
        L = []
        q = lambda s_: L.append(lambda: e(s_))
        for r in range(12, 16): q(f"v_mov_b32 v{r}, -1")
        for s_ in f"""s_lshl_b32 s24, s53, 2
        s_add_u32 s24, s24, s54
        s_lshl_b32 s24, s24, 2
        s_add_u32 s24, s24, s56
        s_lshl_b32 s24, s24, 2
        s_add_u32 s24, s24, s52
        s_mul_i32 s24, s24, 9216
        s_lshl_b32 s25, s57, 12
        s_add_u32 s24, s24, s25
        s_add_u32 s25, s24, 4096""".split("\n"):
            q(s_.strip())
        for i in range(5):
            def st(i=i):
                e(f"buffer_store_dwordx4 v[12:15], v3, s[60:63], s{24 if i < 4 else 25} offen offset:{1024*(i%4)} sc1")
                vm.issue("pf")
            L.append(st)
        return L
    def pk_touch_ops():
        L = []
        q = lambda s_: L.append(lambda: e(s_))
        for s_ in f"""v_lshrrev_b32 v4, 5, v2
        v_mul_u32_u24 v4, 144, v4
        v_bfe_u32 v5, v2, 1, 4
        v_add_u32 v4, v4, v5
        v_mul_u32_u24 v4, 1152, v4
        v_and_b32 v5, 1, v2
        v_mul_u32_u24 v5, 92, v5
        v_add_u32 v{T}, v5, v4""".split("\n"):
            q(s_.strip())
        def ld():
            e(f"buffer_load_dword v{T+1}, v{T}, s[4:7], s34 offen")
            vm.issue("pkt")
        L.append(ld)
        return L
    def pk_dma_ops(i):
        def ld():
            e("s_mov_b32 m0, s64")
            e("s_nop 0")
            e(f"buffer_load_dwordx4 v9, s[4:7], s34 offen lds")
            e("s_add_u32 s34, s34, 32")
            vm.issue(("pkd", i))
        return [("P", 99, ld)]
    def pk_rd_ops(i):
        def rd():
            vm.need(("pkd", i))
            e("ds_read_b64_tr_b16 v[12:13], v11"); lg.issue(("pkr", i))
            e("ds_read_b64_tr_b16 v[14:15], v11 offset:128"); lg.issue(("pkr", i))
        def st():
            lg.need(("pkr", i))
            e(f"buffer_store_dwordx4 v[12:15], v3, s[20:23], s35 offen offset:{1024*i} sc1")
            vm.issue(("pks", i)); issued.add(("pks", i))
            if i < 2: mem.extend(pk_dma_ops(i + 1))
        return [rd], [st]
    def publish(level):
        e(f"v_mov_b32 v4, {level}")
        e("v_mov_b32 v5, 0")
        e("s_mov_b64 exec, 1")
        e("buffer_store_dword v4, v5, s[60:63], s55 offen sc1")
        e("s_mov_b64 exec, -1")
        vm.issue("prog")
    def retired_level():
        lv = 0
        while ("st", lv) in issued and ("st", lv) not in vm.q: lv += 1
        return lv
    def d_valu_ops():
        L = []
        q = lambda s_: L.append(lambda: e(s_))
        for s_ in f"""s_lshl_b32 s24, s53, 7
        s_lshl_b32 s25, s56, 5
        s_add_u32 s24, s24, s25
        v_and_b32 v4, 15, v2
        v_add_u32 v4, s24, v4
        v_lshrrev_b32 v5, 5, v2
        v_mul_u32_u24 v5, 18, v5
        v_bfe_u32 v{DA}, v2, 4, 1
        v_add_u32 v5, v5, v{DA}
        v_lshlrev_b32 v5, 15, v5
        v_lshl_add_u32 v{DA+5}, v4, 4, v5
        s_mul_i32 s24, s57, 9216
        v_add_u32 v{DA+6}, s24, v3
        v_add_u32 v{DA+7}, s24, v6
        v_add_u32 v{DA+8}, s24, v7
        v_add_u32 v{DA+9}, s24, v8
        s_add_u32 s68, s39, s36
        s_add_u32 s69, s39, s31""".split("\n"):
            q(s_.strip())
        return L
    def d_dma_ops(c):
        st = (c + 1) % 4
        def opt():
            lab = A.newlabel("kc_skip")
            e("s_cmp_ge_u32 s28, 4")
            e(f"s_cbranch_scc1 {lab}")
            e(f"s_add_u32 m0, s31, {st*KC_STAGE}")
            e(f"s_add_u32 s38, s69, {c*KC_STAGE}")
            e(f"buffer_load_dwordx4 v3, s[20:23], s38 offen sc1 lds")
            A.label(lab)
        ops = [opt, lambda: e(f"s_add_u32 m0, s36, {st*KC_STAGE}"), lambda: e(f"s_add_u32 s38, s68, {c*KC_STAGE}")]
        for i in range(4):
            def ld(i=i):
                e(f"buffer_load_dwordx4 v3, s[20:23], s38 offen offset:{1024*i} sc1 lds")
                vm.issue(("DW", c))
            ops.append(ld)
        return [("DW", c, op) for op in ops]
    def d_h_ops(sx):
        c, hlf = divmod(sx, 2)
        sr = [40, 70, 65, 66][sx % 4]
        ops = [lambda: e(f"s_add_u32 s{sr}, s41, {(72*hlf + 2*c)*32768:#x}")]
        for tt in range(2):
            def ld(tt=tt):
                e(f"buffer_load_dwordx4 {v(DH+8*(sx%DNH)+4*tt,4)}, v{DA+5}, s[16:19], s{sr} offen offset:{256*tt} sc1")
                vm.issue(("H", sx))
            ops.append(ld)
        return [("H", sx, op) for op in ops]
    FV, FX = 12, 13
    def flag_addr_ops():
        L = []
        q = lambda s_: L.append(lambda: e(s_))
        for s_ in f"""v_and_b32 v4, 7, v2
        v_bfe_u32 v5, v2, 3, 2
        v_lshlrev_b32 v5, 5, v5
        v_add_u32 v4, v4, v5
        v_lshlrev_b32 v4, 2, v4
        v_add_u32 v4, s71, v4
        v_and_b32 v5, 15, v2
        v_lshlrev_b32 v5, 2, v5
        v_add_u32 v5, s32, v5
        v_cmp_gt_u32 vcc, 32, v2
        s_nop 1
        v_cndmask_b32 v{FV}, v5, v4, vcc
        s_lshl_b32 s24, s54, 6
        s_lshl_b32 s25, s53, 2
        s_add_u32 s24, s24, s25
        s_add_u32 s24, s24, {FLAG_OFF+8192}
        v_and_b32 v4, 3, v2
        v_lshlrev_b32 v4, 8, v4
        v_add_u32 v4, s24, v4
        v_cmp_gt_u32 vcc, 48, v2
        s_nop 1
        v_cndmask_b32 v{FV}, v4, v{FV}, vcc""".split("\n"):
            q(s_.strip())
        return L
    mark = [0]
    def flag_ld():
        lab = A.newlabel("kc_fl")
        e("s_cmp_lg_u32 s28, 0")
        e(f"s_cbranch_scc1 {lab}")
        e(f"buffer_load_dword v{FX}, v{FV}, s[60:63], 0 offen sc1")
        A.label(lab)
        mark[0] = vm.total
    spins = []
    def flag_chk(level):
        ok, sp = A.newlabel("kc_fok"), A.newlabel("kc_spin")
        e("s_cmp_lg_u32 s28, 0")
        e(f"s_cbranch_scc1 {ok}")
        e(f"s_waitcnt vmcnt({min(vm.total - mark[0], 63)})")
        e(f"v_cmp_gt_u32 vcc, {level}, v{FX}")
        e("s_nop 1")
        e(f"s_cbranch_vccnz {sp}")
        A.label(ok)
        spins.append((ok, sp, level))
    def emit_spins():
        for ok, sp, level in spins:
            A.label(sp)
            e("s_mov_b32 s67, 0")
            lp = A.newlabel("kc_sl")
            A.label(lp)
            e(f"""
            buffer_load_dword v{FX}, v{FV}, s[60:63], 0 offen sc1
            s_add_u32 s67, s67, 1
            s_waitcnt vmcnt(0)
            v_cmp_gt_u32 vcc, {level}, v{FX}
            s_cmp_ge_u32 s67, 0x8000
            s_cbranch_scc1 {ok}
            s_cbranch_vccnz {lp}
            s_branch {ok}
            """)
    def cs_ld_ops(grp):
        L = []
        dst = [CS, CS + 4, T] if grp == 0 else [CS + 4, T, T + 4]
        for i in range(3):
            def ld(i=i):
                e(f"buffer_load_dwordx4 {v(dst[i],4)}, v13, s[20:23], s55 offen")
                e(f"s_add_u32 s55, s55, {2*F*4}")
                vm.issue(("cs", grp))
            L.append(ld)
        return L
    def cs_add_ops(grp):
        L = [lambda: vm.need(("cs", grp))]
        for sr in ([CS + 4, T] if grp == 0 else [CS + 4, T, T + 4]):
            for r in range(4): L.append(lambda r=r, sr=sr: e(f"v_add_f32 v{CS+r}, v{CS+r}, v{sr+r}"))
        if grp == 1:
            def w():
                e(f"ds_write_b128 v11, {v(CS,4)}"); lg.issue("csw"); issued.add("csw")
            L.append(w)
        return L
    ST.stamp()
    vm.need(("W", 0))
    e("s_barrier")
    ST.stamp()
    NF = 324
    AHEAD = NW - 1
    KC_D1 = int(os.environ.get("KC_D1", "1"))
    mem = dma_ops(1) + ([] if KC_D1 else dma_ops(2))
    val = [lambda: None] * 16 + pub_ops()
    nr = 0
    F1 = 36 * NP1
    def flush(kind, idx):
        while any(p[0] == kind and p[1] <= idx for p in mem):
            mem.pop(0)[2]()
    def next_read():
        nonlocal nr, mem
        if nr >= NF: return
        if nr % 36 == 0 and nr > 0:
            c = nr // 36
            lg.drain()
            flush("W", c)
            vm.need(("W", c))
            if FUSE and c == 6:
                assert ("pks", 2) in issued
                vm.need(("pks", 2))
            if FUSE and c >= 6: vm.need(("st", c - 3))
            if FUSE and c == 8: flag_chk(4)
            e("s_barrier")
            ST.stamp()
            if c == NP1 - 1: assert "csw" in issued
            if KC_D1 and c <= NP1: mem += dma_ops(c + 1)
            if c + 2 < 9 and (not KC_D1 or c >= NP1): mem += dma_ops(c + 2)
            if not FUSE:
                if c == 7: mem += wd_dma_ops()
            else:
                if c >= 6: publish(retired_level())
                if c == 6:
                    lab = A.newlabel("kc_pkf")
                    e("s_cmp_lg_u32 s28, 0")
                    e(f"s_cbranch_scc1 {lab}")
                    e("v_mov_b32 v4, 15")
                    e("s_mov_b64 exec, 1")
                    e("buffer_store_dword v4, v5, s[60:63], s33 offen sc1")
                    e("s_mov_b64 exec, -1")
                    A.label(lab)
        wread(nr); nr += 1
    for _ in range(AHEAD): next_read()
    xq = []
    for sx in range(NX0, NXP): xq += x_ops(sx)
    for f in range(NF):
        s_, j, m = finfo(f)
        if f < F1 and f % (2 * NP1) == 0:
            while any(p[1] <= s_ for p in xq): xq.pop(0)[2]()
            vm.need(("X", s_))
            if s_ + NXP < 18: xq += x_ops(s_ + NXP)
            if s_ == 1: val += cs_ld_ops(0)
            if s_ == 7: val += cs_add_ops(0) + cs_ld_ops(1)
            if s_ == 10: val += cs_add_ops(1)
            if s_ == 11: val += (d_salu_ops() + pk_touch_ops()) if FUSE else wd_setup_ops()
            if s_ == 14: val += statld_ops()
            if s_ == 17: val += [lambda: cs_rd(0)] + statfin_ops()
        if f == F1:
            if NP1 == 3:
                while val: val.pop(0)()
                e("s_nop 3")
                for op in epi_ops(0): op()
                val += epi_ops(1) + epi_ops(2)
            else:
                val += [lambda: None] * 4 + epi_ops(0) + epi_ops(1)
        if f > F1 and f % 36 == 2 and f // 36 > NP1:
            ep = epi_ops(f // 36 - 1)
            if f // 36 == 8 and not FUSE:
                wp = wd_pack_ops()
                ep = ep[:60] + wp[:5] + ep[60:] + wp[17:]
            val += ep
        if FUSE and f in (F1 + 30, F1 + 56, F1 + 82):
            rd_, st_2 = pk_rd_ops((f - F1 - 30) // 26)
            val = rd_ + val[:8] + st_2 + val[8:]
        if FUSE and f == 216 + 4: val = flag_addr_ops() + val
        if FUSE and f == 252 + 8: val = [flag_ld] + val
        if FUSE and f == F1 + 2:
            val = pk_addr_ops() + [lambda: mem.extend(pk_dma_ops(0))] + (prefill_ops() if SENT else []) + val
        if f >= 108 and f % 36 == 0:
            need = ("st", f // 36 - 3)
            while need not in issued:
                val.pop(0)()
        if FUSE and f == 288 + 4:
            dv = d_valu_ops()
            val = dv + [lambda: xq.extend(d_dma_ops(0) + (d_dma_ops(1) if PF8 >= 2 else []))] + val
        if FUSE and f == 288 + 17:
            for sx in range(2 * PF8): xq.extend(d_h_ops(sx))
        lg.need(("w", f))
        for tt in range(2):
            c_ = v(ACC + 16 * (j % 3) + 8 * m + 4 * tt, 4)
            src_c = "0" if s_ == 0 else c_
            e(f"v_mfma_f32_16x16x32_bf16 {c_}, {v(WR+4*(f%NW),4)}, {v(XR+8*s_+4*tt,4)}, {src_c}")
            if tt == 0: next_read()
            if tt == 1 or f < 12 or (FUSE and f >= 288):
                if xq: xq.pop(0)[2]()
                elif mem: mem.pop(0)[2]()
            if f < F1: nv = 2
            else:
                rem = (36 - f % 36) * 2 - tt
                nv = min(-(-len(val) // max(rem - 6, 1)), 3 if f < F1 + 72 else 99)
                if f < F1 + 72: nv = min(nv, 2)
                if FUSE and 288 + 4 <= f < 288 + 9: nv = 3
            for _ in range(nv):
                if val: val.pop(0)()
    ST.mute = False
    ST.stamp()
    while val: val.pop(0)()
    if not FUSE:
        e("s_nop 7")
        for op in epi_ops(8): op()
        assert not mem
        ST.stamp()
        if ST.on: e("s_waitcnt vmcnt(0)")
        ST.stamp(); ST.real(1)
        ST.dump(8)
        A.label("kc_done")
        e("s_endpgm")
        slowstat()
        A.kernel_end(name, 256, 102 if ST.on else 72)
        return
    while xq: xq.pop(0)[2]()
    while mem: mem.pop(0)[2]()
    vm.need(("st", 6))
    publish(retired_level())
    flag_ld()
    for op in epi_ops(8): op()
    val = []
    pend = []
    for c_ in range(PF8, 3):
        if c_ >= 2 or c_ >= PF8: pend += d_dma_ops(c_)
        pend += d_h_ops(2 * c_) + d_h_ops(2 * c_ + 1)
    if PF8 == 3: pend = d_dma_ops(2)
    DNF = 18 * 9
    DAH = 6
    nh = 0
    def dflush(kind, idx):
        while any(p[0] == kind and p[1] <= idx for p in pend):
            pend.pop(0)[2]()
    def d_read(h):
        f, hf = divmod(h, 2)
        st_, j = divmod(f, 9)
        c, ks = divmod(st_, 2)
        r = DWR + 4 * (f % DNW)
        if hf: return
        e(f"ds_read_b128 {v(r,4)}, v{DA+6+(c+1)%4} offset:{18432*ks + 1024*j}")
        lg.issue(("dw", f))
    def d_next_read():
        nonlocal nh, pend
        if nh >= 2 * DNF: return
        if nh % 36 == 0:
            c = nh // 36
            lg.drain()
            dflush("DW", c)
            vm.need(("DW", c))
            if c in (1, 3, 5): flag_chk({1: 6, 3: 7, 5: 9}[c])
            e("s_barrier")
            if c == 5: pend = defer + pend
            if STAMP == "kd2": ST2.stamp()
            if c + 3 < 9: pend += d_dma_ops(c + 3)
            if c == 1:
                vm.need(("st", 8))
                publish(9)
        d_read(nh); nh += 1
    defer = []
    ST2 = ST
    for _ in range(2 * DAH): d_next_read()
    for f in range(DNF):
        st_, j = divmod(f, 9)
        if j == 0:
            dflush("H", st_)
            vm.need(("H", st_))
            if st_ == 3: flag_ld()
        if f == 56: flag_ld()
        if f % 2 == 0:
            lg.need(("dw", min(f + 1, DNF - 1)))
        for tt in range(2):
            c_ = v(DACC + 36 * tt + 4 * j, 4)
            src_c = "0" if st_ == 0 else c_
            e(f"v_mfma_f32_16x16x32_bf16 {c_}, {v(DWR+4*(f%DNW),4)}, {v(DH+8*(st_%DNH)+4*tt,4)}, {src_c}")
            d_next_read()
            if pend and (tt == 1 or f < 18): pend.pop(0)[2]()
            if f >= 2:
                for _ in range(3):
                    if val: val.pop(0)()
        if j == 8 and st_ + DNH < 18:
            nx = st_ + DNH
            if nx == 14:
                defer.extend(d_h_ops(nx)); continue

            pend = d_h_ops(nx) + pend
    assert not pend and not val
    ST.n = 12
    ST.stamp()
    emit_d_tail(A, DACC, 60, 53, 54, 52, 56, 57)
    if FUSE_E and SENT:
        e(f"""
        s_cmp_ge_u32 s28, 5
        s_cbranch_scc1 kc_fin
        s_load_dwordx2 s[4:5], s[0:1], {KA_OUT}
        v_lshlrev_b32 v20, 4, v0
        v_lshrrev_b32 v4, 5, v0
        v_and_b32 v5, 31, v0
        s_lshl_b32 s33, s53, 7
        s_lshl_b32 s34, s52, 5
        s_add_u32 s33, s33, s34
        v_add_u32 v5, s33, v5
        s_mul_i32 s34, s54, 18
        v_add_u32 v4, s34, v4
        v_lshlrev_b32 v21, 15, v4
        v_lshl_add_u32 v21, v5, 4, v21
        s_movk_i32 s35, 1152
        v_mul_lo_u32 v22, v5, s35
        v_lshl_add_u32 v22, v4, 4, v22
        v_cmp_gt_u32 vcc, 288, v0
        s_and_saveexec_b64 s[58:59], vcc
        s_mov_b32 s34, {9*32768}
        buffer_load_dwordx4 v[28:31], v21, s[12:15], 0 offen
        buffer_load_dwordx4 v[32:35], v21, s[12:15], s34 offen
        s_add_u32 s47, s42, s52
        s_mul_i32 s47, s47, {4*9216}
        s_mov_b32 s6, {S*D*2:#x}
        s_mov_b32 s40, 0xffff0000
        s_mov_b32 s67, 0
        s_waitcnt vmcnt({SENTW})
        """)
        A.label("kc_poll")
        e("s_mov_b32 s46, s47")
        for sr in range(4):
            e(f"buffer_load_dwordx4 {v(40+8*sr,4)}, v20, s[60:63], s46 offen sc1")
            e(f"s_add_u32 s34, s46, {288*16}")
            e(f"buffer_load_dwordx4 {v(44+8*sr,4)}, v20, s[60:63], s34 offen sc1")
            e(f"s_add_u32 s46, s46, 9216")
        e("s_add_u32 s67, s67, 1")
        for k_ in range(8):
            e(f"s_waitcnt vmcnt({7-k_})")
            b = 40 + 4 * k_
            if k_ == 0:
                e(f"v_max_u32 v26, v{b}, v{b+1}")
                e(f"v_max3_u32 v26, v26, v{b+2}, v{b+3}")
            else:
                e(f"v_max3_u32 v26, v26, v{b}, v{b+1}")
                e(f"v_max3_u32 v26, v26, v{b+2}, v{b+3}")
        e("""
        v_cmp_eq_u32 vcc, -1, v26
        s_cmp_ge_u32 s67, 0x4000
        s_cbranch_scc1 kc_go
        s_cbranch_vccnz kc_poll
        """)
        A.label("kc_go")
        for it in range(2):
            for d in range(4):
                e(f"v_lshlrev_b32 v{104+8*it+2*d}, 16, v{28+4*it+d}")
                e(f"v_and_b32 v{105+8*it+2*d}, s40, v{28+4*it+d}")
        for sr in range(4):
            for it in range(2):
                for d in range(4):
                    r = 40 + 8 * sr + 4 * it + d
                    e(f"v_lshlrev_b32 v120, 16, v{r}")
                    e(f"v_and_b32 v121, s40, v{r}")
                    e(f"v_pk_add_f32 {v(104+8*it+2*d,2)}, {v(104+8*it+2*d,2)}, v[120:121]")
        for it in range(2):
            for d in range(4):
                e(f"v_cvt_pk_bf16_f32 v{28+4*it+d}, v{104+8*it+2*d}, v{105+8*it+2*d}")
        e("s_waitcnt lgkmcnt(0)")
        e("buffer_store_dwordx4 v[28:31], v22, s[4:7], 0 offen")
        e("buffer_store_dwordx4 v[32:35], v22, s[4:7], 0 offen offset:144")
        e("s_mov_b64 exec, s[58:59]")
        A.label("kc_fin")
    elif FUSE_E:
        F2 = FLAG_OFF + 8192 + 1024
        e(f"""
        s_load_dwordx2 s[4:5], s[0:1], {KA_OUT}
        v_lshlrev_b32 v20, 4, v0
        v_lshrrev_b32 v4, 5, v0
        v_and_b32 v5, 31, v0
        s_lshl_b32 s33, s53, 7
        s_lshl_b32 s34, s52, 5
        s_add_u32 s33, s33, s34
        v_add_u32 v5, s33, v5
        s_mul_i32 s34, s54, 18
        v_add_u32 v4, s34, v4
        v_lshlrev_b32 v21, 15, v4
        v_lshl_add_u32 v21, v5, 4, v21
        s_movk_i32 s35, 1152
        v_mul_lo_u32 v22, v5, s35
        v_lshl_add_u32 v22, v4, 4, v22
        s_mov_b32 s34, {9*32768}
        buffer_load_dwordx4 v[28:31], v21, s[12:15], 0 offen
        buffer_load_dwordx4 v[32:35], v21, s[12:15], s34 offen
        s_add_u32 s45, s42, s56
        s_lshl_b32 s45, s45, 7
        s_lshl_b32 s33, s52, 3
        s_add_u32 s45, s45, s33
        s_lshl_b32 s33, s57, 2
        s_add_u32 s45, s45, s33
        s_add_u32 s45, s45, {F2}
        v_mov_b32 v23, 1
        v_mov_b32 v24, 0
        s_add_u32 s46, s42, s52
        s_lshl_b32 s47, s46, 7
        s_add_u32 s47, s47, {F2}
        s_mul_i32 s46, s46, {4*9216}
        v_and_b32 v25, 7, v2
        v_lshlrev_b32 v25, 2, v25
        s_waitcnt vmcnt(2) lgkmcnt(0)
        s_mov_b64 exec, 1
        buffer_store_dword v23, v24, s[60:63], s45 offen sc1
        s_mov_b64 exec, -1
        s_mov_b32 s6, {S*D*2:#x}
        s_cmp_ge_u32 s28, 5
        s_cbranch_scc1 kc_fin
        s_cmp_lg_u32 s28, 0
        s_cbranch_scc1 kc_go
        s_mov_b32 s67, 0
        """)
        A.label("kc_poll")
        e(f"""
        buffer_load_dword v26, v25, s[60:63], s47 offen sc1
        s_add_u32 s67, s67, 1
        s_waitcnt vmcnt(0)
        v_cmp_ne_u32 vcc, 1, v26
        s_cmp_ge_u32 s67, 0x8000
        s_cbranch_scc1 kc_go
        s_cbranch_vccnz kc_poll
        """)
        A.label("kc_go")
        e("""
        s_barrier
        v_cmp_gt_u32 vcc, 288, v0
        s_and_saveexec_b64 s[58:59], vcc
        """)
        for sr in range(4):
            e(f"buffer_load_dwordx4 {v(40+8*sr,4)}, v20, s[60:63], s46 offen sc1")
            e(f"s_add_u32 s34, s46, {288*16}")
            e(f"buffer_load_dwordx4 {v(44+8*sr,4)}, v20, s[60:63], s34 offen sc1")
            e(f"s_add_u32 s46, s46, 9216")
        e("s_mov_b32 s40, 0xffff0000")
        e("s_waitcnt vmcnt(8)")
        for it in range(2):
            for d in range(4):
                e(f"v_lshlrev_b32 v{104+8*it+2*d}, 16, v{28+4*it+d}")
                e(f"v_and_b32 v{105+8*it+2*d}, s40, v{28+4*it+d}")
        for sr in range(4):
            e(f"s_waitcnt vmcnt({6-2*sr})")
            for it in range(2):
                for d in range(4):
                    r = 40 + 8 * sr + 4 * it + d
                    e(f"v_lshlrev_b32 v120, 16, v{r}")
                    e(f"v_and_b32 v121, s40, v{r}")
                    e(f"v_pk_add_f32 {v(104+8*it+2*d,2)}, {v(104+8*it+2*d,2)}, v[120:121]")
        for it in range(2):
            for d in range(4):
                e(f"v_cvt_pk_bf16_f32 v{28+4*it+d}, v{104+8*it+2*d}, v{105+8*it+2*d}")
        e("buffer_store_dwordx4 v[28:31], v22, s[4:7], 0 offen")
        e("buffer_store_dwordx4 v[32:35], v22, s[4:7], 0 offen offset:144")
        e("s_mov_b64 exec, s[58:59]")
        A.label("kc_fin")
    if ST.on: e("s_waitcnt vmcnt(0)")
    ST.stamp(); ST.real(1)
    ST.dump(8)
    A.label("kc_done")
    e("s_endpgm")
    slowstat()
    emit_spins()
    A.kernel_end(name, 256, 102 if ST.on else 72)

KD_STAGE = 36864
FLAG_OFF = 4 * S * D * 2
def k_d(A):
    name = "kd_kernel"
    A.launch(name, 256, 512, 4 * KD_STAGE)
    A.kernel_begin(name)
    e = A.e
    ACC = 184
    WR = 136
    NW = 12
    HR = 40
    NH = int(os.environ.get("KD_NH", "6"))
    DW = int(os.environ.get("KD_DW", "3"))
    XP = os.environ.get("XP", "")
    ST = Stamps(A, STAMP == "kd")
    ST.stamp(); ST.real(0)
    e(f"""
    s_cmp_ge_u32 s2, 256
    s_cbranch_scc1 kd_done
    s_load_dwordx4 s[4:7], s[0:1], {KA_WD}
    s_load_dwordx2 s[26:27], s[0:1], {KA_WS}
    v_lshrrev_b32 v1, 6, v0
    v_and_b32 v2, 63, v0
    s_nop 0
    v_readfirstlane_b32 s28, v1
    s_nop 3
    s_and_b32 s29, s2, 7
    s_lshr_b32 s30, s2, 3
    s_lshr_b32 s31, s29, 1
    s_and_b32 s29, s29, 1
    s_lshl_b32 s29, s29, 3
    s_lshr_b32 s32, s30, 2
    s_add_u32 s29, s29, s32
    s_and_b32 s30, s30, 3
    s_and_b32 s56, s28, 3
    s_lshr_b32 s57, s28, 2
    """)
    e(f"""
    s_lshl_b32 s33, s29, 7
    s_lshl_b32 s34, s56, 5
    s_add_u32 s33, s33, s34
    v_and_b32 v4, 15, v2
    v_add_u32 v4, s33, v4
    v_lshrrev_b32 v5, 4, v2
    v_lshlrev_b32 v5, 15, v5
    v_lshl_add_u32 v9, v4, 4, v5
    """)
    e(f"""
    v_lshlrev_b32 v3, 4, v2
    s_mul_i32 s33, s57, 9216
    v_add_u32 v16, s33, v3
    v_add_u32 v17, {KD_STAGE}, v16
    v_add_u32 v18, {2*KD_STAGE}, v16
    v_add_u32 v19, {3*KD_STAGE}, v16
    """)
    e("s_waitcnt lgkmcnt(0)")
    A.srd_off(8, 26, 27, WS_WDP, F * D * 2)
    A.srd_off(12, 26, 27, WS_HH, S * F * 2)
    A.srd_off(16, 26, 27, WS_PART, FLAG_OFF + 8192)
    A.srd_off(20, 26, 27, WS_H, S * D * 2)
    A.srd(48, 6, 7, S * D * 2)
    e(f"""
    s_lshl_b32 s36, s28, 12
    s_lshl_b32 s33, s31, 2
    s_add_u32 s33, s33, s30
    s_mul_i32 s33, s33, {36*9216}
    s_add_u32 s37, s33, s36
    s_lshl_b32 s25, s28, 10
    s_add_u32 s25, s25, 32768
    s_add_u32 s35, s33, s25
    s_mul_i32 s41, s31, {144*32768}
    s_lshl_b32 s33, s57, 17
    s_add_u32 s41, s41, s33
    """)
    vm = Cnt(A, "vmcnt", 63)
    lg = Cnt(A, "lgkmcnt", 15)
    def dma_ops(c):
        st = c % 4
        def opt():
            lab = A.newlabel("kd_skip")
            e("s_cmp_ge_u32 s28, 4")
            e(f"s_cbranch_scc1 {lab}")
            e(f"s_add_u32 m0, s25, {st*KD_STAGE}")
            e(f"s_add_u32 s38, s35, {c*KD_STAGE}")
            e(f"buffer_load_dwordx4 v3, s[8:11], s38 offen lds")
            A.label(lab)
        ops = [opt, lambda: e(f"s_add_u32 m0, s36, {st*KD_STAGE}"), lambda: e(f"s_add_u32 s38, s37, {c*KD_STAGE}")]
        for i in range(4):
            def ld(i=i):
                e(f"buffer_load_dwordx4 v3, s[8:11], s38 offen offset:{1024*i} lds")
                vm.issue(("W", c))
            ops.append(ld)
        return [("W", c, op) for op in ops]
    def h_ops(sx):
        sr = [40, 58, 59, 24][sx % 4]
        ops = [lambda: e(f"s_add_u32 s{sr}, s41, {sx*8*32768:#x}")]
        for tt in range(2):
            def ld(tt=tt):
                e(f"buffer_load_dwordx4 {v(HR+8*(sx%NH)+4*tt,4)}, v9, s[12:15], s{sr} offen offset:{256*tt}")
                vm.issue(("H", sx))
            ops.append(ld)
        return [("H", sx, op) for op in ops]
    def run_ops(ops):
        for op in ops:
            op[2]()
    def wread_half(h):
        f, hf = divmod(h, 2)
        st_, j = divmod(f, 9)
        c, ks = divmod(st_, 2)
        base = 16 + c % 4
        r = WR + 4 * (f % NW)
        if hf: return
        e(f"ds_read_b128 {v(r,4)}, v{base} offset:{18432*ks + 1024*j}")
        lg.issue(("w", f))
    PRO = KD_PRO
    for c in range(PRO):
        run_ops(dma_ops(c))
        for sx in range(2 * c, min(2 * c + 2, NH)): run_ops(h_ops(sx))
    ST.stamp()
    vm.need(("W", 0))
    e("s_barrier")
    ST.stamp()
    NF = 18 * 9
    AHEAD = 6
    GRP = int(os.environ.get("GRP", "2"))
    pend = []
    for c in range(PRO, max(DW + 1, (NH + 1) // 2)):
        if c <= DW and c < 4: pend += dma_ops(c)
        for sx in range(2 * c, min(2 * c + 2, NH)): pend += h_ops(sx)
    nh = 0
    def flush(kind, idx):
        while any(p[0] == kind and p[1] <= idx for p in pend):
            run_ops([pend.pop(0)])
    def next_read():
        nonlocal nh, pend
        if nh >= 2 * NF: return
        if nh % 36 == 0 and nh > 0:
            c = nh // 36
            lg.drain()
            flush("W", c)
            vm.need(("W", c))
            e("s_barrier")
            ST.stamp()
            if c + DW < 9:
                pend += dma_ops(c + DW)
        wread_half(nh); nh += 1
    for _ in range(2 * AHEAD): next_read()
    for f in range(NF):
        st_, j = divmod(f, 9)
        if j == 0:
            flush("H", st_)
            vm.need(("H", st_))
        if f % GRP == 0:
            lg.need(("w", min(f + GRP - 1, NF - 1)))
        for tt in range(2):
            c_ = v(ACC + 36 * tt + 4 * j, 4)
            src_c = "0" if st_ == 0 else c_
            e(f"v_mfma_f32_16x16x32_bf16 {c_}, {v(WR+4*(f%NW),4)}, {v(HR+8*(st_%NH)+4*tt,4)}, {src_c}")
            next_read()
            if pend and tt == 1:
                pend.pop(0)[2]()
        if j == 8 and st_ + NH < 18:
            pend = h_ops(st_ + NH) + pend
    assert not pend
    ST.stamp()
    e(f"""
    s_mul_i32 s33, s28, 9216
    v_lshlrev_b32 v3, 4, v2
    v_add_u32 v4, s33, v3
    s_xor_b32 s34, s28, 4
    s_mul_i32 s34, s34, 9216
    v_add_u32 v5, s34, v3
    s_barrier
    s_cmp_eq_u32 s57, 0
    s_cbranch_scc1 kd_h0
    """)
    for j in range(9):
        e(f"ds_write_b128 v4, {v(ACC+4*j,4)} offset:{1024*j}")
    for j in range(9):
        for r in range(4):
            e(f"v_mov_b32 v{ACC+4*j+r}, v{ACC+36+4*j+r}")
    e("s_branch kd_hj")
    A.label("kd_h0")
    for j in range(9):
        e(f"ds_write_b128 v4, {v(ACC+36+4*j,4)} offset:{1024*j}")
    A.label("kd_hj")
    e("s_waitcnt lgkmcnt(0)")
    e("s_barrier")
    for j in range(9):
        e(f"ds_read_b128 {v(40+4*j,4)}, v5 offset:{1024*j}")
    e(f"""
    s_lshl_b32 s42, s29, 2
    s_add_u32 s42, s42, s30
    s_lshl_b32 s42, s42, 2
    s_add_u32 s43, s42, s56
    s_lshl_b32 s43, s43, 2
    s_add_u32 s43, s43, s31
    s_mul_i32 s44, s43, 9216
    s_lshl_b32 s33, s57, 8
    s_add_u32 s44, s44, s33
    v_and_b32 v6, 15, v2
    v_lshlrev_b32 v6, 4, v6
    v_bfe_u32 v7, v2, 4, 1
    v_lshl_add_u32 v8, v7, 10, v6
    v_lshrrev_b32 v24, 5, v2
    v_lshl_add_u32 v8, v24, 9, v8
    v_lshl_add_u32 v6, v24, 9, v6
    v_lshl_add_u32 v6, v7, 3, v6
    s_add_u32 s45, s44, 4096
    s_add_u32 s46, s44, 8192
    """)
    for j in range(9):
        e(f"s_waitcnt lgkmcnt({8-j})")
        e(f"v_pk_add_f32 {v(ACC+4*j,2)}, {v(ACC+4*j,2)}, {v(40+4*j,2)}")
        e(f"v_pk_add_f32 {v(ACC+4*j+2,2)}, {v(ACC+4*j+2,2)}, {v(40+4*j+2,2)}")
        O = 80 + 2 * j
        e(f"v_cvt_pk_bf16_f32 v{O}, v{ACC+4*j}, v{ACC+4*j+1}")
        e(f"v_cvt_pk_bf16_f32 v{O+1}, v{ACC+4*j+2}, v{ACC+4*j+3}")
        if j >= 2 and j % 2 == 0:
            jp = j // 2 - 1
            P_ = 80 + 4 * jp
            e(f"v_permlane16_swap_b32 v{P_}, v{P_+2}")
            e(f"v_permlane16_swap_b32 v{P_+1}, v{P_+3}")
            e(f"buffer_store_dwordx4 {v(P_,4)}, v8, s[16:19], s{44+jp//2} offen offset:{2048*(jp%2)} sc1")
    e(f"buffer_store_dwordx2 v[96:97], v6, s[16:19], s46 offen sc1")
    if KD_SEP:
        ST.stamp()
        if ST.on: e("s_waitcnt vmcnt(0)")
        ST.stamp(); ST.real(1)
        ST.dump(8)
        A.label("kd_done")
        e("s_endpgm")
        A.kernel_end(name, 256, 102 if ST.on else 60)
        return
    e(f"""
    v_lshlrev_b32 v20, 4, v0
    v_lshrrev_b32 v4, 5, v0
    v_and_b32 v5, 31, v0
    s_lshl_b32 s33, s29, 7
    s_lshl_b32 s34, s31, 5
    s_add_u32 s33, s33, s34
    v_add_u32 v5, s33, v5
    s_mul_i32 s34, s30, 18
    v_add_u32 v4, s34, v4
    v_lshlrev_b32 v21, 15, v4
    v_lshl_add_u32 v21, v5, 4, v21
    s_movk_i32 s35, 1152
    v_mul_lo_u32 v22, v5, s35
    v_lshl_add_u32 v22, v4, 4, v22
    s_lshl_b32 s45, s43, 1
    s_add_u32 s45, s45, s57
    s_lshl_b32 s45, s45, 2
    s_add_u32 s45, s45, {FLAG_OFF}
    v_mov_b32 v23, 1
    v_mov_b32 v24, 0
    s_add_u32 s46, s42, s31
    s_lshl_b32 s47, s46, 5
    s_add_u32 s47, s47, {FLAG_OFF}
    s_mul_i32 s46, s46, {4*9216}
    v_and_b32 v25, 7, v2
    v_lshlrev_b32 v25, 2, v25
    s_waitcnt vmcnt(0)
    v_cmp_eq_u32 vcc, 0, v2
    s_and_saveexec_b64 s[52:53], vcc
    buffer_store_dword v23, v24, s[16:19], s45 offen sc1
    s_mov_b64 exec, s[52:53]
    """)
    ST.stamp()
    e(f"""
    s_cmp_ge_u32 s28, 5
    s_cbranch_scc1 kd_fin
    v_cmp_gt_u32 vcc, 288, v0
    s_and_saveexec_b64 s[52:53], vcc
    s_mov_b32 s54, {9*32768}
    buffer_load_dwordx4 v[28:31], v21, s[20:23], 0 offen
    buffer_load_dwordx4 v[32:35], v21, s[20:23], s54 offen
    s_mov_b32 s55, 0
    """)
    A.label("kd_poll")
    e(f"""
    buffer_load_dword v26, v25, s[16:19], s47 offen sc1
    s_add_u32 s55, s55, 1
    s_waitcnt vmcnt(0)
    v_cmp_ne_u32 vcc, 1, v26
    s_cmp_ge_u32 s55, 0x40000
    s_cbranch_scc1 kd_go
    s_cbranch_vccnz kd_poll
    """)
    A.label("kd_go")
    for sr in range(4):
        e(f"buffer_load_dwordx4 {v(40+8*sr,4)}, v20, s[16:19], s46 offen sc1")
        e(f"s_add_u32 s54, s46, {288*16}")
        e(f"buffer_load_dwordx4 {v(44+8*sr,4)}, v20, s[16:19], s54 offen sc1")
        e(f"s_add_u32 s46, s46, 9216")
    e("s_mov_b32 s40, 0xffff0000")
    for it in range(2):
        for d in range(4):
            e(f"v_lshlrev_b32 v{104+8*it+2*d}, 16, v{28+4*it+d}")
            e(f"v_and_b32 v{105+8*it+2*d}, s40, v{28+4*it+d}")
    for sr in range(4):
        e(f"s_waitcnt vmcnt({6-2*sr})")
        for it in range(2):
            for d in range(4):
                r = 40 + 8 * sr + 4 * it + d
                e(f"v_lshlrev_b32 v120, 16, v{r}")
                e(f"v_and_b32 v121, s40, v{r}")
                e(f"v_pk_add_f32 {v(104+8*it+2*d,2)}, {v(104+8*it+2*d,2)}, v[120:121]")
    for it in range(2):
        for d in range(4):
            e(f"v_cvt_pk_bf16_f32 v{28+4*it+d}, v{104+8*it+2*d}, v{105+8*it+2*d}")
    e("buffer_store_dwordx4 v[28:31], v22, s[48:51], 0 offen")
    e("buffer_store_dwordx4 v[32:35], v22, s[48:51], 0 offen offset:144")
    e("s_mov_b64 exec, s[52:53]")
    A.label("kd_fin")
    if ST.on: e("s_waitcnt vmcnt(0)")
    ST.stamp(); ST.real(1)
    ST.dump(8)
    A.label("kd_done")
    e("s_endpgm")
    A.kernel_end(name, 256, 102 if ST.on else 60)


def k_e(A):
    name = "ke_kernel"
    A.launch(name, 256, 576, 0)
    A.kernel_begin(name)
    e = A.e
    e(f"""
    s_cmp_ge_u32 s2, 256
    s_cbranch_scc1 ke_done
    s_load_dwordx2 s[6:7], s[0:1], {KA_OUT}
    s_load_dwordx2 s[26:27], s[0:1], {KA_WS}
    s_lshr_b32 s29, s2, 4
    s_bfe_u32 s30, s2, 0x20002
    s_and_b32 s31, s2, 3
    v_lshlrev_b32 v20, 4, v0
    v_lshrrev_b32 v4, 5, v0
    v_and_b32 v5, 31, v0
    s_lshl_b32 s33, s29, 7
    s_lshl_b32 s34, s31, 5
    s_add_u32 s33, s33, s34
    v_add_u32 v5, s33, v5
    s_mul_i32 s34, s30, 18
    v_add_u32 v4, s34, v4
    v_lshlrev_b32 v21, 15, v4
    v_lshl_add_u32 v21, v5, 4, v21
    s_movk_i32 s35, 1152
    v_mul_lo_u32 v22, v5, s35
    v_lshl_add_u32 v22, v4, 4, v22
    s_mul_i32 s46, s2, {4*9216}
    s_waitcnt lgkmcnt(0)
    """)
    A.srd_off(16, 26, 27, WS_PART, FLAG_OFF)
    A.srd_off(20, 26, 27, WS_H, S * D * 2)
    A.srd(8, 6, 7, S * D * 2)
    e("buffer_load_dwordx4 v[28:31], v21, s[20:23], 0 offen")
    for sr in range(4):
        e(f"buffer_load_dwordx4 {v(32+4*sr,4)}, v20, s[16:19], s46 offen")
        e(f"s_add_u32 s46, s46, 9216")
    e("s_mov_b32 s40, 0xffff0000")
    e("s_waitcnt vmcnt(4)")
    for d in range(4):
        e(f"v_lshlrev_b32 v{8+2*d}, 16, v{28+d}")
        e(f"v_and_b32 v{9+2*d}, s40, v{28+d}")
    for sr in range(4):
        e(f"s_waitcnt vmcnt({3-sr})")
        for d in range(4):
            r = 32 + 4 * sr + d
            e(f"v_lshlrev_b32 v16, 16, v{r}")
            e(f"v_and_b32 v17, s40, v{r}")
            e(f"v_pk_add_f32 {v(8+2*d,2)}, {v(8+2*d,2)}, v[16:17]")
    for d in range(4):
        e(f"v_cvt_pk_bf16_f32 v{28+d}, v{8+2*d}, v{9+2*d}")
    e("buffer_store_dwordx4 v[28:31], v22, s[8:11], 0 offen")
    A.label("ke_done")
    e("s_endpgm")
    A.kernel_end(name, 48, 48)

HEADER = open("sequential_preLN__ssm_conv_h3__glu_gated_geglu__prompt.s.ref").read().split("; Override launch")[0]

def main():
    A = Asm()
    k_a(A)
    k_b(A)
    k_c(A)
    if not FUSE: k_d(A)
    if KD_SEP and not (FUSE and FUSE_E): k_e(A)
    A.label("code_end")
    A.e("s_endpgm")
    out = sys.argv[1] if len(sys.argv) > 1 else "k.s"
    open(out, "w").write(A.text(HEADER))

if __name__ == "__main__":
    main()
```

```python
import sys
from asmlib import Asm, v, a, s

S, D, F = 2048, 576, 4608
KA_X, KA_K, KA_V, KA_SK, KA_SSMK, KA_SSMD, KA_BX, KA_WG, KA_WU, KA_WD, KA_OUT, KA_DBG, KA_WS = [8 * i for i in range(13)]
import os
WS_R    = int(os.environ.get("WS_BASE_MB", "0")) << 20
WS_YQ   = WS_R + 576 * 8192
WS_XLN  = WS_YQ + S * D * 2
WS_H    = WS_XLN + S * D * 2
WS_HH   = WS_H + S * D * 2
WS_PART = WS_HH + S * F * 2
WS_XQ   = WS_XLN
WS_ST   = WS_PART + 4 * S * D * 4
WS_ST2  = WS_ST + S * 8
WS_CS   = WS_ST2 + S * 8
WS_WP   = (WS_CS + 12 * F * 4 + 4095) // 4096 * 4096
WS_WDP  = WS_WP + 2 * D * F * 2
WS_MB   = WS_WDP + D * F * 2
WS_END  = WS_MB + 144 * 128

import os
STAMP = os.environ.get("STAMP", "")
SCH = {"1": " sc1", "0": "", "nt": " nt"}[os.environ.get("SCH", "0")]
CODEPF = int(os.environ.get("CODEPF", "1"))
KC_ROT = int(os.environ.get("KC_ROT", "0"))
FUSE = int(os.environ.get("FUSE", "1"))
FUSE_E = int(os.environ.get("FUSE_E", "1"))
SENT = int(os.environ.get("SENT", "0"))
SENTW = int(os.environ.get("SENTW", "2"))
FUSE_AB = int(os.environ.get("FUSE_AB", "1"))
NP1 = int(os.environ.get("NP1", "3"))
SCP = {"1": " sc1", "0": "", "nt": " nt"}[os.environ.get("SCP", "1")]
KC_MAP = int(os.environ.get("KC_MAP", "1"))
KD_ROT = int(os.environ.get("KD_ROT", "0"))
KD_PRO = int(os.environ.get("KD_PRO", "2"))
KD_SEP = int(os.environ.get("KD_SEP", "1"))
KD_TOUCH = int(os.environ.get("KD_TOUCH", "0"))
KD_TDIST = int(os.environ.get("KD_TDIST", "5"))
WS_STAMP = WS_END + 4096
class Stamps:
    def __init__(self, A, on):
        self.A, self.on, self.n = A, on, 0
    def stamp(self):
        if not self.on or getattr(self, "mute", False): return
        assert self.n < 14
        op = "s_memrealtime" if os.environ.get("RT") else "s_memtime"
        self.A.e(f"{op} s[{72+2*self.n}:{73+2*self.n}]")
        self.n += 1
    def real(self, idx):
        if not self.on: return
        pass
    def dump(self, nwaves, wave_sgpr="s28"):
        if not self.on: return
        e = self.A.e
        e("s_waitcnt vmcnt(0) lgkmcnt(0)")
        self.A.srd_off(60, 26, 27, WS_STAMP, 1 << 20)
        e(f"s_mul_i32 s100, s2, {nwaves}")
        e(f"s_add_u32 s100, s100, {wave_sgpr}")
        e("s_lshl_b32 s100, s100, 7")
        e("v_mov_b32 v1, 0")
        for i in range(16):
            src_ = 72 + 2 * i if i < 14 else (72 if i == 14 else 98)
            e(f"v_mov_b32 v2, s{src_}")
            e(f"buffer_store_dword v2, v1, s[60:63], s100 offen offset:{4*i}")
        e("s_waitcnt vmcnt(0)")

class Cnt:
    def __init__(self, A, name, maxv):
        self.A, self.name, self.maxv = A, name, maxv
        self.q = []
        self.total = 0
    def issue(self, tag):
        self.q.append(tag)
        self.total += 1
    def need(self, tag):
        if tag not in self.q:
            return
        idx = len(self.q) - 1 - self.q[::-1].index(tag)
        n = len(self.q) - 1 - idx
        assert n <= self.maxv, (self.name, n)
        self.A.e(f"s_waitcnt {self.name}({n})")
        self.q = self.q[idx + 1:]
    def drain(self):
        if self.q:
            self.A.e(f"s_waitcnt {self.name}(0)")
            self.q = []

import struct, math
def fbits(x):
    return struct.unpack("<I", struct.pack("<f", x))[0]

def dpp_sum16(A, r):
    for sh in (8, 4, 2, 1):
        A.e("s_nop 1")
        A.e(f"v_add_f32_dpp v{r}, v{r}, v{r} row_ror:{sh} row_mask:0xf bank_mask:0xf")


def emit_w_packer(A, pfx, row0, nrows, fin, halves=False, ksplit=False):
    e = A.e
    nph = nrows // 96
    e(f"""
    s_load_dwordx4 s[4:7], s[0:1], {KA_WG}
    v_lshrrev_b32 v1, 6, v0
    v_and_b32 v2, 63, v0
    v_lshlrev_b32 v3, 4, v2
    v_readfirstlane_b32 s28, v1
    """)
    if halves:
        e(f"""
        v_and_b32 v0, 255, v0
        s_lshr_b32 s29, s28, 2
        s_and_b32 s28, s28, 3
        s_mul_i32 s48, s29, {nph*18432}
        """)
        if ksplit:
            e(f"s_mul_i32 s49, s29, {nph}")
        else:
            e("s_lshl_b32 s2, s2, 1")
            e("s_add_u32 s2, s2, s29")
            e("s_mov_b32 s49, 0")
    else:
        e("s_mov_b32 s48, 0")
        e("s_mov_b32 s49, 0")
    e(f"""
    s_cmp_ge_u32 s2, 48
    s_cselect_b32 s30, 1, 0
    s_mul_i32 s31, s30, 48
    s_sub_u32 s31, s2, s31
    s_movk_i32 s34, 5462
    s_movk_i32 s35, 9216
    """)
    for i in range(5):
        e(f"v_add_u32 v4, {256*i}, v0")
        e(f"v_mul_lo_u32 v5, v4, s34")
        e(f"v_lshrrev_b32 v5, 16, v5")
        e(f"v_mul_u32_u24 v6, 12, v5")
        e(f"v_sub_u32 v6, v4, v6")
        e(f"v_mul_lo_u32 v5, v5, s35")
        e(f"v_lshl_add_u32 v{10+i}, v6, 4, v5")
    e(f"""
    s_mul_i32 s32, s31, 192
    s_add_u32 s32, s32, {row0*9216}
    s_mul_i32 s33, s49, {96*9216}
    s_add_u32 s32, s32, s33
    s_lshl_b32 s33, s28, 10
    s_add_u32 s33, s33, s48
    s_waitcnt lgkmcnt(0)
    s_cmp_eq_u32 s30, 0
    s_cselect_b32 s8, s4, s6
    s_cselect_b32 s9, s5, s7
    s_mov_b32 s10, {D*F*2:#x}
    s_mov_b32 s11, 0x00020000
    """)
    A.srd_off(12, 26, 27, WS_CS, 12 * F * 4)
    A.srd_off(16, 26, 27, WS_WP, 2 * D * F * 2)
    for ph in range(nph):
        lab = A.newlabel(pfx + "_sk")
        e("s_cmp_ge_u32 s28, 2")
        e(f"s_cbranch_scc1 {lab}")
        e(f"s_add_u32 m0, s33, {18432*ph + 4096*4}")
        e("s_nop 0")
        e(f"buffer_load_dwordx4 v14, s[8:11], s32 offen lds")
        A.label(lab)
        for i in range(4):
            e(f"s_add_u32 m0, s33, {18432*ph + 4096*i}")
            e("s_nop 0")
            e(f"buffer_load_dwordx4 v{10+i}, s[8:11], s32 offen lds")
        e(f"s_add_u32 s32, s32, {96*9216}")
    e(f"""
    v_lshrrev_b32 v4, 4, v2
    v_lshlrev_b32 v4, 3, v4
    v_bfe_u32 v5, v2, 2, 2
    v_add_u32 v4, v4, v5
    v_mul_u32_u24 v4, 192, v4
    v_and_b32 v5, 3, v2
    v_lshl_add_u32 v4, v5, 3, v4
    v_add_u32 v4, s48, v4
    v_mov_b32 v7, 0x3f803f80
    v_lshlrev_b32 v9, 2, v2
    v_cmp_gt_u32 s[46:47], 16, v2
    s_mov_b32 s36, s28
    s_mov_b32 s45, 0
    """)
    for half in range((nph + 1) // 2):
        later = 4 * max(nph - 2, 0)
        e(f"s_waitcnt vmcnt({later})" if half == 0 else "s_waitcnt vmcnt(12)")
        e("s_barrier")
        lab = f"{pfx}_su{half}"
        A.label(lab)
        e(f"""
        s_mul_i32 s38, s36, 43
        s_lshr_b32 s38, s38, 8
        s_mul_i32 s37, s38, 6
        s_sub_u32 s37, s36, s37
        s_lshl_b32 s40, s37, 5
        s_mul_i32 s44, s38, 18432
        s_add_u32 s40, s40, s44
        v_add_u32 v5, s40, v4
        s_mul_i32 s39, s31, 6
        s_add_u32 s39, s39, s37
        """)
        for s_ in range(3):
            e(f"ds_read_b64_tr_b16 {v(16+4*s_,2)}, v5 offset:{32*192*s_}")
            e(f"ds_read_b64_tr_b16 {v(18+4*s_,2)}, v5 offset:{32*192*s_+4*192}")
        e(f"""
        s_mul_i32 s40, s39, 7282
        s_lshr_b32 s40, s40, 16
        s_mul_i32 s41, s40, 9
        s_sub_u32 s41, s39, s41
        s_cmp_lt_u32 s41, {NP1}
        s_cselect_b32 s42, 2, 36
        s_cselect_b32 s43, {2*NP1}, 2
        s_lshl_b32 s43, s43, 10
        s_mul_i32 s42, s42, s41
        s_mul_i32 s40, s40, 324
        s_add_u32 s42, s42, s40
        s_add_u32 s42, s42, s30
        s_lshl_b32 s42, s42, 10
        s_add_u32 s44, s38, {row0//96}
        s_add_u32 s44, s44, s49
        s_mul_i32 s40, s44, 3
        s_mul_i32 s40, s40, s43
        s_add_u32 s42, s42, s40
        s_lshl_b32 s44, s44, 1
        s_add_u32 s44, s44, s30
        s_mul_i32 s44, s44, {F*4}
        s_lshl_b32 s40, s39, 6
        s_add_u32 s44, s44, s40
        v_mov_b32 v6, 0
        """)
        for s_ in range(3):
            e(f"s_waitcnt lgkmcnt({2*(2-s_)})")
            if os.environ.get("PACKST", "1") == "1": e(f"buffer_store_dwordx4 {v(16+4*s_,4)}, v3, s[16:19], s42 offen{SCP}")
            e("s_add_u32 s42, s42, s43")
            for d in range(4):
                e(f"v_dot2_f32_bf16 v6, v{16+4*s_+d}, v7, v6")
        e("s_nop 2")
        for op in ("v_permlane32_swap_b32", "v_permlane16_swap_b32"):
            e("v_mov_b32 v8, v6")
            e("s_nop 1")
            e(f"{op} v6, v8")
            e("v_add_f32 v6, v6, v8")
        e(f"""
        s_mov_b64 exec, s[46:47]
        buffer_store_dword v6, v9, s[12:15], s44 offen
        s_mov_b64 exec, -1
        s_add_u32 s36, s36, 4
        s_cmp_lt_u32 s36, {min(12*(half+1), 6*nph)}
        s_cbranch_scc1 {lab}
        """)
    fin()

def k_a(A):
    name = "ka_kernel"
    A.launch(name, 288 + 128 + 96, 256, 36864)
    A.kernel_begin(name)
    e = A.e
    ST = Stamps(A, STAMP == "ka")
    ST.stamp(); ST.real(0)
    if ST.on:
        e("v_lshrrev_b32 v1, 6, v0")
        e("s_nop 0")
        e("v_readfirstlane_b32 s59, v1")
    def fin():
        if not ST.on: return
        n0 = ST.n
        ST.n = 12
        ST.stamp()
        e("s_waitcnt vmcnt(0)")
        ST.stamp(); ST.real(1)
        e("s_mov_b64 exec, -1")
        ST.dump(4, "s59")
        ST.n = n0
    e(f"""
    s_cmp_ge_u32 s2, {288+128+96}
    s_cbranch_scc1 ka_done
    s_cmp_ge_u32 s2, {288+128}
    s_cbranch_scc1 ka_pack
    s_load_dwordx4 s[4:7], s[0:1], {KA_K}
    s_load_dwordx2 s[24:25], s[0:1], {KA_SK}
    s_load_dwordx2 s[26:27], s[0:1], {KA_WS}
    s_load_dwordx2 s[38:39], s[0:1], {KA_X}
    s_cmp_ge_u32 s2, 288
    s_cbranch_scc1 ka_stats
    s_and_b32 s28, s2, 31
    s_lshr_b32 s29, s2, 5
    s_lshl_b32 s30, s28, 6
    v_lshrrev_b32 v1, 3, v0
    v_and_b32 v2, 7, v0
    v_lshlrev_b32 v3, 1, v1
    v_add_u32 v3, s30, v3
    s_movk_i32 s31, 1152
    v_mul_lo_u32 v4, v3, s31
    s_lshl_b32 s32, s29, 7
    v_lshlrev_b32 v5, 4, v2
    v_add3_u32 v4, v4, v5, s32
    """)
    for r in range(6):
        e(f"v_add_u32 v{10+r}, {(r-4)*1152 & 0xffffffff:#x}, v4")
    e(f"""
    s_lshl_b32 s33, s29, 9
    v_lshlrev_b32 v6, 6, v2
    v_add_u32 v6, s33, v6
    s_waitcnt lgkmcnt(0)
    """)
    A.srd(8, 4, 5, S * D * 2)
    A.srd(12, 6, 7, S * D * 2)
    A.srd(16, 24, 25, D * 8)
    A.srd_off(20, 26, 27, WS_R, 576 * 8192)
    A.srd_off(40, 26, 27, WS_PART + 4 * S * D * 2, 8192 + 1024 + 32768)
    e("""
    s_lshl_b32 s36, s2, 10
    v_lshlrev_b32 v8, 2, v0
    v_mov_b32 v9, 0
    buffer_store_dword v9, v8, s[40:43], s36 offen
    """)
    for r in range(6):
        e(f"buffer_load_dwordx4 {v(16+4*r,4)}, v{10+r}, s[8:11], 0 offen")
    for r in range(3):
        e(f"buffer_load_dwordx4 {v(40+4*r,4)}, v{13+r}, s[12:15], 0 offen")
    for r in range(4):
        e(f"buffer_load_dwordx4 {v(52+4*r,4)}, v6, s[16:19], 0 offen offset:{16*r}")
    e(f"""
    v_sub_u32 v7, 31, v1
    v_lshlrev_b32 v8, 2, v2
    v_xor_b32 v7, v7, v8
    v_lshlrev_b32 v7, 2, v7
    v_lshl_add_u32 v7, v2, 10, v7
    s_mov_b32 s34, 0xffff0000
    """)
    ST.stamp()
    e("s_waitcnt vmcnt(0)")
    ST.stamp()
    e(f"""
    """)
    for ch in range(8):
        d, hi = ch >> 1, ch & 1
        def unp(dst, src):
            if hi: e(f"v_and_b32 v{dst}, s34, v{src}")
            else:  e(f"v_lshlrev_b32 v{dst}, 16, v{src}")
        for r in range(6): unp(70 + r, 16 + 4 * r + d)
        for r in range(3): unp(76 + r, 40 + 4 * r + d)
        sk = 52 + 2 * ch
        e(f"v_lshlrev_b32 v80, 16, v{sk}")
        e(f"v_and_b32 v81, s34, v{sk}")
        e(f"v_lshlrev_b32 v82, 16, v{sk+1}")
        e(f"v_and_b32 v83, s34, v{sk+1}")
        for r in range(3):
            e(f"v_mul_f32 v{84+r}, v{70+r}, v83")
        for r in range(3):
            e(f"v_fmac_f32 v{84+r}, v{71+r}, v82")
        for r in range(3):
            e(f"v_fmac_f32 v{84+r}, v{72+r}, v81")
        for r in range(3):
            e(f"v_fmac_f32 v{84+r}, v{73+r}, v80")
        for r in range(3):
            e(f"v_mul_f32 v{84+r}, v{84+r}, v{76+r}")
        e(f"v_cvt_pk_bf16_f32 v{88+2*(ch&1)}, v85, v84")
        e(f"v_cvt_pk_bf16_f32 v{89+2*(ch&1)}, v86, v85")
        e(f"ds_write_b32 v7, v{88+2*(ch&1)} offset:{ch*128}")
        e(f"ds_write_b32 v7, v{89+2*(ch&1)} offset:{8192+ch*128}")
    ST.stamp()
    e(f"""
    v_lshrrev_b32 v8, 6, v0
    v_xor_b32 v9, v2, v8
    v_lshlrev_b32 v9, 4, v9
    v_lshl_add_u32 v9, v1, 7, v9
    v_xor_b32 v10, 64, v9
    s_lshl_b32 s35, s29, 19
    s_sub_u32 s36, 1984, s30
    s_lshl_b32 s36, s36, 1
    s_add_u32 s35, s35, s36
    v_lshlrev_b32 v11, 13, v1
    v_add3_u32 v11, v11, v5, s35
    v_add_u32 v12, 0x40000, v11
    s_waitcnt lgkmcnt(0)
    s_barrier
    ds_read_b128 v[16:19], v9
    ds_read_b128 v[20:23], v10 offset:4096
    ds_read_b128 v[24:27], v9 offset:8192
    ds_read_b128 v[28:31], v10 offset:12288
    s_movk_i32 s37, 0x1000
    s_waitcnt lgkmcnt(3)
    buffer_store_dwordx4 v[16:19], v11, s[20:23], 0 offen{SCP}
    s_waitcnt lgkmcnt(2)
    buffer_store_dwordx4 v[20:23], v12, s[20:23], 0 offen{SCP}
    s_waitcnt lgkmcnt(1)
    buffer_store_dwordx4 v[24:27], v11, s[20:23], s37 offen{SCP}
    s_waitcnt lgkmcnt(0)
    buffer_store_dwordx4 v[28:31], v12, s[20:23], s37 offen{SCP}
    """)
    fin()
    e("s_endpgm")
    A.label("ka_stats")
    if CODEPF:
        e("s_getpc_b64 s[12:13]")
        A.label("ka_pc")
        e("""
        s_sub_u32 s12, s12, ka_pc-ka_kernel
        s_subb_u32 s13, s13, 0
        s_mov_b32 s14, code_end-ka_kernel
        s_mov_b32 s15, 0x00020000
        s_sub_u32 s28, s2, 288
        s_lshl_b32 s28, s28, 10
        v_lshlrev_b32 v6, 2, v0
        buffer_load_dword v7, v6, s[12:15], s28 offen
        """)
    e(f"""
    s_sub_u32 s28, s2, 288
    s_lshl_b32 s28, s28, 4
    v_lshrrev_b32 v1, 4, v0
    v_add_u32 v1, s28, v1
    v_and_b32 v2, 15, v0
    s_movk_i32 s29, 1152
    v_mul_lo_u32 v3, v1, s29
    v_lshl_add_u32 v3, v2, 3, v3
    v_lshlrev_b32 v4, 3, v1
    s_waitcnt lgkmcnt(0)
    """)
    A.srd(40, 38, 39, S * D * 2)
    A.srd_off(44, 26, 27, WS_ST, 2 * S * 8)
    XR, XF = 16, 34
    for i in range(9):
        e(f"buffer_load_dwordx2 {v(XR+2*i,2)}, v3, s[40:43], 0 offen offset:{128*i}")
    A.srd_off(8, 26, 27, WS_XQ, S * D * 2)
    e("v_lshl_add_u32 v5, v2, 14, v4")
    e("s_mov_b32 s30, 0xffff0000")
    e(f"s_mov_b32 s31, {fbits(1.0/576):#x}")
    e(f"s_mov_b32 s32, {fbits(1e-5):#x}")
    e("s_mov_b32 s33, 0")
    e("s_waitcnt vmcnt(0)")
    for i in range(9):
        e(f"buffer_store_dwordx2 {v(XR+2*i,2)}, v5, s[8:11], s33 offen")
        e(f"s_add_u32 s33, s33, {16*16384}")
    for d in range(18):
        e(f"v_lshlrev_b32 v{XF+2*d}, 16, v{XR+d}")
        e(f"v_and_b32 v{XF+2*d+1}, s30, v{XR+d}")
    e(f"v_pk_add_f32 v[8:9], {v(XF,2)}, {v(XF+2,2)}")
    e(f"v_pk_add_f32 v[10:11], {v(XF+4,2)}, {v(XF+6,2)}")
    for i in range(2, 9):
        e(f"v_pk_add_f32 v[8:9], v[8:9], {v(XF+4*i,2)}")
        e(f"v_pk_add_f32 v[10:11], v[10:11], {v(XF+4*i+2,2)}")
    e("v_pk_add_f32 v[8:9], v[8:9], v[10:11]")
    e("v_add_f32 v8, v8, v9")
    dpp_sum16(A, 8)
    e("v_mul_f32 v8, s31, v8")
    for i in range(18):
        e(f"v_pk_add_f32 {v(XF+2*i,2)}, {v(XF+2*i,2)}, v[8:9] op_sel_hi:[1,0] neg_lo:[0,1] neg_hi:[0,1]")
    e(f"v_pk_mul_f32 v[10:11], {v(XF,2)}, {v(XF,2)}")
    e(f"v_pk_mul_f32 v[12:13], {v(XF+2,2)}, {v(XF+2,2)}")
    for i in range(1, 9):
        e(f"v_pk_fma_f32 v[10:11], {v(XF+4*i,2)}, {v(XF+4*i,2)}, v[10:11]")
        e(f"v_pk_fma_f32 v[12:13], {v(XF+4*i+2,2)}, {v(XF+4*i+2,2)}, v[12:13]")
    e("v_pk_add_f32 v[10:11], v[10:11], v[12:13]")
    e("v_add_f32 v9, v10, v11")
    dpp_sum16(A, 9)
    e("v_mov_b32 v10, s32")
    e("v_fmac_f32 v10, s31, v9")
    e("v_rsq_f32 v9, v10")
    e("v_cmp_eq_u32 vcc, 0, v2")
    e("s_and_saveexec_b64 s[34:35], vcc")
    e("buffer_store_dwordx2 v[8:9], v4, s[44:47], 0 offen")
    e("v_mov_b32 v10, -1")
    e("v_mov_b32 v11, -1")
    e(f"s_movk_i32 s33, {S*8}")
    e("buffer_store_dwordx2 v[10:11], v4, s[44:47], s33 offen")
    fin()
    e("s_endpgm")
    A.label("ka_pack")
    e(f"s_load_dwordx2 s[26:27], s[0:1], {KA_WS}")
    if ST.on: e("s_mov_b32 s58, s2")
    e(f"s_sub_u32 s2, s2, {288+128}")
    def fin2():
        if ST.on: e("s_mov_b32 s2, s58")
        fin()
    emit_w_packer(A, "ka", 0, 192, fin2)
    A.label("ka_done")
    e("s_endpgm")
    A.kernel_end(name, 100, 102 if ST.on else 52)

KB_CH = 25920
KB_KC = 4160
KB_RO = 16640
KB_RC = 4640
def k_b(A):
    name = "kb_kernel"
    A.launch(name, 240, 256, 4 * KB_CH)
    A.kernel_begin(name)
    e = A.e
    ST = Stamps(A, STAMP == "kb")
    ST.stamp(); ST.real(0)
    if ST.on:
        e("v_lshrrev_b32 v1, 6, v0")
        e("s_nop 0")
        e("v_readfirstlane_b32 s59, v1")
    def fin():
        if not ST.on: return
        n0 = ST.n
        ST.n = 12
        ST.stamp()
        e("s_waitcnt vmcnt(0)")
        ST.stamp(); ST.real(1)
        e("s_mov_b64 exec, -1")
        ST.dump(4, "s59")
        ST.n = n0
    e(f"""
    s_cmp_ge_u32 s2, 240
    s_cbranch_scc1 kb_done
    s_load_dwordx2 s[26:27], s[0:1], {KA_WS}
    s_cmp_ge_u32 s2, 144
    s_cbranch_scc1 kb_side
    s_load_dwordx4 s[4:7], s[0:1], {KA_SSMK}
    v_lshrrev_b32 v1, 6, v0
    v_and_b32 v2, 63, v0
    s_nop 0
    v_readfirstlane_b32 s28, v1
    s_nop 3
    s_lshl_b32 s29, s2, 2
    s_add_u32 s29, s29, s28
    s_mul_i32 s30, s28, {KB_CH}
    s_lshl_b32 s31, s29, 12
    s_lshl_b32 s32, s29, 13
    s_add_u32 s32, s32, {WS_R}
    s_lshl_b32 s33, s2, 14
    s_add_u32 s33, s33, {WS_XQ}
    s_lshr_b32 s34, s29, 1
    s_lshl_b32 s34, s34, 2
    v_lshlrev_b32 v3, 4, v2
    s_waitcnt lgkmcnt(0)
    """)
    A.srd_off(8, 4, 5, "s31", 4096)
    A.srd_off(12, 26, 27, "s32", 8192)
    A.srd_off(16, 26, 27, "s33", 16384)
    A.srd_off(20, 26, 27, WS_ST, S * 8)
    e("s_lshr_b32 s33, s2, 1")
    e("s_lshl_b32 s33, s33, 15")
    e(f"s_add_u32 s33, s33, {WS_H}")
    A.srd_off(44, 26, 27, "s33", 32768)
    e(f"""
    s_add_u32 s6, s6, s34
    s_addc_u32 s7, s7, 0
    s_load_dword s35, s[6:7], 0
    """)
    vm = Cnt(A, "vmcnt", 63)
    e(f"""
    v_lshrrev_b32 v4, 4, v2
    v_and_b32 v5, 15, v2
    v_add_u32 v6, v4, v5
    v_add_u32 v6, -15, v6
    v_lshlrev_b32 v6, 2, v6
    buffer_load_dword v7, v6, s[8:11], 0 offen
    """)
    vm.issue("front")
    for p in range(2):
        e(f"s_add_u32 s36, s30, {KB_RO + p * KB_RC}")
        e(f"s_mov_b32 m0, s36")
        e(f"s_movk_i32 s37, {p * 4096}")
        for b in range(4):
            e(f"buffer_load_dwordx4 v3, s[12:15], s37 offen offset:{b*1024} lds")
            vm.issue("R")
    late = []
    def kdma(b, c):
        e(f"s_add_u32 m0, s30, {c * KB_KC + 64}")
        e(f"s_movk_i32 s37, {4 * c + 4}")
        e(f"buffer_load_dwordx4 v3, s[8:11], s37 offen offset:{b*1024} lds")
        vm.issue(f"K{b}")
    for b in range(4):
        for c in range(4):
            if b <= 1: kdma(b, c)
            else: late.append((f"K{b}", lambda b=b, c=c: kdma(b, c)))
    e("v_lshlrev_b32 v18, 4, v0")
    def xsld(r):
        e(f"s_movk_i32 s37, {4096*r}")
        e(f"buffer_load_dwordx4 {v(80+8*r,4)}, v18, s[16:19], s37 offen")
        e(f"buffer_load_dwordx4 {v(84+8*r,4)}, v18, s[20:23], s37 offen")
        vm.issue("xs"); vm.issue("xs")
    for r in range(4): late.append(("xs", lambda r=r: xsld(r)))
    e(f"""
    s_movk_i32 s38, {KB_KC}
    v_mul_lo_u32 v8, v4, s38
    v_lshl_add_u32 v8, v5, 2, v8
    v_add_u32 v8, s30, v8
    v_lshrrev_b32 v9, 5, v2
    s_movk_i32 s38, {KB_RC}
    v_mul_lo_u32 v9, v9, s38
    v_and_b32 v10, 31, v2
    v_lshl_add_u32 v9, v10, 4, v9
    s_add_u32 s39, s30, {KB_RO + 4096}
    v_add_u32 v9, s39, v9
    v_mov_b32 v12, 0
    v_mov_b32 v13, 0
    v_mov_b32 v14, 0
    v_mov_b32 v15, 0
    ds_write_b128 v9, v[12:15]
    """)
    e(f"""
    v_and_b32 v10, 3, v5
    s_movk_i32 s38, {KB_KC}
    v_mul_lo_u32 v10, v10, s38
    v_lshrrev_b32 v11, 2, v5
    v_add_u32 v11, v11, v4
    v_lshl_add_u32 v10, v11, 4, v10
    v_add_u32 v10, s30, v10
    """)
    e(f"""
    v_and_b32 v11, 1, v5
    s_movk_i32 s38, {KB_RC}
    v_mul_lo_u32 v11, v11, s38
    v_lshrrev_b32 v16, 1, v5
    v_lshlrev_b32 v16, 2, v16
    v_sub_u32 v16, v4, v16
    v_add_u32 v16, 28, v16
    v_lshl_add_u32 v11, v16, 4, v11
    s_add_u32 s39, s30, {KB_RO}
    v_add_u32 v11, s39, v11
    """)
    e(f"""
    s_waitcnt lgkmcnt(0)
    s_and_b32 s40, s29, 1
    s_lshl_b32 s40, s40, 4
    s_lshr_b32 s35, s35, s40
    s_and_b32 s35, s35, 0xffff
    v_lshl_add_u32 v16, v4, 2, v5
    v_mov_b32 v17, s35
    """)
    for d in range(4):
        e(f"v_cmp_eq_u32 vcc, {15-d}, v16")
        e("s_nop 1")
        e(f"v_cndmask_b32 v{20+d}, 0, v17, vcc")
    ST.stamp()
    vm.need("front")
    e("ds_write_b32 v8, v7")
    vm.need("K0")
    e("s_waitcnt lgkmcnt(0)")
    ST.stamp()
    ACC = 32
    BR = 64
    NB = 4
    AR = 112
    lg = Cnt(A, "lgkmcnt", 15)
    groups = []
    for ph in range(2):
        for r in range(8):
            groups.append([r + 8 * u for u in range(4 * ph, 4 * ph + 4)])
    mf = []
    for g, il in enumerate(groups):
        for i in il:
            for j in range(7, (i >> 3) - 1, -1):
                mf.append((g, i, j))
    def areg(g, q):
        return AR + 32 * (g & 1) + 4 * ((q + 7) >> 3)
    reads = []
    seen = set()
    bidx = {}
    for x, (g, i, j) in enumerate(mf):
        if ("B", i) not in seen:
            seen.add(("B", i)); bidx[i] = len(bidx); reads.append((("B", i), x))
        t = ("A", g, 8 * j - i)
        if t not in seen:
            seen.add(t); reads.append((t, x))
    last_use = {}
    for x, (g, i, j) in enumerate(mf):
        last_use[("B", i)] = x; last_use[("G", g)] = x
    border = sorted(bidx, key=lambda i: bidx[i])
    rp = 0
    LOOK = 14
    def can_issue(tag, x):
        if tag[0] == "B":
            k = bidx[tag[1]]
            return k < NB or last_use[("B", border[k - NB])] < x
        g = tag[1]
        return g < 2 or last_use[("G", g - 2)] < x
    def issue_read(tag):
        if tag[0] == "B":
            idx = tag[1]
            blk = min(3, max(0, (4 * idx + 6 - 4) // 64))
            while any(t == f"K{blk}" for t, _ in late): late.pop(0)[1]()
            vm.need(f"K{blk}")
            e(f"ds_read_b128 {v(BR + 4 * (bidx[idx] % NB), 4)}, v10 offset:{64 * idx}")
        else:
            e(f"ds_read_b128 {v(areg(tag[1], tag[2]), 4)}, v11 offset:{64 * (56 - tag[2])}")
        lg.issue(tag)
    started = set()
    while rp < 9:
        issue_read(reads[rp][0]); rp += 1
    for x, (g, i, j) in enumerate(mf):
        if j == 7 and i in (2, 4, 32, 36): ST.stamp()
        while rp < len(reads) and reads[rp][1] <= x:
            issue_read(reads[rp][0]); rp += 1
        lg.need(("B", i)); lg.need(("A", g, 8 * j - i))
        c = v(ACC + 4 * j, 4)
        aq = v(areg(g, 8 * j - i), 4)
        if j not in started:
            started.add(j)
            e(f"v_mfma_f32_16x16x32_bf16 {c}, {aq}, v[20:23], 0")
        e(f"v_mfma_f32_16x16x32_bf16 {c}, {aq}, {v(BR+4*(bidx[i]%NB),4)}, {c}")
        if rp < len(reads) and reads[rp][1] <= x + LOOK and len(lg.q) < 14 and can_issue(reads[rp][0], x + 1):
            issue_read(reads[rp][0]); rp += 1
        elif late and x % 4 == 3: late.pop(0)[1]()
    assert rp == len(reads) and not late
    ST.stamp()
    e(f"""
    v_lshlrev_b32 v16, 7, v4
    v_lshl_add_u32 v16, v5, 2, v16
    v_add_u32 v16, s30, v16
    s_nop 7
    """)
    for j in range(8):
        c = ACC + 4 * j
        e(f"v_cvt_pk_bf16_f32 v{c}, v{c}, v{c+1}")
        e(f"v_cvt_pk_bf16_f32 v{c+1}, v{c+2}, v{c+3}")
        e(f"ds_write_b32 v16, v{c} offset:{512*j}")
        e(f"ds_write_b32 v16, v{c+1} offset:{512*j+64}")
    e(f"""
    v_lshlrev_b32 v17, 2, v0
    v_lshlrev_b32 v18, 5, v0
    s_and_b32 s40, s2, 1
    s_lshl_b32 s40, s40, 3
    v_add_u32 v18, s40, v18
    s_mov_b32 s41, 0xffff0000
    v_add_u32 v19, {2*KB_CH}, v17
    s_waitcnt lgkmcnt(0)
    s_barrier
    """)
    ST.stamp()
    for r in range(4):
        for ch in range(4):
            base = "v17" if ch < 2 else "v19"
            e(f"ds_read_b32 v{64+4*r+ch}, {base} offset:{(ch&1)*KB_CH + 1024*r}")
    e("s_waitcnt vmcnt(0)")
    for r in range(4):
        e(f"s_waitcnt lgkmcnt({12-4*r})")
        Y = 64 + 4 * r; X = 80 + 8 * r; M = 84 + 8 * r
        for tq in range(2):
            for d in range(2):
                e(f"v_lshlrev_b32 v{32+2*d}, 16, v{X+2*tq+d}")
                e(f"v_and_b32 v{33+2*d}, s41, v{X+2*tq+d}")
            for ch in range(4):
                if tq == 0: e(f"v_lshlrev_b32 v{36+ch}, 16, v{Y+ch}")
                else: e(f"v_and_b32 v{36+ch}, s41, v{Y+ch}")
            mp = v(M + 2 * tq, 2)
            for p in range(2):
                e(f"v_pk_mul_f32 {v(36+2*p,2)}, {v(36+2*p,2)}, {mp} op_sel:[0,1] op_sel_hi:[1,1]")
                e(f"v_pk_add_f32 {v(40+2*p,2)}, {v(32+2*p,2)}, {mp} op_sel_hi:[1,0] neg_lo:[0,1] neg_hi:[0,1]")
            for p in range(2):
                e(f"v_pk_fma_f32 {v(32+2*p,2)}, {v(40+2*p,2)}, {v(36+2*p,2)}, {v(32+2*p,2)}")
            O = 44 + 4 * (r & 1) + 2 * tq
            e(f"v_cvt_pk_bf16_f32 v{O}, v32, v33")
            e(f"v_cvt_pk_bf16_f32 v{O+1}, v34, v35")
            e(f"s_movk_i32 s37, {8192*r}")
            e(f"buffer_store_dwordx2 {v(O,2)}, v18, s[44:47], s37 offen offset:{16*tq}{SCH}")
    fin()
    e("s_endpgm")
    A.label("kb_side")
    if ST.on: e("s_mov_b32 s58, s2")
    e("s_sub_u32 s2, s2, 144")
    def fin2():
        if ST.on: e("s_mov_b32 s2, s58")
        fin()
    emit_w_packer(A, "kb", 192, 384, fin2)
    A.label("kb_done")
    e("s_endpgm")
    A.kernel_end(name, 176, 102 if ST.on else 52)

def k_ab(A):
    name = "ka_kernel"
    TS = 4 * KB_CH
    A.launch(name, 256, 512, 147456)
    A.kernel_begin(name)
    e = A.e
    ST = Stamps(A, STAMP == "ka")
    ST.stamp(); ST.real(0)
    if ST.on:
        e("v_lshrrev_b32 v1, 6, v0")
        e("s_nop 0")
        e("v_readfirstlane_b32 s101, v1")
        e("s_mov_b32 s3, s2")
    def fin():
        if not ST.on: return
        n0 = ST.n
        ST.n = 12
        ST.stamp()
        e("s_waitcnt vmcnt(0)")
        ST.stamp(); ST.real(1)
        e("s_mov_b64 exec, -1")
        e("s_mov_b32 s2, s3")
        ST.dump(8, "s101")
        ST.n = n0
    e(f"""
    s_cmp_ge_u32 s2, 256
    s_cbranch_scc1 ka_done
    s_load_dwordx2 s[26:27], s[0:1], {KA_WS}
    s_cmp_ge_u32 s2, 208
    s_cbranch_scc1 ka_pack0
    s_load_dwordx2 s[50:51], s[0:1], {KA_DBG}
    s_load_dwordx2 s[38:39], s[0:1], {KA_X}
    s_cmp_ge_u32 s2, 144
    s_cbranch_scc1 ka_stats
    s_load_dwordx4 s[4:7], s[0:1], {KA_K}
    s_load_dwordx2 s[24:25], s[0:1], {KA_SK}
    s_load_dwordx4 s[64:67], s[0:1], {KA_SSMK}
    v_lshrrev_b32 v1, 6, v0
    v_and_b32 v100, 63, v0
    v_and_b32 v101, 255, v0
    v_readfirstlane_b32 s60, v1
    s_lshr_b32 s29, s2, 4
    s_and_b32 s28, s2, 15
    s_lshr_b32 s61, s60, 2
    s_and_b32 s62, s60, 3
    s_lshl_b32 s28, s28, 1
    s_add_u32 s28, s28, s61
    s_lshl_b32 s30, s28, 6
    v_lshrrev_b32 v1, 3, v101
    v_and_b32 v2, 7, v101
    v_lshlrev_b32 v3, 1, v1
    v_add_u32 v3, s30, v3
    s_movk_i32 s31, 1152
    v_mul_lo_u32 v4, v3, s31
    s_lshl_b32 s32, s29, 7
    v_lshlrev_b32 v5, 4, v2
    v_add3_u32 v4, v4, v5, s32
    """)
    for r in range(6):
        e(f"v_add_u32 v{10+r}, {(r-4)*1152 & 0xffffffff:#x}, v4")
    e(f"""
    s_lshl_b32 s33, s29, 9
    v_lshlrev_b32 v6, 6, v2
    v_add_u32 v6, s33, v6
    s_lshl_b32 s63, s2, 2
    s_add_u32 s63, s63, s62
    s_mul_i32 s68, s62, {KB_CH}
    s_lshl_b32 s31, s63, 12
    v_lshlrev_b32 v102, 4, v100
    s_waitcnt lgkmcnt(0)
    """)
    A.srd(8, 4, 5, S * D * 2)
    A.srd(12, 6, 7, S * D * 2)
    A.srd(16, 24, 25, D * 8)
    A.srd(40, 38, 39, S * D * 2)
    for r in range(6):
        e(f"buffer_load_dwordx4 {v(16+4*r,4)}, v{10+r}, s[8:11], 0 offen")
    for r in range(3):
        e(f"buffer_load_dwordx4 {v(40+4*r,4)}, v{13+r}, s[12:15], 0 offen")
    for r in range(4):
        e(f"buffer_load_dwordx4 {v(52+4*r,4)}, v6, s[16:19], 0 offen offset:{16*r}")
    e("buffer_load_dwordx2 v[92:93], v14, s[40:43], 0 offen")
    e("buffer_load_dwordx2 v[94:95], v15, s[40:43], 0 offen")
    e("buffer_load_dwordx2 v[96:97], v14, s[40:43], 0 offen offset:8")
    e("buffer_load_dwordx2 v[98:99], v15, s[40:43], 0 offen offset:8")
    A.srd_off(56, 26, 27, WS_MB, 144 * 128)
    e("""
    s_lshl_b32 s71, s2, 7
    v_lshlrev_b32 v106, 2, v100
    v_mov_b32 v107, 0
    v_cmp_gt_u32 vcc, 16, v0
    s_and_saveexec_b64 s[34:35], vcc
    s_cbranch_execz ka_nc
    buffer_store_dword v107, v106, s[56:59], s71 offen sc1
    """)
    A.label("ka_nc")
    e("s_mov_b64 exec, s[34:35]")
    A.srd_off(20, 26, 27, WS_R, 576 * 8192)
    A.srd_off(44, 26, 27, WS_XQ, S * D * 2)
    A.srd(52, 50, 51, 256)
    e(f"""
    s_lshr_b32 s34, s63, 1
    s_lshl_b32 s34, s34, 2
    s_add_u32 s66, s66, s34
    s_addc_u32 s67, s67, 0
    s_load_dword s69, s[66:67], 0
    s_lshl_b32 s35, s29, 18
    v_lshlrev_b32 v9, 15, v2
    v_lshl_add_u32 v9, v3, 3, v9
    v_add_u32 v9, s35, v9
    s_movk_i32 s36, 0x4000
    v_sub_u32 v7, 31, v1
    v_lshlrev_b32 v8, 2, v2
    v_xor_b32 v7, v7, v8
    v_lshlrev_b32 v7, 2, v7
    v_lshl_add_u32 v7, v2, 10, v7
    s_lshl_b32 s70, s61, 14
    s_add_u32 s70, s70, {TS}
    v_add_u32 v7, s70, v7
    s_mov_b32 s34, 0xffff0000
    """)
    ST.stamp()
    e("s_waitcnt vmcnt(0)")
    ST.stamp()
    e("buffer_store_dwordx4 v[92:95], v9, s[44:47], 0 offen sc1")
    e("buffer_store_dwordx4 v[96:99], v9, s[44:47], s36 offen sc1")
    for ch in range(8):
        d, hi = ch >> 1, ch & 1
        def unp(dst, src_):
            if hi: e(f"v_and_b32 v{dst}, s34, v{src_}")
            else:  e(f"v_lshlrev_b32 v{dst}, 16, v{src_}")
        for r in range(6): unp(70 + r, 16 + 4 * r + d)
        for r in range(3): unp(76 + r, 40 + 4 * r + d)
        sk = 52 + 2 * ch
        e(f"v_lshlrev_b32 v80, 16, v{sk}")
        e(f"v_and_b32 v81, s34, v{sk}")
        e(f"v_lshlrev_b32 v82, 16, v{sk+1}")
        e(f"v_and_b32 v83, s34, v{sk+1}")
        for r in range(3): e(f"v_mul_f32 v{84+r}, v{70+r}, v83")
        for r in range(3): e(f"v_fmac_f32 v{84+r}, v{71+r}, v82")
        for r in range(3): e(f"v_fmac_f32 v{84+r}, v{72+r}, v81")
        for r in range(3): e(f"v_fmac_f32 v{84+r}, v{73+r}, v80")
        for r in range(3): e(f"v_mul_f32 v{84+r}, v{84+r}, v{76+r}")
        e(f"v_cvt_pk_bf16_f32 v{88+2*(ch&1)}, v85, v84")
        e(f"v_cvt_pk_bf16_f32 v{89+2*(ch&1)}, v86, v85")
        e(f"ds_write_b32 v7, v{88+2*(ch&1)} offset:{ch*128}")
        e(f"ds_write_b32 v7, v{89+2*(ch&1)} offset:{8192+ch*128}")
    e(f"""
    v_lshrrev_b32 v8, 6, v101
    v_xor_b32 v9, v2, v8
    v_lshlrev_b32 v9, 4, v9
    v_lshl_add_u32 v9, v1, 7, v9
    v_xor_b32 v10, 64, v9
    v_add_u32 v9, s70, v9
    v_add_u32 v10, s70, v10
    s_lshl_b32 s35, s29, 19
    s_sub_u32 s36, 1984, s30
    s_lshl_b32 s36, s36, 1
    s_add_u32 s35, s35, s36
    v_lshlrev_b32 v11, 13, v1
    v_add3_u32 v11, v11, v5, s35
    v_add_u32 v12, 0x40000, v11
    s_waitcnt lgkmcnt(0)
    s_barrier
    ds_read_b128 v[16:19], v9
    ds_read_b128 v[20:23], v10 offset:4096
    ds_read_b128 v[24:27], v9 offset:8192
    ds_read_b128 v[28:31], v10 offset:12288
    s_movk_i32 s37, 0x1000
    s_waitcnt lgkmcnt(3)
    buffer_store_dwordx4 v[16:19], v11, s[20:23], 0 offen sc1
    s_waitcnt lgkmcnt(2)
    buffer_store_dwordx4 v[20:23], v12, s[20:23], 0 offen sc1
    s_waitcnt lgkmcnt(1)
    buffer_store_dwordx4 v[24:27], v11, s[20:23], s37 offen sc1
    s_waitcnt lgkmcnt(0)
    buffer_store_dwordx4 v[28:31], v12, s[20:23], s37 offen sc1
    """)
    A.srd_off(8, 64, 65, "s31", 4096)
    e(f"""
    s_lshl_b32 s24, s61, 11
    s_add_u32 s25, s68, s24
    v_lshrrev_b32 v103, 4, v100
    v_and_b32 v104, 15, v100
    v_add_u32 v6, v103, v104
    v_add_u32 v6, -15, v6
    v_lshlrev_b32 v6, 2, v6
    buffer_load_dword v105, v6, s[8:11], 0 offen
    """)
    for c in range(4):
        e(f"s_add_u32 m0, s25, {c * KB_KC + 64}")
        e(f"s_add_u32 s37, s24, {4 * c + 4}")
        for b in range(2):
            e(f"buffer_load_dwordx4 v102, s[8:11], s37 offen offset:{b*1024} lds")
    ST.stamp()
    e(f"""
    v_mov_b32 v2, v100
    v_mov_b32 v4, v103
    v_mov_b32 v5, v104
    s_mov_b32 s30, s68
    s_lshl_b32 s32, s63, 13
    s_add_u32 s32, s32, {WS_R}
    s_lshl_b32 s33, s2, 14
    s_add_u32 s33, s33, {WS_XQ}
    """)
    A.srd_off(12, 26, 27, "s32", 8192)
    A.srd_off(16, 26, 27, "s33", 16384)
    A.srd_off(20, 26, 27, WS_ST, S * 8)
    e("s_lshr_b32 s33, s2, 1")
    e("s_lshl_b32 s33, s33, 15")
    e(f"s_add_u32 s33, s33, {WS_H}")
    A.srd_off(44, 26, 27, "s33", 32768)
    A.srd_off(40, 26, 27, WS_PART + 4 * S * D * 2, 8192 + 1024 + 32768)
    e(f"""
    s_lshl_b32 s36, s2, 11
    v_lshlrev_b32 v8, 2, v0
    v_mov_b32 v12, 0
    v_mov_b32 v13, 0
    v_mov_b32 v14, 0
    v_mov_b32 v15, 0
    buffer_store_dword v12, v8, s[40:43], s36 offen
    s_movk_i32 s38, {KB_KC}
    v_mul_lo_u32 v8, v4, s38
    v_lshl_add_u32 v8, v5, 2, v8
    v_add_u32 v8, s30, v8
    v_lshrrev_b32 v9, 5, v2
    s_movk_i32 s38, {KB_RC}
    v_mul_lo_u32 v9, v9, s38
    v_and_b32 v10, 31, v2
    v_lshl_add_u32 v9, v10, 4, v9
    s_add_u32 s39, s30, {KB_RO + 4096}
    v_add_u32 v9, s39, v9
    ds_write_b128 v9, v[12:15]
    v_and_b32 v10, 3, v5
    s_movk_i32 s38, {KB_KC}
    v_mul_lo_u32 v10, v10, s38
    v_lshrrev_b32 v11, 2, v5
    v_add_u32 v11, v11, v4
    v_lshl_add_u32 v10, v11, 4, v10
    v_add_u32 v10, s30, v10
    v_and_b32 v11, 1, v5
    s_movk_i32 s38, {KB_RC}
    v_mul_lo_u32 v11, v11, s38
    v_lshrrev_b32 v6, 1, v5
    v_lshlrev_b32 v6, 2, v6
    v_sub_u32 v6, v4, v6
    v_add_u32 v6, 28, v6
    v_lshl_add_u32 v11, v6, 4, v11
    s_add_u32 s39, s30, {KB_RO}
    v_add_u32 v11, s39, v11
    s_and_b32 s40, s63, 1
    s_lshl_b32 s40, s40, 4
    s_lshr_b32 s35, s69, s40
    s_and_b32 s35, s35, 0xffff
    v_lshl_add_u32 v6, v4, 2, v5
    v_mov_b32 v7, s35
    """)
    for d in range(4):
        e(f"v_cmp_eq_u32 vcc, {15-d}, v6")
        e("s_nop 1")
        e(f"v_cndmask_b32 v{108+d}, 0, v7, vcc")
    e(f"""
    s_lshl_b32 s34, s29, 4
    v_and_b32 v6, 3, v2
    v_lshlrev_b32 v6, 2, v6
    v_add_u32 v6, s34, v6
    v_and_b32 v7, 15, v2
    v_lshlrev_b32 v12, 2, v7
    v_lshlrev_b32 v7, 7, v7
    s_lshl_b32 s34, s29, 11
    s_and_b32 s35, s2, 15
    s_lshl_b32 s35, s35, 2
    s_add_u32 s34, s34, s35
    v_mov_b32 v13, 1
    v_mov_b32 v14, s2
    s_mul_i32 s36, s61, {KB_RC}
    s_add_u32 s36, s36, s39
    s_lshl_b32 s37, s61, 12
    s_waitcnt vmcnt(10)
    s_barrier
    """)
    ST.stamp()
    e(f"""
    s_cmp_lg_u32 s60, 0
    s_cbranch_scc1 ka_go
    s_mov_b64 exec, 0xffff
    buffer_store_dword v13, v7, s[56:59], s34 offen sc1
    s_mov_b64 exec, 1
    buffer_store_byte v13, v14, s[52:55], 0 offen sc1
    s_mov_b64 exec, -1
    s_mov_b32 s38, 0
    s_mov_b32 s35, 0x01010101
    """)
    A.label("ka_poll")
    e(f"""
    buffer_load_dword v15, v12, s[56:59], s71 offen sc1
    s_add_u32 s38, s38, 1
    s_waitcnt vmcnt(0)
    v_cmp_ne_u32 vcc, 1, v15
    s_and_b32 s34, s38, 15
    s_cbranch_vccz ka_go
    s_cmp_lg_u32 s34, 0
    s_cbranch_scc1 ka_poll
    buffer_load_dword v15, v6, s[52:55], 0 offen sc1
    s_waitcnt vmcnt(0)
    v_cmp_ne_u32 vcc, s35, v15
    s_cmp_ge_u32 s38, 0x8000
    s_cbranch_scc1 ka_go
    s_cbranch_vccnz ka_poll
    """)
    A.label("ka_go")
    e("s_mov_b32 m0, s36")
    e("s_barrier")
    ST.stamp()
    for b in range(4):
        e(f"buffer_load_dwordx4 v102, s[12:15], s37 offen offset:{b*1024} sc1 lds")
    e("""
    s_cmp_lg_u32 s61, 0
    s_cbranch_scc1 ka_epi
    s_waitcnt vmcnt(0)
    ds_write_b32 v8, v105
    s_waitcnt lgkmcnt(0)
    s_barrier
    """)
    ST.stamp()
    ACC, BR, NB, AR = 32, 64, 4, 112
    lg = Cnt(A, "lgkmcnt", 15)
    groups = [[r + 8 * u for u in range(8)] for r in range(8)]
    mf = [(g, i, j) for g, il in enumerate(groups) for i in il for j in range(7, (i >> 3) - 1, -1)]
    areg = lambda g, q: AR + 32 * (g & 1) + 4 * ((q + 7) >> 3)
    reads, seen, bidx = [], set(), {}
    for x, (g, i, j) in enumerate(mf):
        if ("B", i) not in seen:
            seen.add(("B", i)); bidx[i] = len(bidx); reads.append((("B", i), x))
        t = ("A", g, 8 * j - i)
        if t not in seen:
            seen.add(t); reads.append((t, x))
    last_use = {}
    for x, (g, i, j) in enumerate(mf):
        last_use[("B", i)] = x; last_use[("G", g)] = x
    border = sorted(bidx, key=lambda i: bidx[i])
    pending = list(reads)
    def can_issue(tag, x):
        if tag[0] == "B":
            k = bidx[tag[1]]
            return k < NB or last_use[("B", border[k - NB])] < x
        return tag[1] < 2 or last_use[("G", tag[1] - 2)] < x
    def issue_read(tag):
        if tag[0] == "B":
            e(f"ds_read_b128 {v(BR + 4 * (bidx[tag[1]] % NB), 4)}, v10 offset:{64 * tag[1]}")
        else:
            e(f"ds_read_b128 {v(areg(tag[1], tag[2]), 4)}, v11 offset:{64 * (56 - tag[2])}")
        lg.issue(tag)
    for _ in range(9): issue_read(pending.pop(0)[0])
    started = set()
    for x, (g, i, j) in enumerate(mf):
        for p in [p for p in pending if p[1] <= x]:
            issue_read(p[0]); pending.remove(p)
        lg.need(("B", i)); lg.need(("A", g, 8 * j - i))
        c = v(ACC + 4 * j, 4)
        aq = v(areg(g, 8 * j - i), 4)
        if j not in started:
            started.add(j)
            e(f"v_mfma_f32_16x16x32_bf16 {c}, {aq}, v[108:111], 0")
        e(f"v_mfma_f32_16x16x32_bf16 {c}, {aq}, {v(BR+4*(bidx[i]%NB),4)}, {c}")
        if len(lg.q) < 13:
            for p in pending:
                if p[1] > x + 30: break
                if can_issue(p[0], x + 1) and (p[0][0] == "A" or p[1] <= x + 16):
                    issue_read(p[0]); pending.remove(p); break
    assert not pending
    ST.stamp()
    e(f"""
    v_lshlrev_b32 v16, 7, v4
    v_lshl_add_u32 v16, v5, 2, v16
    v_add_u32 v16, s30, v16
    s_nop 7
    """)
    for j in range(8):
        c = ACC + 4 * j
        e(f"v_cvt_pk_bf16_f32 v{c}, v{c}, v{c+1}")
        e(f"v_cvt_pk_bf16_f32 v{c+1}, v{c+2}, v{c+3}")
        e(f"ds_write_b32 v16, v{c} offset:{512*j}")
        e(f"ds_write_b32 v16, v{c+1} offset:{512*j+64}")
    e("s_waitcnt lgkmcnt(0)")
    e("s_barrier")
    fin()
    e("s_endpgm")
    A.label("ka_epi")
    e("v_lshlrev_b32 v16, 4, v101")
    e("v_lshlrev_b32 v17, 2, v101")
    e("v_lshlrev_b32 v18, 5, v101")
    e("""
    v_and_b32 v6, 15, v2
    v_lshlrev_b32 v6, 2, v6
    s_mov_b32 s35, 0x01010101
    s_mov_b32 s38, 0
    """)
    for r in range(4):
        e(f"s_movk_i32 s37, {4096*r}")
        e(f"buffer_load_dwordx4 {v(80+8*r,4)}, v16, s[16:19], s37 offen sc1")
    e("""
    s_waitcnt vmcnt(4) lgkmcnt(0)
    s_barrier
    """)
    A.label("ka_poll2")
    e("""
    buffer_load_dword v15, v6, s[52:55], 0 offen offset:144 sc1
    s_add_u32 s38, s38, 1
    s_waitcnt vmcnt(0)
    v_cmp_ne_u32 vcc, s35, v15
    s_cmp_ge_u32 s38, 0x8000
    s_cbranch_scc1 ka_go2
    s_cbranch_vccnz ka_poll2
    """)
    A.label("ka_go2")
    for r in range(4):
        e(f"s_movk_i32 s37, {4096*r}")
        e(f"buffer_load_dwordx4 {v(84+8*r,4)}, v16, s[20:23], s37 offen sc1")
    e(f"""
    s_and_b32 s40, s2, 1
    s_lshl_b32 s40, s40, 3
    v_add_u32 v18, s40, v18
    s_mov_b32 s41, 0xffff0000
    v_add_u32 v19, {2*KB_CH}, v17
    s_waitcnt vmcnt(0)
    """)
    XF, XH = 112, 144
    for r in range(4):
        X = 80 + 8 * r; M = 84 + 8 * r
        for tq in range(2):
            b = 8 * r + 4 * tq
            for d in range(2):
                e(f"v_lshlrev_b32 v{XF+b+2*d}, 16, v{X+2*tq+d}")
                e(f"v_and_b32 v{XF+b+2*d+1}, s41, v{X+2*tq+d}")
            mp = v(M + 2 * tq, 2)
            for p in range(2):
                e(f"v_pk_add_f32 {v(XH+b+2*p,2)}, {v(XF+b+2*p,2)}, {mp} op_sel_hi:[1,0] neg_lo:[0,1] neg_hi:[0,1]")
            for p in range(2):
                e(f"v_pk_mul_f32 {v(XH+b+2*p,2)}, {v(XH+b+2*p,2)}, {mp} op_sel:[0,1] op_sel_hi:[1,1]")
    e("s_barrier")
    for r in range(4):
        for ch in range(4):
            base = "v17" if ch < 2 else "v19"
            e(f"ds_read_b32 v{64+4*r+ch}, {base} offset:{(ch&1)*KB_CH + 1024*r}")
    for r in range(4):
        e(f"s_waitcnt lgkmcnt({12-4*r})")
        Y = 64 + 4 * r
        e(f"s_movk_i32 s37, {8192*r}")
        for tq in range(2):
            b = 8 * r + 4 * tq
            for ch in range(4):
                if tq == 0: e(f"v_lshlrev_b32 v{36+ch}, 16, v{Y+ch}")
                else: e(f"v_and_b32 v{36+ch}, s41, v{Y+ch}")
            for p in range(2):
                e(f"v_pk_fma_f32 {v(XF+b+2*p,2)}, {v(XH+b+2*p,2)}, {v(36+2*p,2)}, {v(XF+b+2*p,2)}")
            O = 44 + 4 * (r & 1) + 2 * tq
            e(f"v_cvt_pk_bf16_f32 v{O}, v{XF+b}, v{XF+b+1}")
            e(f"v_cvt_pk_bf16_f32 v{O+1}, v{XF+b+2}, v{XF+b+3}")
            e(f"buffer_store_dwordx2 {v(O,2)}, v18, s[44:47], s37 offen offset:{16*tq}{SCH}")
    fin()
    e("s_endpgm")
    A.label("ka_stats")
    e(f"""
    s_sub_u32 s28, s2, 144
    s_lshl_b32 s28, s28, 5
    v_lshrrev_b32 v1, 4, v0
    v_add_u32 v1, s28, v1
    v_and_b32 v2, 15, v0
    s_movk_i32 s29, 1152
    v_mul_lo_u32 v3, v1, s29
    v_lshl_add_u32 v3, v2, 3, v3
    v_lshlrev_b32 v4, 3, v1
    s_waitcnt lgkmcnt(0)
    """)
    A.srd(40, 38, 39, S * D * 2)
    A.srd_off(44, 26, 27, WS_ST, 2 * S * 8)
    A.srd(52, 50, 51, 256)
    XR, XF = 72, 34
    for rd in range(1):
        e(f"s_mov_b32 s33, {rd*32*1152}")
        for i in range(9):
            e(f"buffer_load_dwordx2 {v(XR+18*rd+2*i,2)}, v3, s[40:43], s33 offen offset:{128*i}")
    e("s_mov_b32 s30, 0xffff0000")
    e(f"s_mov_b32 s31, {fbits(1.0/576):#x}")
    e(f"s_mov_b32 s32, {fbits(1e-5):#x}")
    e("v_cmp_eq_u32 s[36:37], 0, v2")
    e(f"s_movk_i32 s33, {S*8}")
    e("v_mov_b32 v14, -1")
    e("v_mov_b32 v15, -1")
    for rd in range(1):
        e("s_waitcnt vmcnt(0)")
        for d in range(18):
            e(f"v_lshlrev_b32 v{XF+2*d}, 16, v{XR+18*rd+d}")
            e(f"v_and_b32 v{XF+2*d+1}, s30, v{XR+18*rd+d}")
        M = 8 + 8 * (rd & 1)
        e(f"v_pk_add_f32 v[{M}:{M+1}], {v(XF,2)}, {v(XF+2,2)}")
        e(f"v_pk_add_f32 v[10:11], {v(XF+4,2)}, {v(XF+6,2)}")
        for i in range(2, 9):
            e(f"v_pk_add_f32 v[{M}:{M+1}], v[{M}:{M+1}], {v(XF+4*i,2)}")
            e(f"v_pk_add_f32 v[10:11], v[10:11], {v(XF+4*i+2,2)}")
        e(f"v_pk_add_f32 v[{M}:{M+1}], v[{M}:{M+1}], v[10:11]")
        e(f"v_add_f32 v{M}, v{M}, v{M+1}")
        dpp_sum16(A, M)
        e(f"v_mul_f32 v{M}, s31, v{M}")
        for i in range(18):
            e(f"v_pk_add_f32 {v(XF+2*i,2)}, {v(XF+2*i,2)}, v[{M}:{M+1}] op_sel_hi:[1,0] neg_lo:[0,1] neg_hi:[0,1]")
        e(f"v_pk_mul_f32 v[10:11], {v(XF,2)}, {v(XF,2)}")
        e(f"v_pk_mul_f32 v[12:13], {v(XF+2,2)}, {v(XF+2,2)}")
        for i in range(1, 9):
            e(f"v_pk_fma_f32 v[10:11], {v(XF+4*i,2)}, {v(XF+4*i,2)}, v[10:11]")
            e(f"v_pk_fma_f32 v[12:13], {v(XF+4*i+2,2)}, {v(XF+4*i+2,2)}, v[12:13]")
        e("v_pk_add_f32 v[10:11], v[10:11], v[12:13]")
        e(f"v_add_f32 v{M+1}, v10, v11")
        dpp_sum16(A, M + 1)
        e(f"""
        v_mov_b32 v10, s32
        v_fmac_f32 v10, s31, v{M+1}
        v_rsq_f32 v{M+1}, v10
        s_mov_b64 exec, s[36:37]
        buffer_store_dwordx2 v[{M}:{M+1}], v4, s[44:47], 0 offen offset:{256*rd} sc1
        buffer_store_dwordx2 v[14:15], v4, s[44:47], s33 offen offset:{256*rd}
        s_mov_b64 exec, -1
        """)
    e(f"""
    v_mov_b32 v13, 1
    v_mov_b32 v12, s2
    s_waitcnt vmcnt(0)
    s_barrier
    v_cmp_eq_u32 vcc, 0, v0
    s_and_saveexec_b64 s[34:35], vcc
    s_cbranch_execz ka_nf
    buffer_store_byte v13, v12, s[52:55], 0 offen sc1
    """)
    A.label("ka_nf")
    e("s_mov_b64 exec, s[34:35]")
    e("s_cmp_ge_u32 s2, 160")
    e("s_cbranch_scc1 ka_pack0")
    fin()
    e("s_endpgm")
    A.label("ka_pack0")
    e("s_sub_u32 s2, s2, 160")
    emit_w_packer(A, "ka0", 0, 288, fin, halves=True, ksplit=True)
    A.label("ka_done")
    e("s_endpgm")
    A.kernel_end(name, 176, 102 if ST.on else 72)

def k_ln(A):
    name = "kl_kernel"
    A.launch(name, 256, 128, 0)
    A.kernel_begin(name)
    e = A.e
    e(f"""
    s_cmp_ge_u32 s2, 256
    s_cbranch_scc1 kl_done
    s_load_dwordx2 s[4:5], s[0:1], {KA_X}
    s_load_dwordx2 s[26:27], s[0:1], {KA_WS}
    v_lshrrev_b32 v1, 4, v0
    v_and_b32 v2, 15, v0
    s_lshl_b32 s28, s2, 3
    v_add_u32 v1, s28, v1
    s_movk_i32 s29, 1152
    v_mul_lo_u32 v3, v1, s29
    v_lshl_add_u32 v3, v2, 3, v3
    v_lshlrev_b32 v4, 14, v2
    v_lshl_add_u32 v4, v1, 3, v4
    v_lshrrev_b32 v5, 1, v2
    v_lshlrev_b32 v5, 15, v5
    v_lshl_add_u32 v5, v1, 4, v5
    v_and_b32 v6, 1, v2
    v_lshl_add_u32 v5, v6, 3, v5
    s_waitcnt lgkmcnt(0)
    """)
    A.srd(8, 4, 5, S * D * 2)
    A.srd_off(12, 26, 27, WS_YQ, S * D * 2)
    A.srd_off(16, 26, 27, WS_XLN, S * D * 2)
    A.srd_off(20, 26, 27, WS_H, S * D * 2)
    XR, YR, XF = 16, 34, 52
    A.srd_off(44, 26, 27, WS_PART + 4 * S * D * 2, 8192)
    e("""
    s_lshl_b32 s43, s2, 9
    v_lshlrev_b32 v7, 2, v0
    v_add_u32 v7, s43, v7
    v_mov_b32 v8, 0
    buffer_store_dword v8, v7, s[44:47], 0 offen
    """)
    for i in range(9):
        e(f"buffer_load_dwordx2 {v(XR+2*i,2)}, v3, s[8:11], 0 offen offset:{128*i}")
    for i in range(9):
        e(f"s_mov_b32 s{30+i}, {i*262144:#x}")
    for i in range(9):
        e(f"buffer_load_dwordx2 {v(YR+2*i,2)}, v4, s[12:15], s{30+i} offen")
    e("s_mov_b32 s40, 0xffff0000")
    e(f"s_mov_b32 s41, {fbits(1.0/576):#x}")
    e(f"s_mov_b32 s42, {fbits(1e-5):#x}")
    e("s_waitcnt vmcnt(9)")
    def unpack(dst, src):
        for d in range(18):
            e(f"v_lshlrev_b32 v{dst+2*d}, 16, v{src+d}")
            e(f"v_and_b32 v{dst+2*d+1}, s40, v{src+d}")
    def stats():
        for k in range(4):
            e(f"v_add_f32 v{8+k}, v{XF+k}, v{XF+4+k}")
        for i in range(2, 9):
            for k in range(4):
                e(f"v_add_f32 v{8+k}, v{8+k}, v{XF+4*i+k}")
        e("v_add_f32 v8, v8, v9")
        e("v_add_f32 v10, v10, v11")
        e("v_add_f32 v8, v8, v10")
        dpp_sum16(A, 8)
        e("v_mul_f32 v8, s41, v8")
        for i in range(36):
            e(f"v_sub_f32 v{XF+i}, v{XF+i}, v8")
        for k in range(4):
            e(f"v_mul_f32 v{9+k}, v{XF+k}, v{XF+k}")
        for i in range(1, 9):
            for k in range(4):
                e(f"v_fmac_f32 v{9+k}, v{XF+4*i+k}, v{XF+4*i+k}")
        e("v_add_f32 v9, v9, v10")
        e("v_add_f32 v11, v11, v12")
        e("v_add_f32 v9, v9, v11")
        dpp_sum16(A, 9)
        e("v_mov_b32 v10, s42")
        e("v_fmac_f32 v10, s41, v9")
        e("v_rsq_f32 v9, v10")
        e("s_nop 0")
    unpack(XF, XR)
    stats()
    e("s_waitcnt vmcnt(0)")
    for d in range(18):
        e(f"v_lshlrev_b32 v10, 16, v{YR+d}")
        e(f"v_and_b32 v11, s40, v{YR+d}")
        e(f"v_fma_f32 v10, v10, v9, 1.0")
        e(f"v_fma_f32 v11, v11, v9, 1.0")
        e(f"v_fma_f32 v10, v{XF+2*d}, v10, v8")
        e(f"v_fma_f32 v11, v{XF+2*d+1}, v11, v8")
        e(f"v_cvt_pk_bf16_f32 v{XR+d}, v10, v11")
    for i in range(9):
        e(f"buffer_store_dwordx2 {v(XR+2*i,2)}, v5, s[20:23], s{30+i} offen")
    unpack(XF, XR)
    stats()
    for d in range(18):
        e(f"v_mul_f32 v10, v{XF+2*d}, v9")
        e(f"v_mul_f32 v11, v{XF+2*d+1}, v9")
        e(f"v_cvt_pk_bf16_f32 v{YR+d}, v10, v11")
    for i in range(9):
        e(f"buffer_store_dwordx2 {v(YR+2*i,2)}, v5, s[16:19], s{30+i} offen")
    A.label("kl_done")
    e("s_endpgm")
    A.kernel_end(name, 88, 48)


def emit_piece_voffsets(A, vdst, n, vP0, row_stride, tmp=(4, 5, 6, 7, 8)):
    e = A.e
    t0, t1, t2, t3, t4 = tmp
    e("s_movk_i32 s34, 3641")
    e(f"s_movk_i32 s35, {row_stride}")
    for i in range(n):
        e(f"v_add_u32 v{t0}, {256*i}, v{vP0}")
        e(f"v_mul_lo_u32 v{t1}, v{t0}, s34")
        e(f"v_lshrrev_b32 v{t1}, 16, v{t1}")
        e(f"v_mul_u32_u24 v{t2}, 18, v{t1}")
        e(f"v_sub_u32 v{t2}, v{t0}, v{t2}")
        e(f"v_and_b32 v{t3}, 0xfffffff3, v{t1}")
        e(f"v_and_b32 v{t4}, 4, v{t1}")
        e(f"v_lshl_or_b32 v{t3}, v{t4}, 1, v{t3}")
        e(f"v_and_b32 v{t4}, 8, v{t1}")
        e(f"v_lshrrev_b32 v{t4}, 1, v{t4}")
        e(f"v_or_b32 v{t3}, v{t3}, v{t4}")
        e(f"v_mul_lo_u32 v{t3}, v{t3}, s35")
        e(f"v_lshl_add_u32 v{vdst+i}, v{t2}, 4, v{t3}")

def emit_tr_base(A, vdst, vlane, stage, nstage):
    e = A.e
    e(f"""
    v_lshrrev_b32 v6, 5, v{vlane}
    v_lshlrev_b32 v6, 4, v6
    v_bfe_u32 v7, v{vlane}, 4, 1
    v_lshl_add_u32 v6, v7, 2, v6
    v_bfe_u32 v7, v{vlane}, 2, 2
    v_add_u32 v6, v6, v7
    v_mul_u32_u24 v6, 288, v6
    v_and_b32 v7, 3, v{vlane}
    v_lshl_add_u32 v{vdst}, v7, 3, v6
    """)
    for sidx in range(1, nstage):
        e(f"v_add_u32 v{vdst+sidx}, {sidx*stage}, v{vdst}")

KC_UP = 18432
KC_STAGE = 36864
SC1 = " sc1" if os.environ.get("SC1", "1") == "1" else ""
SC1C = {"1": " sc1", "0": "", "nt": " nt", "sc0": " sc0", "sc01": " sc0 sc1"}[os.environ.get("SC1C", "1")]

def emit_d_tail(A, ACC, srd, s_tt, s_nt, s_ks, s_r, s_h):
    e = A.e
    l0, l1 = A.newlabel("kd_h0"), A.newlabel("kd_hj")
    e(f"""
    s_mul_i32 s33, s28, 9216
    v_lshlrev_b32 v3, 4, v2
    v_add_u32 v4, s33, v3
    s_xor_b32 s34, s28, 4
    s_mul_i32 s34, s34, 9216
    v_add_u32 v5, s34, v3
    s_barrier
    s_cmp_eq_u32 s{s_h}, 0
    s_cbranch_scc1 {l0}
    """)
    for j in range(9):
        e(f"ds_write_b128 v4, {v(ACC+4*j,4)} offset:{1024*j}")
    for j in range(9):
        for r in range(4):
            e(f"v_mov_b32 v{ACC+4*j+r}, v{ACC+36+4*j+r}")
    e(f"s_branch {l1}")
    A.label(l0)
    for j in range(9):
        e(f"ds_write_b128 v4, {v(ACC+36+4*j,4)} offset:{1024*j}")
    A.label(l1)
    e("s_waitcnt lgkmcnt(0)")
    e("s_barrier")
    for j in range(9):
        e(f"ds_read_b128 {v(40+4*j,4)}, v5 offset:{1024*j}")
    e(f"""
    s_lshl_b32 s42, s{s_tt}, 2
    s_add_u32 s42, s42, s{s_nt}
    s_lshl_b32 s42, s42, 2
    s_add_u32 s43, s42, s{s_r}
    s_lshl_b32 s43, s43, 2
    s_add_u32 s43, s43, s{s_ks}
    s_mul_i32 s44, s43, 9216
    s_lshl_b32 s33, s{s_h}, 8
    s_add_u32 s44, s44, s33
    v_and_b32 v6, 15, v2
    v_lshlrev_b32 v6, 4, v6
    v_bfe_u32 v7, v2, 4, 1
    v_lshl_add_u32 v8, v7, 10, v6
    v_lshrrev_b32 v24, 5, v2
    v_lshl_add_u32 v8, v24, 9, v8
    v_lshl_add_u32 v6, v24, 9, v6
    v_lshl_add_u32 v6, v7, 3, v6
    s_add_u32 s45, s44, 4096
    s_add_u32 s46, s44, 8192
    """)
    for j in range(9):
        e(f"s_waitcnt lgkmcnt({8-j})")
        e(f"v_pk_add_f32 {v(ACC+4*j,2)}, {v(ACC+4*j,2)}, {v(40+4*j,2)}")
        e(f"v_pk_add_f32 {v(ACC+4*j+2,2)}, {v(ACC+4*j+2,2)}, {v(40+4*j+2,2)}")
        O = 80 + 2 * j
        e(f"v_cvt_pk_bf16_f32 v{O}, v{ACC+4*j}, v{ACC+4*j+1}")
        e(f"v_cvt_pk_bf16_f32 v{O+1}, v{ACC+4*j+2}, v{ACC+4*j+3}")
        if j >= 2 and j % 2 == 0:
            jp = j // 2 - 1
            P_ = 80 + 4 * jp
            e(f"v_permlane16_swap_b32 v{P_}, v{P_+2}")
            e(f"v_permlane16_swap_b32 v{P_+1}, v{P_+3}")
            e(f"buffer_store_dwordx4 {v(P_,4)}, v8, s[{srd}:{srd+3}], s{44+jp//2} offen offset:{2048*(jp%2)} sc1")
    e(f"buffer_store_dwordx2 v[96:97], v6, s[{srd}:{srd+3}], s46 offen sc1")

FLAG_OFF = 4 * S * D * 2
def k_c(A):
    name = "kc_kernel"
    CS_L = 4 * KC_STAGE
    A.launch(name, 256, 512, 4 * KC_STAGE + 2048 + 8192)
    A.kernel_begin(name)
    e = A.e
    XR = 112
    ACC = 64
    WR = 40
    NW = 6
    T, O, CS = 24, 24, 32
    K = 16
    PK = int(os.environ.get("KC_PK", "0"))
    ST = Stamps(A, STAMP in ("kc", "kd2"))
    ST.stamp(); ST.real(0)
    ST.mute = STAMP == "kd2"
    e(f"""
    s_cmp_ge_u32 s2, 256
    s_cbranch_scc1 kc_done
    s_load_dwordx2 s[26:27], s[0:1], {KA_WS}
    s_load_dwordx2 s[4:5], s[0:1], {KA_WD}
    v_lshrrev_b32 v1, 6, v0
    v_and_b32 v2, 63, v0
    v_lshlrev_b32 v3, 4, v2
    v_readfirstlane_b32 s28, v1
    s_and_b32 s33, s2, 7
    s_lshr_b32 s34, s2, 3
    s_lshr_b32 s29, s33, 1
    s_lshl_b32 s29, s29, 3
    s_and_b32 s31, s34, 7
    s_add_u32 s29, s29, s31
    s_and_b32 s30, s33, 1
    s_lshl_b32 s30, s30, 2
    s_lshr_b32 s31, s34, 3
    s_add_u32 s30, s30, s31
    s_lshl_b32 s33, s30, 8
    s_lshl_b32 s34, s28, 5
    s_add_u32 s33, s33, s34
    v_and_b32 v4, 15, v2
    v_add_u32 v4, s33, v4
    v_lshrrev_b32 v5, 4, v2
    v_lshlrev_b32 v5, 15, v5
    v_lshl_add_u32 v9, v4, 4, v5
    s_lshl_b32 s36, s28, 12
    s_mul_i32 s37, s29, {324*1024}
    s_lshl_b32 s31, s28, 10
    s_add_u32 s31, s31, 32768
    s_and_b32 s64, s29, {7 if KC_ROT else 0}
    s_mul_i32 s65, s64, {4096*NP1}
    s_add_u32 s66, s65, s36
    s_add_u32 s67, s65, s31
    s_lshl_b32 s65, s64, 12
    s_add_u32 s68, s65, s36
    s_add_u32 s69, s65, s31
    s_sub_u32 s65, s68, {KC_STAGE}
    s_cmp_ge_u32 s68, {KC_STAGE}
    s_cselect_b32 s68, s65, s68
    s_sub_u32 s65, s69, {KC_STAGE}
    s_cmp_ge_u32 s69, {KC_STAGE}
    s_cselect_b32 s69, s65, s69
    s_add_u32 s68, s68, s37
    s_add_u32 s69, s69, s37
    s_lshl_b32 s70, s64, 18
    s_waitcnt lgkmcnt(0)
    """)
    A.srd_off(8, 26, 27, WS_WP, 2 * D * F * 2)
    A.srd_off(12, 26, 27, WS_H, S * D * 2)
    vm = Cnt(A, "vmcnt", 63)
    lg = Cnt(A, "lgkmcnt", 15)
    issued = set()
    done_st = lambda vm_, iss: iss
    def soff(c, sfirst, slater):
        if c >= NP1:
            e(f"s_add_u32 s38, s{slater}, {c*KC_STAGE}")
        else:
            e(f"s_add_u32 s38, s{sfirst}, {c*KC_STAGE}")
            e(f"s_sub_u32 s65, s38, {NP1*KC_STAGE}")
            e(f"s_cmp_ge_u32 s38, {NP1*KC_STAGE}")
            e("s_cselect_b32 s38, s65, s38")
            e("s_add_u32 s38, s38, s37")
    def dma_ops(c):
        st = c % 4
        def opt():
            lab = A.newlabel("kc_skip")
            e("s_cmp_ge_u32 s28, 4")
            e(f"s_cbranch_scc1 {lab}")
            e(f"s_add_u32 m0, s31, {st*KC_STAGE}")
            soff(c, 67, 69)
            e(f"buffer_load_dwordx4 v3, s[8:11], s38 offen lds")
            A.label(lab)
        ops = [opt, lambda: e(f"s_add_u32 m0, s36, {st*KC_STAGE}"), lambda: soff(c, 66, 68)]
        for i in range(4):
            def ld(i=i):
                e(f"buffer_load_dwordx4 v3, s[8:11], s38 offen offset:{1024*i} lds")
                vm.issue(("W", c))
            ops.append(ld)
        return [("W", c, op) for op in ops]
    def x_ops(sx):
        def so():
            e("s_mov_b32 s40, s70")
            e(f"s_add_u32 s70, s70, {4*32768:#x}")
            e(f"s_cmp_ge_u32 s70, {72*32768:#x}")
            e("s_cselect_b32 s70, 0, s70")
        ops = [so]
        for tt in range(2):
            def ld(tt=tt):
                e(f"buffer_load_dwordx4 {v(XR+8*sx+4*tt,4)}, v9, s[12:15], s40 offen offset:{256*tt}")
                vm.issue(("X", sx))
            ops.append(ld)
        return [("X", sx, op) for op in ops]
    def run_ops(ops):
        for op in ops: op[2]()
    PF8 = int(os.environ.get("PF8", "3"))
    NXP = int(os.environ.get("KC_NXP", "4"))
    NX0 = int(os.environ.get("KC_NX0", "2"))
    run_ops(dma_ops(0))
    for sx in range(NX0): run_ops(x_ops(sx))
    A.srd_off(48, 26, 27, WS_ST2, S * 8)
    e(f"""
    s_lshl_b32 s52, s30, 8
    s_lshl_b32 s53, s29, 3
    s_add_u32 s52, s52, s53
    s_add_u32 s52, s52, s28
    s_lshl_b32 s53, s52, 4
    s_add_u32 s54, s53, {36*32768}
    v_lshlrev_b32 v4, 15, v2
    v_mov_b32 v5, 0x7ffffff0
    v_cmp_gt_u32 s[56:57], 36, v2
    s_lshl_b32 s52, s52, 3
    s_nop 0
    v_cndmask_b32 v4, v5, v4, s[56:57]
    buffer_load_dwordx4 v[{T}:{T+3}], v4, s[12:15], s53 offen
    buffer_load_dwordx4 v[{T+4}:{T+7}], v4, s[12:15], s54 offen
    """)
    vm.issue("row"); vm.issue("row")
    A.srd_off(16, 26, 27, WS_HH, S * F * 2)
    A.srd_off(20, 26, 27, WS_CS, 12 * F * 4)
    e(f"""
    v_and_b32 v4, 31, v2
    v_add_u32 v4, s33, v4
    v_lshrrev_b32 v5, 5, v2
    v_lshlrev_b32 v5, 15, v5
    v_lshl_add_u32 v1, v4, 4, v5
    v_add_u32 v6, {KC_STAGE}, v3
    v_add_u32 v7, {2*KC_STAGE}, v3
    v_add_u32 v8, {3*KC_STAGE}, v3
    v_lshrrev_b32 v10, 4, v2
    v_lshlrev_b32 v10, 4, v10
    v_add_u32 v10, {CS_L}, v10
    s_lshr_b32 s32, s28, 2
    s_mul_i32 s33, s32, {F*4}
    s_mul_i32 s34, s29, 576
    s_add_u32 s33, s33, s34
    v_mov_b32 v5, 0x7ffffff0
    v_cmp_gt_u32 vcc, 36, v2
    s_lshl_b32 s32, s32, 10
    s_add_u32 s32, s32, {CS_L}
    v_cndmask_b32 v13, v5, v3, vcc
    v_add_u32 v11, s32, v3
    s_mov_b32 s55, s33
    s_mov_b32 s47, 0xffff0000
    s_mul_i32 s42, s29, {18*32768}
    """)
    e(f"""
    s_mov_b32 s44, {fbits(1.0/576):#x}
    v_and_b32 v12, 0x7fff, v9
    v_lshrrev_b32 v12, 1, v12
    """)
    def pub_ops():
        L = [lambda: vm.need("row")]
        q = lambda s_: L.append(lambda: e(s_))
        def wave_sum(r, t):
            for sh in (8, 4, 2, 1):
                q(f"s_nop 1\nv_add_f32_dpp v{r}, v{r}, v{r} row_ror:{sh} row_mask:0xf bank_mask:0xf")
            for op in ("v_permlane16_swap_b32", "v_permlane32_swap_b32"):
                q(f"v_mov_b32 v{t}, v{r}")
                q(f"s_nop 1\n{op} v{r}, v{t}")
                q(f"v_add_f32 v{r}, v{r}, v{t}")
        for d in range(8):
            q(f"v_lshlrev_b32 v{K+4+(d&1)*2}, 16, v{T+d}")
            q(f"v_and_b32 v{K+5+(d&1)*2}, s47, v{T+d}")
            if d == 0:
                q(f"v_add_f32 v{K}, v{K+4}, v{K+5}")
            else:
                q(f"v_add_f32 v{K}, v{K}, v{K+4+(d&1)*2}")
                q(f"v_add_f32 v{K}, v{K}, v{K+5+(d&1)*2}")
        wave_sum(K, K + 1)
        q(f"v_mul_f32 v{K}, s44, v{K}")
        q(f"v_mov_b32 v{K+2}, 0")
        for d in range(8):
            u = K + 4 + (d & 1) * 2
            q(f"v_lshlrev_b32 v{u}, 16, v{T+d}")
            q(f"v_and_b32 v{u+1}, s47, v{T+d}")
            q(f"v_sub_f32 v{u}, v{u}, v{K}")
            q(f"v_sub_f32 v{u+1}, v{u+1}, v{K}")
            q(f"v_fmac_f32 v{K+2}, v{u}, v{u}")
            q(f"v_fmac_f32 v{K+2}, v{u+1}, v{u+1}")
        q(f"v_cndmask_b32 v{K+2}, 0, v{K+2}, s[56:57]")
        wave_sum(K + 2, K + 3)
        q(f"v_mov_b32 v{K+1}, {fbits(1e-5):#x}")
        q(f"v_fmac_f32 v{K+1}, s44, v{K+2}")
        q("v_mov_b32 v4, 0")
        def st():
            e("s_mov_b64 exec, 1")
            e(f"buffer_store_dwordx2 v[{K}:{K+1}], v4, s[48:51], s52 offen sc1")
            e("s_mov_b64 exec, -1")
            vm.issue("pub")
        L.append(st)
        return L
    RB = [3, 6, 7, 8]
    def finfo(f):
        b = f // 36
        if b < NP1: return (f // (2 * NP1), (f % (2 * NP1)) >> 1, f & 1)
        return ((f % 36) // 2, b, f & 1)
    def wread(f):
        e(f"ds_read_b128 {v(WR+4*(f%NW),4)}, v{RB[(f//36)%4]} offset:{1024*(f%36)}")
        lg.issue(("w", f))
    def stat_ops(sx):
        ops = []
        for tt in range(2):
            for d in range(4):
                r = XR + 8 * sx + 4 * tt + d
                k = K + 4 * tt
                ops.append(lambda r=r: e(f"v_lshlrev_b32 v4, 16, v{r}"))
                ops.append(lambda r=r: e(f"v_and_b32 v5, s47, v{r}"))
                ops.append(lambda k=k: e(f"v_add_f32 v{k}, v{k}, v4"))
                ops.append(lambda k=k: e(f"v_add_f32 v{k+1}, v{k+1}, v5"))
                ops.append(lambda k=k: e(f"v_fmac_f32 v{k+2}, v4, v4"))
                ops.append(lambda k=k: e(f"v_fmac_f32 v{k+3}, v5, v5"))
        return ops
    c0 = -2.0 * math.sqrt(2.0 / math.pi) * math.log2(math.e)
    c1 = c0 * 0.044715
    def statld_ops():
        L = []
        for tt in range(2):
            def ld(tt=tt):
                e(f"buffer_load_dwordx2 v[{K+4*tt}:{K+4*tt+1}], v12, s[48:51], 0 offen offset:{128*tt} sc1")
                vm.issue("stat")
            L.append(ld)
        return L
    def statfin_ops():
        L = []
        q = lambda s_: L.append(lambda: e(s_))
        def chk():
            vm.need("stat")
            e(f"v_cmp_eq_u32 vcc, -1, v{K+1}")
            e(f"v_cmp_eq_u32 s[58:59], -1, v{K+5}")
            e("s_nop 1")
            e("s_or_b64 vcc, vcc, s[58:59]")
            e("s_cbranch_vccnz kc_slowstat" if not os.environ.get("KC_FORCESLOW") else "s_branch kc_slowstat")
            A.label("kc_statok")
        L.append(chk)
        q(f"s_mov_b32 s45, {fbits(c0):#x}")
        q(f"s_mov_b32 s46, {fbits(c1):#x}")
        for tt in range(2):
            k = K + 4 * tt
            q(f"v_rsq_f32 v{k+2}, v{k+1}")
            q(f"v_sub_f32 v{k}, 0, v{k}")
            q(f"v_mul_f32 v{k+3}, v{k+2}, v{k+2}")
            q(f"v_mul_f32 v{k+3}, v{k+3}, v{k+2}")
            q(f"v_mul_f32 v{k+3}, s46, v{k+3}")
            q(f"v_mul_f32 v{k+2}, s45, v{k+2}")
        return L
    def slowstat():
        A.label("kc_slowstat")
        for r in range(8): e(f"v_mov_b32 v{K+r}, 0")
        for sx in range(18):
            for op in stat_ops(sx): op()
        R4 = [K, K + 2, K + 4, K + 6]
        for r in R4: e(f"v_add_f32 v{r}, v{r}, v{r+1}")
        for op in ("v_permlane32_swap_b32", "v_permlane16_swap_b32"):
            for r in R4: e(f"v_mov_b32 v{r+1}, v{r}")
            e("s_nop 1")
            for r in R4: e(f"{op} v{r}, v{r+1}")
            for r in R4: e(f"v_add_f32 v{r}, v{r}, v{r+1}")
        for tt in range(2):
            k = K + 4 * tt
            e(f"v_mul_f32 v{k}, s44, v{k}")
            e(f"v_mul_f32 v{k+1}, s44, v{k+2}")
            e(f"v_fma_f32 v{k+1}, -v{k}, v{k}, v{k+1}")
            e(f"v_max_f32 v{k+1}, 0, v{k+1}")
            e(f"v_add_f32 v{k+1}, {fbits(1e-5):#x}, v{k+1}")
        e("s_branch kc_statok")
    def cs_rd(j):
        if j > 8: return
        e(f"ds_read_b128 {v(CS,4)}, v10 offset:{64*j}"); lg.issue(("cs", j))
        e(f"ds_read_b128 {v(CS+4,4)}, v10 offset:{1024+64*j}"); lg.issue(("cs", j))
    def epi_ops(j):
        L = []
        q = lambda s_: L.append(lambda: e(s_))
        g0 = ACC + 16 * (j % 3)
        L.append(lambda: lg.need(("cs", j)))
        kk = lambda r: K + 4 * (r // 4)
        P = lambda r: v(r, 2)
        stages = [
            (0, lambda r: [f"v_fmac_f32 v{g0+r}, v{CS+(r%4)}, v{kk(r)}", f"v_fmac_f32 v{g0+8+r}, v{CS+4+(r%4)}, v{kk(r)}"]),
            (1, lambda r: [f"v_mul_f32 v{T+r}, v{g0+r}, v{g0+r}"]),
            (2, lambda r: [f"v_fma_f32 v{T+r}, v{T+r}, v{kk(r)+3}, v{kk(r)+2}"]),
            (3, lambda r: [f"v_mul_f32 v{T+r}, v{T+r}, v{g0+r}"]),
            (4, lambda r: [f"v_exp_f32 v{T+r}, v{T+r}", f"v_mul_f32 v{g0+r}, v{g0+r}, v{g0+8+r}"]),
            (5, lambda r: [f"v_fma_f32 v{T+r}, v{T+r}, v{kk(r)+1}, v{kk(r)+1}"]),
            (6, lambda r: [f"v_rcp_f32 v{T+r}, v{T+r}"]),
            (7, lambda r: [f"v_mul_f32 v{g0+r}, v{g0+r}, v{T+r}"]),
        ]
        order = [6, 0, 1, 7, 4, 2, 3, 5]
        for k_ in range(8 + 7):
            for si in order:
                off, fn = stages[si]
                r = k_ - off
                if 0 <= r < 8:
                    for s_ in fn(r): q(s_)
            if k_ == 7: L.append(lambda: cs_rd(j + 1))
            if k_ == 13: q("s_nop 0")
        for d in range(4): q(f"v_cvt_pk_bf16_f32 v{O+d}, v{g0+2*d}, v{g0+2*d+1}")
        q(f"s_add_u32 s43, s42, {2*j*32768}")
        q("s_nop 0")
        q(f"v_permlane16_swap_b32 v{O}, v{O+2}")
        q(f"v_permlane16_swap_b32 v{O+1}, v{O+3}")
        def st_():
            e(f"buffer_store_dwordx4 {v(O,4)}, v1, s[16:19], s43 offen{SC1C}")
            vm.issue(("st", j)); issued.add(("st", j))
        L.append(st_)
        q("s_nop 0")
        return L
    def wd_setup_ops():
        L = []
        q = lambda s_: L.append(lambda: e(s_))
        for s_ in f"""s_mov_b32 s6, {F*D*2:#x}
        s_mov_b32 s7, 0x00020000
        s_add_u32 s60, s26, {WS_WDP:#x}
        s_addc_u32 s61, s27, 0
        s_mov_b32 s62, {F*D*2:#x}
        s_mov_b32 s63, 0x00020000
        s_lshl_b32 s24, s2, 3
        s_add_u32 s24, s24, s28
        s_mul_i32 s25, s24, 7282
        s_lshr_b32 s25, s25, 16
        s_mul_i32 s39, s25, 9
        s_sub_u32 s24, s24, s39
        s_mul_i32 s39, s25, 36864
        s_lshl_b32 s41, s24, 7
        s_add_u32 s39, s39, s41
        s_mul_i32 s41, s25, 1821
        s_lshr_b32 s41, s41, 16
        s_mul_i32 s52, s41, 36
        s_sub_u32 s25, s25, s52
        s_mul_i32 s41, s41, {4*36*9}
        s_mul_i32 s25, s25, 9
        s_add_u32 s41, s41, s25
        s_lshl_b32 s24, s24, 2
        v_lshrrev_b32 v4, 3, v2
        v_mul_u32_u24 v4, 1152, v4
        v_and_b32 v5, 7, v2
        v_lshl_add_u32 v13, v5, 4, v4
        v_lshrrev_b32 v4, 4, v2
        v_lshlrev_b32 v4, 3, v4
        v_bfe_u32 v5, v2, 2, 2
        v_add_u32 v4, v4, v5
        v_lshlrev_b32 v4, 7, v4
        v_and_b32 v5, 3, v2
        v_lshl_add_u32 v14, v5, 3, v4
        v_add_u32 v14, s36, v14""".split("\n"):
            q(s_.strip())
        L[2:4] = [lambda: (e(f"s_add_u32 s60, s26, {WS_WDP:#x}"), e("s_addc_u32 s61, s27, 0"))]
        for q4 in range(4):
            d = 52 + q4
            q(f"s_add_u32 s25, s24, {q4}")
            q(f"s_mul_i32 s{d}, s25, 7282")
            q(f"s_lshr_b32 s{d}, s{d}, 16")
            q(f"s_mul_i32 s{d}, s{d}, {36*9-9}")
            q(f"s_add_u32 s{d}, s{d}, s25")
            q(f"s_add_u32 s{d}, s{d}, s41")
            q(f"s_lshl_b32 s{d}, s{d}, 10")
        return L
    def wd_dma_ops():
        ops = []
        for i in range(4):
            ops.append(lambda i=i: e(f"s_add_u32 m0, s36, {KC_STAGE + 1024*i}"))
            def ld(i=i):
                e(f"buffer_load_dwordx4 v13, s[4:7], s39 offen lds")
                e(f"s_add_u32 s39, s39, {8*1152}")
                vm.issue("wd")
            ops.append(ld)
        return [("P", 99, op) for op in ops]
    def wd_pack_ops():
        L = [lambda: vm.need("wd")]
        for q4 in range(4):
            def rd(q4=q4):
                e(f"ds_read_b64_tr_b16 {v(ACC+4*q4,2)}, v14 offset:{KC_STAGE+32*q4}"); lg.issue(("wdr", q4))
                e(f"ds_read_b64_tr_b16 {v(ACC+4*q4+2,2)}, v14 offset:{KC_STAGE+32*q4+512}"); lg.issue(("wdr", q4))
            L.append(rd)
        L += [lambda: None] * 12
        for q4 in range(4):
            def st(q4=q4):
                lg.need(("wdr", q4))
                e(f"buffer_store_dwordx4 {v(ACC+4*q4,4)}, v3, s[60:63], s{52+q4} offen{SCP}")
                vm.issue("wds")
            L.append(st)
        return L
    DA, DH, DACC, DWR, DNW, DNH = 112, 128, 184, 44, 8, 6
    PK_L = CS_L + 2048
    def d_salu_ops():
        L = []
        q = lambda s_: L.append(lambda: e(s_))
        for s_ in f"""s_mov_b32 s6, {F*D*2:#x}
        s_mov_b32 s7, 0x00020000
        s_mov_b32 s62, {FLAG_OFF+8192+1024+32768:#x}
        s_mov_b32 s63, 0x00020000
        s_mov_b32 s22, {F*D*2:#x}
        s_and_b32 s24, s2, 7
        s_lshr_b32 s25, s2, 3
        s_lshr_b32 s52, s24, 1
        s_and_b32 s24, s24, 1
        s_lshl_b32 s24, s24, 3
        s_lshr_b32 s53, s25, 2
        s_add_u32 s53, s53, s24
        s_and_b32 s54, s25, 3
        s_and_b32 s56, s28, 3
        s_lshr_b32 s57, s28, 2
        s_lshl_b32 s24, s52, 2
        s_add_u32 s24, s24, s54
        s_mul_i32 s39, s24, {324*1024}
        s_lshl_b32 s24, s24, 6
        s_add_u32 s32, s24, {FLAG_OFF+8192}
        s_lshl_b32 s24, s53, 2
        s_add_u32 s33, s32, s24
        s_mul_i32 s41, s52, {144*32768}
        s_mul_i32 s24, s57, {36*32768}
        s_add_u32 s41, s41, s24
        s_lshl_b32 s24, s30, 3
        s_add_u32 s24, s24, s28
        s_lshl_b32 s24, s24, 5
        s_add_u32 s24, s24, s29
        s_lshl_b32 s24, s24, 2
        s_add_u32 s55, s24, {FLAG_OFF}
        s_lshl_b32 s24, s53, 7
        s_lshl_b32 s25, s52, 3
        s_add_u32 s24, s24, s25
        s_lshl_b32 s24, s24, 2
        s_add_u32 s71, s24, {FLAG_OFF}
        s_lshl_b32 s24, s53, 3
        s_add_u32 s24, s24, s28
        s_mul_i32 s35, s24, 3072
        s_add_u32 s35, s35, s39
        s_mul_i32 s25, s24, 171
        s_lshr_b32 s25, s25, 9
        s_mul_i32 s34, s25, 3
        s_sub_u32 s34, s24, s34
        s_mul_i32 s34, s34, 96
        s_mul_i32 s64, s54, 288
        s_add_u32 s34, s34, s64
        s_lshr_b32 s64, s25, 2
        s_and_b32 s25, s25, 3
        s_mul_i32 s25, s25, 288
        s_lshl_b32 s64, s64, 4
        s_add_u32 s25, s25, s64
        s_mul_i32 s64, s52, 1152
        s_add_u32 s25, s25, s64
        s_mul_i32 s25, s25, 1152
        s_add_u32 s34, s34, s25""".split("\n"):
            q(s_.strip())
        L.append(lambda: (e("s_cmp_ge_u32 s24, 108"), e(f"s_cselect_b32 s34, {F*D*2:#x}, s34"), e(f"s_cselect_b32 s35, {F*D*2:#x}, s35")))
        L.append(lambda: (e(f"s_add_u32 s60, s26, {WS_PART:#x}"), e("s_addc_u32 s61, s27, 0")))
        L.append(lambda: (e(f"s_add_u32 s20, s26, {WS_WDP:#x}"), e("s_addc_u32 s21, s27, 0")))
        return L
    def pk_addr_ops():
        L = []
        q = lambda s_: L.append(lambda: e(s_))
        for s_ in f"""v_lshrrev_b32 v4, 5, v2
        v_mul_u32_u24 v4, 144, v4
        v_bfe_u32 v5, v2, 1, 4
        v_add_u32 v4, v4, v5
        v_mul_u32_u24 v4, 1152, v4
        v_and_b32 v5, 1, v2
        v_lshl_add_u32 v9, v5, 4, v4
        v_lshrrev_b32 v4, 4, v2
        v_lshlrev_b32 v4, 3, v4
        v_bfe_u32 v5, v2, 2, 2
        v_add_u32 v4, v4, v5
        v_lshlrev_b32 v4, 5, v4
        v_and_b32 v5, 3, v2
        v_lshl_add_u32 v4, v5, 3, v4
        s_lshl_b32 s64, s28, 10
        s_add_u32 s64, s64, {PK_L}
        v_add_u32 v11, s64, v4""".split("\n"):
            q(s_.strip())
        return L
    def prefill_ops():
        L = []
        q = lambda s_: L.append(lambda: e(s_))
        for r in range(12, 16): q(f"v_mov_b32 v{r}, -1")
        for s_ in f"""s_lshl_b32 s24, s53, 2
        s_add_u32 s24, s24, s54
        s_lshl_b32 s24, s24, 2
        s_add_u32 s24, s24, s56
        s_lshl_b32 s24, s24, 2
        s_add_u32 s24, s24, s52
        s_mul_i32 s24, s24, 9216
        s_lshl_b32 s25, s57, 12
        s_add_u32 s24, s24, s25
        s_add_u32 s25, s24, 4096""".split("\n"):
            q(s_.strip())
        for i in range(5):
            def st(i=i):
                e(f"buffer_store_dwordx4 v[12:15], v3, s[60:63], s{24 if i < 4 else 25} offen offset:{1024*(i%4)} sc1")
                vm.issue("pf")
            L.append(st)
        return L
    def pk_touch_ops():
        L = []
        q = lambda s_: L.append(lambda: e(s_))
        for s_ in f"""v_lshrrev_b32 v4, 5, v2
        v_mul_u32_u24 v4, 144, v4
        v_bfe_u32 v5, v2, 1, 4
        v_add_u32 v4, v4, v5
        v_mul_u32_u24 v4, 1152, v4
        v_and_b32 v5, 1, v2
        v_mul_u32_u24 v5, 92, v5
        v_add_u32 v{T}, v5, v4""".split("\n"):
            q(s_.strip())
        def ld():
            e(f"buffer_load_dword v{T+1}, v{T}, s[4:7], s34 offen")
            vm.issue("pkt")
        L.append(ld)
        return L
    def pk_dma_ops(i):
        def ld():
            e("s_mov_b32 m0, s64")
            e("s_nop 0")
            e(f"buffer_load_dwordx4 v9, s[4:7], s34 offen lds")
            e("s_add_u32 s34, s34, 32")
            vm.issue(("pkd", i))
        return [("P", 99, ld)]
    def pk_rd_ops(i):
        def rd():
            vm.need(("pkd", i))
            e("ds_read_b64_tr_b16 v[12:13], v11"); lg.issue(("pkr", i))
            e("ds_read_b64_tr_b16 v[14:15], v11 offset:128"); lg.issue(("pkr", i))
        def st():
            lg.need(("pkr", i))
            e(f"buffer_store_dwordx4 v[12:15], v3, s[20:23], s35 offen offset:{1024*i} sc1")
            vm.issue(("pks", i)); issued.add(("pks", i))
            if i < 2: mem.extend(pk_dma_ops(i + 1))
        return [rd], [st]
    def publish(level):
        e(f"v_mov_b32 v4, {level}")
        e("v_mov_b32 v5, 0")
        e("s_mov_b64 exec, 1")
        e("buffer_store_dword v4, v5, s[60:63], s55 offen sc1")
        e("s_mov_b64 exec, -1")
        vm.issue("prog")
    def retired_level():
        lv = 0
        while ("st", lv) in issued and ("st", lv) not in vm.q: lv += 1
        return lv
    def d_valu_ops():
        L = []
        q = lambda s_: L.append(lambda: e(s_))
        for s_ in f"""s_lshl_b32 s24, s53, 7
        s_lshl_b32 s25, s56, 5
        s_add_u32 s24, s24, s25
        v_and_b32 v4, 15, v2
        v_add_u32 v4, s24, v4
        v_lshrrev_b32 v5, 5, v2
        v_mul_u32_u24 v5, 18, v5
        v_bfe_u32 v{DA}, v2, 4, 1
        v_add_u32 v5, v5, v{DA}
        v_lshlrev_b32 v5, 15, v5
        v_lshl_add_u32 v{DA+5}, v4, 4, v5
        s_mul_i32 s24, s57, 9216
        v_add_u32 v{DA+6}, s24, v3
        v_add_u32 v{DA+7}, s24, v6
        v_add_u32 v{DA+8}, s24, v7
        v_add_u32 v{DA+9}, s24, v8
        s_add_u32 s68, s39, s36
        s_add_u32 s69, s39, s31""".split("\n"):
            q(s_.strip())
        return L
    def d_dma_ops(c):
        st = (c + 1) % 4
        def opt():
            lab = A.newlabel("kc_skip")
            e("s_cmp_ge_u32 s28, 4")
            e(f"s_cbranch_scc1 {lab}")
            e(f"s_add_u32 m0, s31, {st*KC_STAGE}")
            e(f"s_add_u32 s38, s69, {c*KC_STAGE}")
            e(f"buffer_load_dwordx4 v3, s[20:23], s38 offen sc1 lds")
            A.label(lab)
        ops = [opt, lambda: e(f"s_add_u32 m0, s36, {st*KC_STAGE}"), lambda: e(f"s_add_u32 s38, s68, {c*KC_STAGE}")]
        for i in range(4):
            def ld(i=i):
                e(f"buffer_load_dwordx4 v3, s[20:23], s38 offen offset:{1024*i} sc1 lds")
                vm.issue(("DW", c))
            ops.append(ld)
        return [("DW", c, op) for op in ops]
    def d_h_ops(sx):
        c, hlf = divmod(sx, 2)
        sr = [40, 70, 65, 66][sx % 4]
        ops = [lambda: e(f"s_add_u32 s{sr}, s41, {(72*hlf + 2*c)*32768:#x}")]
        for tt in range(2):
            def ld(tt=tt):
                e(f"buffer_load_dwordx4 {v(DH+8*(sx%DNH)+4*tt,4)}, v{DA+5}, s[16:19], s{sr} offen offset:{256*tt} sc1")
                vm.issue(("H", sx))
            ops.append(ld)
        return [("H", sx, op) for op in ops]
    FV, FX = 12, 13
    def flag_addr_ops():
        L = []
        q = lambda s_: L.append(lambda: e(s_))
        for s_ in f"""v_and_b32 v4, 7, v2
        v_bfe_u32 v5, v2, 3, 2
        v_lshlrev_b32 v5, 5, v5
        v_add_u32 v4, v4, v5
        v_lshlrev_b32 v4, 2, v4
        v_add_u32 v4, s71, v4
        v_and_b32 v5, 15, v2
        v_lshlrev_b32 v5, 2, v5
        v_add_u32 v5, s32, v5
        v_cmp_gt_u32 vcc, 32, v2
        s_nop 1
        v_cndmask_b32 v{FV}, v5, v4, vcc
        s_lshl_b32 s24, s54, 6
        s_lshl_b32 s25, s53, 2
        s_add_u32 s24, s24, s25
        s_add_u32 s24, s24, {FLAG_OFF+8192}
        v_and_b32 v4, 3, v2
        v_lshlrev_b32 v4, 8, v4
        v_add_u32 v4, s24, v4
        v_cmp_gt_u32 vcc, 48, v2
        s_nop 1
        v_cndmask_b32 v{FV}, v4, v{FV}, vcc""".split("\n"):
            q(s_.strip())
        return L
    mark = [0]
    def flag_ld():
        lab = A.newlabel("kc_fl")
        e("s_cmp_lg_u32 s28, 0")
        e(f"s_cbranch_scc1 {lab}")
        e(f"buffer_load_dword v{FX}, v{FV}, s[60:63], 0 offen sc1")
        A.label(lab)
        mark[0] = vm.total
    spins = []
    def flag_chk(level):
        ok, sp = A.newlabel("kc_fok"), A.newlabel("kc_spin")
        e("s_cmp_lg_u32 s28, 0")
        e(f"s_cbranch_scc1 {ok}")
        e(f"s_waitcnt vmcnt({min(vm.total - mark[0], 63)})")
        e(f"v_cmp_gt_u32 vcc, {level}, v{FX}")
        e("s_nop 1")
        e(f"s_cbranch_vccnz {sp}")
        A.label(ok)
        spins.append((ok, sp, level))
    def emit_spins():
        for ok, sp, level in spins:
            A.label(sp)
            e("s_mov_b32 s67, 0")
            lp = A.newlabel("kc_sl")
            A.label(lp)
            e(f"""
            buffer_load_dword v{FX}, v{FV}, s[60:63], 0 offen sc1
            s_add_u32 s67, s67, 1
            s_waitcnt vmcnt(0)
            v_cmp_gt_u32 vcc, {level}, v{FX}
            s_cmp_ge_u32 s67, 0x8000
            s_cbranch_scc1 {ok}
            s_cbranch_vccnz {lp}
            s_branch {ok}
            """)
    def cs_ld_ops(grp):
        L = []
        dst = [CS, CS + 4, T] if grp == 0 else [CS + 4, T, T + 4]
        for i in range(3):
            def ld(i=i):
                e(f"buffer_load_dwordx4 {v(dst[i],4)}, v13, s[20:23], s55 offen")
                e(f"s_add_u32 s55, s55, {2*F*4}")
                vm.issue(("cs", grp))
            L.append(ld)
        return L
    def cs_add_ops(grp):
        L = [lambda: vm.need(("cs", grp))]
        for sr in ([CS + 4, T] if grp == 0 else [CS + 4, T, T + 4]):
            for r in range(4): L.append(lambda r=r, sr=sr: e(f"v_add_f32 v{CS+r}, v{CS+r}, v{sr+r}"))
        if grp == 1:
            def w():
                e(f"ds_write_b128 v11, {v(CS,4)}"); lg.issue("csw"); issued.add("csw")
            L.append(w)
        return L
    ST.stamp()
    if int(os.environ.get("KC_PRIO", "0")):
        lab = A.newlabel("kc_prio")
        e("s_cmp_lt_u32 s28, 4")
        e(f"s_cbranch_scc1 {lab}")
        e("s_setprio 1")
        A.label(lab)
    vm.need(("W", 0))
    e("s_barrier")
    ST.stamp()
    NF = 324
    AHEAD = NW - 1
    KC_D1 = int(os.environ.get("KC_D1", "1"))
    mem = dma_ops(1) + ([] if KC_D1 else dma_ops(2))
    val = [lambda: None] * 16 + pub_ops()
    nr = 0
    F1 = 36 * NP1
    def flush(kind, idx):
        while any(p[0] == kind and p[1] <= idx for p in mem):
            mem.pop(0)[2]()
    def next_read():
        nonlocal nr, mem
        if nr >= NF: return
        if nr % 36 == 0 and nr > 0:
            c = nr // 36
            lg.drain()
            flush("W", c)
            vm.need(("W", c))
            if FUSE and c == 6:
                assert ("pks", 2) in issued
                vm.need(("pks", 2))
            if FUSE and c >= 6: vm.need(("st", c - 3))
            if FUSE and c == 8: flag_chk(4)
            e("s_barrier")
            ST.stamp()
            if c == NP1 - 1: assert "csw" in issued
            if KC_D1 and c <= NP1: mem += dma_ops(c + 1)
            if c + 2 < 9 and (not KC_D1 or c >= NP1): mem += dma_ops(c + 2)
            if not FUSE:
                if c == 7: mem += wd_dma_ops()
            else:
                if c >= 6: publish(retired_level())
                if c == 6:
                    lab = A.newlabel("kc_pkf")
                    e("s_cmp_lg_u32 s28, 0")
                    e(f"s_cbranch_scc1 {lab}")
                    e("v_mov_b32 v4, 15")
                    e("s_mov_b64 exec, 1")
                    e("buffer_store_dword v4, v5, s[60:63], s33 offen sc1")
                    e("s_mov_b64 exec, -1")
                    A.label(lab)
        wread(nr); nr += 1
    for _ in range(AHEAD): next_read()
    xq = []
    for sx in range(NX0, NXP): xq += x_ops(sx)
    for f in range(NF):
        s_, j, m = finfo(f)
        if f < F1 and f % (2 * NP1) == 0:
            while any(p[1] <= s_ for p in xq): xq.pop(0)[2]()
            vm.need(("X", s_))
            if s_ + NXP < 18: xq += x_ops(s_ + NXP)
            if s_ == 1: val += cs_ld_ops(0)
            if s_ == 7: val += cs_add_ops(0) + cs_ld_ops(1)
            if s_ == 10: val += cs_add_ops(1)
            if s_ == 11: val += (d_salu_ops() + pk_touch_ops()) if FUSE else wd_setup_ops()
            if s_ == 14: val += statld_ops()
            if s_ == 17: val += [lambda: cs_rd(0)] + statfin_ops()
        if f == F1:
            if NP1 == 3:
                while val: val.pop(0)()
                e("s_nop 3")
                for op in epi_ops(0): op()
                val += epi_ops(1) + epi_ops(2)
            else:
                val += [lambda: None] * 4 + epi_ops(0) + epi_ops(1)
        if f > F1 and f % 36 == 2 and f // 36 > NP1:
            ep = epi_ops(f // 36 - 1)
            if f // 36 == 8 and not FUSE:
                wp = wd_pack_ops()
                ep = ep[:60] + wp[:5] + ep[60:] + wp[17:]
            val += ep
        if FUSE and f in (F1 + 30, F1 + 56, F1 + 82):
            rd_, st_2 = pk_rd_ops((f - F1 - 30) // 26)
            val = rd_ + val[:8] + st_2 + val[8:]
        if FUSE and f == 216 + 4: val = flag_addr_ops() + val
        if FUSE and f == 252 + 8: val = [flag_ld] + val
        if FUSE and f == F1 + 2:
            val = pk_addr_ops() + [lambda: mem.extend(pk_dma_ops(0))] + (prefill_ops() if SENT else []) + val
        if f >= 108 and f % 36 == 0:
            need = ("st", f // 36 - 3)
            while need not in issued:
                val.pop(0)()
        if FUSE and f == 288 + 4:
            dv = d_valu_ops()
            val = dv + [lambda: xq.extend(d_dma_ops(0) + (d_dma_ops(1) if PF8 >= 2 else []))] + val
        if FUSE and f == 288 + 17:
            for sx in range(2 * PF8): xq.extend(d_h_ops(sx))
        if f % 2 == 0: lg.need(("w", f + 1))
        for tt in range(2):
            c_ = v(ACC + 16 * (j % 3) + 8 * m + 4 * tt, 4)
            src_c = "0" if s_ == 0 else c_
            e(f"v_mfma_f32_16x16x32_bf16 {c_}, {v(WR+4*(f%NW),4)}, {v(XR+8*s_+4*tt,4)}, {src_c}")
            if tt == 0: next_read()
            if tt == 1 or f < 12 or (FUSE and f >= 288):
                if xq: xq.pop(0)[2]()
                elif mem: mem.pop(0)[2]()
            if f < F1: nv = 2
            else:
                rem = (36 - f % 36) * 2 - tt
                nv = min(-(-len(val) // max(rem - 6, 1)), 3 if f < F1 + 72 else 99)
                if f < F1 + 72: nv = min(nv, 2)
                if FUSE and 288 + 4 <= f < 288 + 9: nv = 3
            for _ in range(nv):
                if val: val.pop(0)()
    ST.mute = False
    ST.stamp()
    while val: val.pop(0)()
    if not FUSE:
        e("s_nop 7")
        for op in epi_ops(8): op()
        assert not mem
        ST.stamp()
        if ST.on: e("s_waitcnt vmcnt(0)")
        ST.stamp(); ST.real(1)
        ST.dump(8)
        A.label("kc_done")
        e("s_endpgm")
        slowstat()
        A.kernel_end(name, 256, 102 if ST.on else 72)
        return
    while xq: xq.pop(0)[2]()
    while mem: mem.pop(0)[2]()
    vm.need(("st", 6))
    publish(retired_level())
    flag_ld()
    for op in epi_ops(8): op()
    val = []
    pend = []
    for c_ in range(PF8, 3):
        if c_ >= 2 or c_ >= PF8: pend += d_dma_ops(c_)
        pend += d_h_ops(2 * c_) + d_h_ops(2 * c_ + 1)
    if PF8 == 3: pend = d_dma_ops(2)
    DNF = 18 * 9
    DAH = 6
    nh = 0
    def dflush(kind, idx):
        while any(p[0] == kind and p[1] <= idx for p in pend):
            pend.pop(0)[2]()
    def d_read(h):
        f, hf = divmod(h, 2)
        st_, j = divmod(f, 9)
        c, ks = divmod(st_, 2)
        r = DWR + 4 * (f % DNW)
        if hf: return
        e(f"ds_read_b128 {v(r,4)}, v{DA+6+(c+1)%4} offset:{18432*ks + 1024*j}")
        lg.issue(("dw", f))
    def d_next_read():
        nonlocal nh, pend
        if nh >= 2 * DNF: return
        if nh % 36 == 0:
            c = nh // 36
            lg.drain()
            dflush("DW", c)
            vm.need(("DW", c))
            if c in (1, 3, 5): flag_chk({1: 6, 3: 7, 5: 9}[c])
            e("s_barrier")
            if c == 5: pend = defer + pend
            if STAMP == "kd2": ST2.stamp()
            if c + 3 < 9: pend += d_dma_ops(c + 3)
            if c == 1:
                vm.need(("st", 8))
                publish(9)
        d_read(nh); nh += 1
    defer = []
    ST2 = ST
    for _ in range(2 * DAH): d_next_read()
    for f in range(DNF):
        st_, j = divmod(f, 9)
        if j == 0:
            dflush("H", st_)
            vm.need(("H", st_))
            if st_ == 3: flag_ld()
        if f == 56: flag_ld()
        if f % 2 == 0:
            lg.need(("dw", min(f + 1, DNF - 1)))
        for tt in range(2):
            c_ = v(DACC + 36 * tt + 4 * j, 4)
            src_c = "0" if st_ == 0 else c_
            e(f"v_mfma_f32_16x16x32_bf16 {c_}, {v(DWR+4*(f%DNW),4)}, {v(DH+8*(st_%DNH)+4*tt,4)}, {src_c}")
            d_next_read()
            if pend and (tt == 1 or f < 18): pend.pop(0)[2]()
            if f >= 2:
                for _ in range(3):
                    if val: val.pop(0)()
        if j == 8 and st_ + DNH < 18:
            nx = st_ + DNH
            if nx == 14:
                defer.extend(d_h_ops(nx)); continue

            pend = d_h_ops(nx) + pend
    assert not pend and not val
    ST.n = 12
    ST.stamp()
    emit_d_tail(A, DACC, 60, 53, 54, 52, 56, 57)
    if FUSE_E and SENT:
        e(f"""
        s_cmp_ge_u32 s28, 5
        s_cbranch_scc1 kc_fin
        s_load_dwordx2 s[4:5], s[0:1], {KA_OUT}
        v_lshlrev_b32 v20, 4, v0
        v_lshrrev_b32 v4, 5, v0
        v_and_b32 v5, 31, v0
        s_lshl_b32 s33, s53, 7
        s_lshl_b32 s34, s52, 5
        s_add_u32 s33, s33, s34
        v_add_u32 v5, s33, v5
        s_mul_i32 s34, s54, 18
        v_add_u32 v4, s34, v4
        v_lshlrev_b32 v21, 15, v4
        v_lshl_add_u32 v21, v5, 4, v21
        s_movk_i32 s35, 1152
        v_mul_lo_u32 v22, v5, s35
        v_lshl_add_u32 v22, v4, 4, v22
        v_cmp_gt_u32 vcc, 288, v0
        s_and_saveexec_b64 s[58:59], vcc
        s_mov_b32 s34, {9*32768}
        buffer_load_dwordx4 v[28:31], v21, s[12:15], 0 offen
        buffer_load_dwordx4 v[32:35], v21, s[12:15], s34 offen
        s_add_u32 s47, s42, s52
        s_mul_i32 s47, s47, {4*9216}
        s_mov_b32 s6, {S*D*2:#x}
        s_mov_b32 s40, 0xffff0000
        s_mov_b32 s67, 0
        s_waitcnt vmcnt({SENTW})
        """)
        A.label("kc_poll")
        e("s_mov_b32 s46, s47")
        for sr in range(4):
            e(f"buffer_load_dwordx4 {v(40+8*sr,4)}, v20, s[60:63], s46 offen sc1")
            e(f"s_add_u32 s34, s46, {288*16}")
            e(f"buffer_load_dwordx4 {v(44+8*sr,4)}, v20, s[60:63], s34 offen sc1")
            e(f"s_add_u32 s46, s46, 9216")
        e("s_add_u32 s67, s67, 1")
        for k_ in range(8):
            e(f"s_waitcnt vmcnt({7-k_})")
            b = 40 + 4 * k_
            if k_ == 0:
                e(f"v_max_u32 v26, v{b}, v{b+1}")
                e(f"v_max3_u32 v26, v26, v{b+2}, v{b+3}")
            else:
                e(f"v_max3_u32 v26, v26, v{b}, v{b+1}")
                e(f"v_max3_u32 v26, v26, v{b+2}, v{b+3}")
        e("""
        v_cmp_eq_u32 vcc, -1, v26
        s_cmp_ge_u32 s67, 0x4000
        s_cbranch_scc1 kc_go
        s_cbranch_vccnz kc_poll
        """)
        A.label("kc_go")
        for it in range(2):
            for d in range(4):
                e(f"v_lshlrev_b32 v{104+8*it+2*d}, 16, v{28+4*it+d}")
                e(f"v_and_b32 v{105+8*it+2*d}, s40, v{28+4*it+d}")
        for sr in range(4):
            for it in range(2):
                for d in range(4):
                    r = 40 + 8 * sr + 4 * it + d
                    e(f"v_lshlrev_b32 v120, 16, v{r}")
                    e(f"v_and_b32 v121, s40, v{r}")
                    e(f"v_pk_add_f32 {v(104+8*it+2*d,2)}, {v(104+8*it+2*d,2)}, v[120:121]")
        for it in range(2):
            for d in range(4):
                e(f"v_cvt_pk_bf16_f32 v{28+4*it+d}, v{104+8*it+2*d}, v{105+8*it+2*d}")
        e("s_waitcnt lgkmcnt(0)")
        e("buffer_store_dwordx4 v[28:31], v22, s[4:7], 0 offen")
        e("buffer_store_dwordx4 v[32:35], v22, s[4:7], 0 offen offset:144")
        e("s_mov_b64 exec, s[58:59]")
        A.label("kc_fin")
    elif FUSE_E:
        F2 = FLAG_OFF + 8192 + 1024
        e(f"""
        s_load_dwordx2 s[4:5], s[0:1], {KA_OUT}
        v_lshlrev_b32 v20, 4, v0
        v_lshrrev_b32 v4, 5, v0
        v_and_b32 v5, 31, v0
        s_lshl_b32 s33, s53, 7
        s_lshl_b32 s34, s52, 5
        s_add_u32 s33, s33, s34
        v_add_u32 v5, s33, v5
        s_mul_i32 s34, s54, 18
        v_add_u32 v4, s34, v4
        v_lshlrev_b32 v21, 15, v4
        v_lshl_add_u32 v21, v5, 4, v21
        s_movk_i32 s35, 1152
        v_mul_lo_u32 v22, v5, s35
        v_lshl_add_u32 v22, v4, 4, v22
        s_mov_b32 s34, {9*32768}
        buffer_load_dwordx4 v[28:31], v21, s[12:15], 0 offen
        buffer_load_dwordx4 v[32:35], v21, s[12:15], s34 offen
        s_add_u32 s45, s42, s56
        s_lshl_b32 s45, s45, 7
        s_lshl_b32 s33, s52, 3
        s_add_u32 s45, s45, s33
        s_lshl_b32 s33, s57, 2
        s_add_u32 s45, s45, s33
        s_add_u32 s45, s45, {F2}
        v_mov_b32 v23, 1
        v_mov_b32 v24, 0
        s_add_u32 s46, s42, s52
        s_lshl_b32 s47, s46, 7
        s_add_u32 s47, s47, {F2}
        s_mul_i32 s46, s46, {4*9216}
        v_and_b32 v25, 7, v2
        v_lshlrev_b32 v25, 2, v25
        s_waitcnt vmcnt(2) lgkmcnt(0)
        s_mov_b64 exec, 1
        buffer_store_dword v23, v24, s[60:63], s45 offen sc1
        s_mov_b64 exec, -1
        s_mov_b32 s6, {S*D*2:#x}
        s_cmp_ge_u32 s28, 5
        s_cbranch_scc1 kc_fin
        s_cmp_lg_u32 s28, 0
        s_cbranch_scc1 kc_go
        s_mov_b32 s67, 0
        """)
        A.label("kc_poll")
        e(f"""
        buffer_load_dword v26, v25, s[60:63], s47 offen sc1
        s_add_u32 s67, s67, 1
        s_waitcnt vmcnt(0)
        v_cmp_ne_u32 vcc, 1, v26
        s_cmp_ge_u32 s67, 0x8000
        s_cbranch_scc1 kc_go
        s_cbranch_vccnz kc_poll
        """)
        A.label("kc_go")
        e("""
        s_barrier
        v_cmp_gt_u32 vcc, 288, v0
        s_and_saveexec_b64 s[58:59], vcc
        """)
        for sr in range(4):
            e(f"buffer_load_dwordx4 {v(40+8*sr,4)}, v20, s[60:63], s46 offen sc1")
            e(f"s_add_u32 s34, s46, {288*16}")
            e(f"buffer_load_dwordx4 {v(44+8*sr,4)}, v20, s[60:63], s34 offen sc1")
            e(f"s_add_u32 s46, s46, 9216")
        e("s_mov_b32 s40, 0xffff0000")
        e("s_waitcnt vmcnt(8)")
        for it in range(2):
            for d in range(4):
                e(f"v_lshlrev_b32 v{104+8*it+2*d}, 16, v{28+4*it+d}")
                e(f"v_and_b32 v{105+8*it+2*d}, s40, v{28+4*it+d}")
        for sr in range(4):
            e(f"s_waitcnt vmcnt({6-2*sr})")
            for it in range(2):
                for d in range(4):
                    r = 40 + 8 * sr + 4 * it + d
                    e(f"v_lshlrev_b32 v120, 16, v{r}")
                    e(f"v_and_b32 v121, s40, v{r}")
                    e(f"v_pk_add_f32 {v(104+8*it+2*d,2)}, {v(104+8*it+2*d,2)}, v[120:121]")
        for it in range(2):
            for d in range(4):
                e(f"v_cvt_pk_bf16_f32 v{28+4*it+d}, v{104+8*it+2*d}, v{105+8*it+2*d}")
        e("buffer_store_dwordx4 v[28:31], v22, s[4:7], 0 offen")
        e("buffer_store_dwordx4 v[32:35], v22, s[4:7], 0 offen offset:144")
        e("s_mov_b64 exec, s[58:59]")
        A.label("kc_fin")
    if ST.on: e("s_waitcnt vmcnt(0)")
    ST.stamp(); ST.real(1)
    ST.dump(8)
    A.label("kc_done")
    e("s_endpgm")
    slowstat()
    emit_spins()
    A.kernel_end(name, 256, 102 if ST.on else 72)

KD_STAGE = 36864
FLAG_OFF = 4 * S * D * 2
def k_d(A):
    name = "kd_kernel"
    A.launch(name, 256, 512, 4 * KD_STAGE)
    A.kernel_begin(name)
    e = A.e
    ACC = 184
    WR = 136
    NW = 12
    HR = 40
    NH = int(os.environ.get("KD_NH", "6"))
    DW = int(os.environ.get("KD_DW", "3"))
    XP = os.environ.get("XP", "")
    ST = Stamps(A, STAMP == "kd")
    ST.stamp(); ST.real(0)
    e(f"""
    s_cmp_ge_u32 s2, 256
    s_cbranch_scc1 kd_done
    s_load_dwordx4 s[4:7], s[0:1], {KA_WD}
    s_load_dwordx2 s[26:27], s[0:1], {KA_WS}
    v_lshrrev_b32 v1, 6, v0
    v_and_b32 v2, 63, v0
    s_nop 0
    v_readfirstlane_b32 s28, v1
    s_nop 3
    s_and_b32 s29, s2, 7
    s_lshr_b32 s30, s2, 3
    s_lshr_b32 s31, s29, 1
    s_and_b32 s29, s29, 1
    s_lshl_b32 s29, s29, 3
    s_lshr_b32 s32, s30, 2
    s_add_u32 s29, s29, s32
    s_and_b32 s30, s30, 3
    s_and_b32 s56, s28, 3
    s_lshr_b32 s57, s28, 2
    """)
    e(f"""
    s_lshl_b32 s33, s29, 7
    s_lshl_b32 s34, s56, 5
    s_add_u32 s33, s33, s34
    v_and_b32 v4, 15, v2
    v_add_u32 v4, s33, v4
    v_lshrrev_b32 v5, 4, v2
    v_lshlrev_b32 v5, 15, v5
    v_lshl_add_u32 v9, v4, 4, v5
    """)
    e(f"""
    v_lshlrev_b32 v3, 4, v2
    s_mul_i32 s33, s57, 9216
    v_add_u32 v16, s33, v3
    v_add_u32 v17, {KD_STAGE}, v16
    v_add_u32 v18, {2*KD_STAGE}, v16
    v_add_u32 v19, {3*KD_STAGE}, v16
    """)
    e("s_waitcnt lgkmcnt(0)")
    A.srd_off(8, 26, 27, WS_WDP, F * D * 2)
    A.srd_off(12, 26, 27, WS_HH, S * F * 2)
    A.srd_off(16, 26, 27, WS_PART, FLAG_OFF + 8192)
    A.srd_off(20, 26, 27, WS_H, S * D * 2)
    A.srd(48, 6, 7, S * D * 2)
    e(f"""
    s_lshl_b32 s36, s28, 12
    s_lshl_b32 s33, s31, 2
    s_add_u32 s33, s33, s30
    s_mul_i32 s33, s33, {36*9216}
    s_add_u32 s37, s33, s36
    s_lshl_b32 s25, s28, 10
    s_add_u32 s25, s25, 32768
    s_add_u32 s35, s33, s25
    s_mul_i32 s41, s31, {144*32768}
    s_lshl_b32 s33, s57, 17
    s_add_u32 s41, s41, s33
    """)
    vm = Cnt(A, "vmcnt", 63)
    lg = Cnt(A, "lgkmcnt", 15)
    def dma_ops(c):
        st = c % 4
        def opt():
            lab = A.newlabel("kd_skip")
            e("s_cmp_ge_u32 s28, 4")
            e(f"s_cbranch_scc1 {lab}")
            e(f"s_add_u32 m0, s25, {st*KD_STAGE}")
            e(f"s_add_u32 s38, s35, {c*KD_STAGE}")
            e(f"buffer_load_dwordx4 v3, s[8:11], s38 offen lds")
            A.label(lab)
        ops = [opt, lambda: e(f"s_add_u32 m0, s36, {st*KD_STAGE}"), lambda: e(f"s_add_u32 s38, s37, {c*KD_STAGE}")]
        for i in range(4):
            def ld(i=i):
                e(f"buffer_load_dwordx4 v3, s[8:11], s38 offen offset:{1024*i} lds")
                vm.issue(("W", c))
            ops.append(ld)
        return [("W", c, op) for op in ops]
    def h_ops(sx):
        sr = [40, 58, 59, 24][sx % 4]
        ops = [lambda: e(f"s_add_u32 s{sr}, s41, {sx*8*32768:#x}")]
        for tt in range(2):
            def ld(tt=tt):
                e(f"buffer_load_dwordx4 {v(HR+8*(sx%NH)+4*tt,4)}, v9, s[12:15], s{sr} offen offset:{256*tt}")
                vm.issue(("H", sx))
            ops.append(ld)
        return [("H", sx, op) for op in ops]
    def run_ops(ops):
        for op in ops:
            op[2]()
    def wread_half(h):
        f, hf = divmod(h, 2)
        st_, j = divmod(f, 9)
        c, ks = divmod(st_, 2)
        base = 16 + c % 4
        r = WR + 4 * (f % NW)
        if hf: return
        e(f"ds_read_b128 {v(r,4)}, v{base} offset:{18432*ks + 1024*j}")
        lg.issue(("w", f))
    PRO = KD_PRO
    for c in range(PRO):
        run_ops(dma_ops(c))
        for sx in range(2 * c, min(2 * c + 2, NH)): run_ops(h_ops(sx))
    ST.stamp()
    vm.need(("W", 0))
    e("s_barrier")
    ST.stamp()
    NF = 18 * 9
    AHEAD = 6
    GRP = int(os.environ.get("GRP", "2"))
    pend = []
    for c in range(PRO, max(DW + 1, (NH + 1) // 2)):
        if c <= DW and c < 4: pend += dma_ops(c)
        for sx in range(2 * c, min(2 * c + 2, NH)): pend += h_ops(sx)
    nh = 0
    def flush(kind, idx):
        while any(p[0] == kind and p[1] <= idx for p in pend):
            run_ops([pend.pop(0)])
    def next_read():
        nonlocal nh, pend
        if nh >= 2 * NF: return
        if nh % 36 == 0 and nh > 0:
            c = nh // 36
            lg.drain()
            flush("W", c)
            vm.need(("W", c))
            e("s_barrier")
            ST.stamp()
            if c + DW < 9:
                pend += dma_ops(c + DW)
        wread_half(nh); nh += 1
    for _ in range(2 * AHEAD): next_read()
    for f in range(NF):
        st_, j = divmod(f, 9)
        if j == 0:
            flush("H", st_)
            vm.need(("H", st_))
        if f % GRP == 0:
            lg.need(("w", min(f + GRP - 1, NF - 1)))
        for tt in range(2):
            c_ = v(ACC + 36 * tt + 4 * j, 4)
            src_c = "0" if st_ == 0 else c_
            e(f"v_mfma_f32_16x16x32_bf16 {c_}, {v(WR+4*(f%NW),4)}, {v(HR+8*(st_%NH)+4*tt,4)}, {src_c}")
            next_read()
            if pend and tt == 1:
                pend.pop(0)[2]()
        if j == 8 and st_ + NH < 18:
            pend = h_ops(st_ + NH) + pend
    assert not pend
    ST.stamp()
    e(f"""
    s_mul_i32 s33, s28, 9216
    v_lshlrev_b32 v3, 4, v2
    v_add_u32 v4, s33, v3
    s_xor_b32 s34, s28, 4
    s_mul_i32 s34, s34, 9216
    v_add_u32 v5, s34, v3
    s_barrier
    s_cmp_eq_u32 s57, 0
    s_cbranch_scc1 kd_h0
    """)
    for j in range(9):
        e(f"ds_write_b128 v4, {v(ACC+4*j,4)} offset:{1024*j}")
    for j in range(9):
        for r in range(4):
            e(f"v_mov_b32 v{ACC+4*j+r}, v{ACC+36+4*j+r}")
    e("s_branch kd_hj")
    A.label("kd_h0")
    for j in range(9):
        e(f"ds_write_b128 v4, {v(ACC+36+4*j,4)} offset:{1024*j}")
    A.label("kd_hj")
    e("s_waitcnt lgkmcnt(0)")
    e("s_barrier")
    for j in range(9):
        e(f"ds_read_b128 {v(40+4*j,4)}, v5 offset:{1024*j}")
    e(f"""
    s_lshl_b32 s42, s29, 2
    s_add_u32 s42, s42, s30
    s_lshl_b32 s42, s42, 2
    s_add_u32 s43, s42, s56
    s_lshl_b32 s43, s43, 2
    s_add_u32 s43, s43, s31
    s_mul_i32 s44, s43, 9216
    s_lshl_b32 s33, s57, 8
    s_add_u32 s44, s44, s33
    v_and_b32 v6, 15, v2
    v_lshlrev_b32 v6, 4, v6
    v_bfe_u32 v7, v2, 4, 1
    v_lshl_add_u32 v8, v7, 10, v6
    v_lshrrev_b32 v24, 5, v2
    v_lshl_add_u32 v8, v24, 9, v8
    v_lshl_add_u32 v6, v24, 9, v6
    v_lshl_add_u32 v6, v7, 3, v6
    s_add_u32 s45, s44, 4096
    s_add_u32 s46, s44, 8192
    """)
    for j in range(9):
        e(f"s_waitcnt lgkmcnt({8-j})")
        e(f"v_pk_add_f32 {v(ACC+4*j,2)}, {v(ACC+4*j,2)}, {v(40+4*j,2)}")
        e(f"v_pk_add_f32 {v(ACC+4*j+2,2)}, {v(ACC+4*j+2,2)}, {v(40+4*j+2,2)}")
        O = 80 + 2 * j
        e(f"v_cvt_pk_bf16_f32 v{O}, v{ACC+4*j}, v{ACC+4*j+1}")
        e(f"v_cvt_pk_bf16_f32 v{O+1}, v{ACC+4*j+2}, v{ACC+4*j+3}")
        if j >= 2 and j % 2 == 0:
            jp = j // 2 - 1
            P_ = 80 + 4 * jp
            e(f"v_permlane16_swap_b32 v{P_}, v{P_+2}")
            e(f"v_permlane16_swap_b32 v{P_+1}, v{P_+3}")
            e(f"buffer_store_dwordx4 {v(P_,4)}, v8, s[16:19], s{44+jp//2} offen offset:{2048*(jp%2)} sc1")
    e(f"buffer_store_dwordx2 v[96:97], v6, s[16:19], s46 offen sc1")
    if KD_SEP:
        ST.stamp()
        if ST.on: e("s_waitcnt vmcnt(0)")
        ST.stamp(); ST.real(1)
        ST.dump(8)
        A.label("kd_done")
        e("s_endpgm")
        A.kernel_end(name, 256, 102 if ST.on else 60)
        return
    e(f"""
    v_lshlrev_b32 v20, 4, v0
    v_lshrrev_b32 v4, 5, v0
    v_and_b32 v5, 31, v0
    s_lshl_b32 s33, s29, 7
    s_lshl_b32 s34, s31, 5
    s_add_u32 s33, s33, s34
    v_add_u32 v5, s33, v5
    s_mul_i32 s34, s30, 18
    v_add_u32 v4, s34, v4
    v_lshlrev_b32 v21, 15, v4
    v_lshl_add_u32 v21, v5, 4, v21
    s_movk_i32 s35, 1152
    v_mul_lo_u32 v22, v5, s35
    v_lshl_add_u32 v22, v4, 4, v22
    s_lshl_b32 s45, s43, 1
    s_add_u32 s45, s45, s57
    s_lshl_b32 s45, s45, 2
    s_add_u32 s45, s45, {FLAG_OFF}
    v_mov_b32 v23, 1
    v_mov_b32 v24, 0
    s_add_u32 s46, s42, s31
    s_lshl_b32 s47, s46, 5
    s_add_u32 s47, s47, {FLAG_OFF}
    s_mul_i32 s46, s46, {4*9216}
    v_and_b32 v25, 7, v2
    v_lshlrev_b32 v25, 2, v25
    s_waitcnt vmcnt(0)
    v_cmp_eq_u32 vcc, 0, v2
    s_and_saveexec_b64 s[52:53], vcc
    buffer_store_dword v23, v24, s[16:19], s45 offen sc1
    s_mov_b64 exec, s[52:53]
    """)
    ST.stamp()
    e(f"""
    s_cmp_ge_u32 s28, 5
    s_cbranch_scc1 kd_fin
    v_cmp_gt_u32 vcc, 288, v0
    s_and_saveexec_b64 s[52:53], vcc
    s_mov_b32 s54, {9*32768}
    buffer_load_dwordx4 v[28:31], v21, s[20:23], 0 offen
    buffer_load_dwordx4 v[32:35], v21, s[20:23], s54 offen
    s_mov_b32 s55, 0
    """)
    A.label("kd_poll")
    e(f"""
    buffer_load_dword v26, v25, s[16:19], s47 offen sc1
    s_add_u32 s55, s55, 1
    s_waitcnt vmcnt(0)
    v_cmp_ne_u32 vcc, 1, v26
    s_cmp_ge_u32 s55, 0x40000
    s_cbranch_scc1 kd_go
    s_cbranch_vccnz kd_poll
    """)
    A.label("kd_go")
    for sr in range(4):
        e(f"buffer_load_dwordx4 {v(40+8*sr,4)}, v20, s[16:19], s46 offen sc1")
        e(f"s_add_u32 s54, s46, {288*16}")
        e(f"buffer_load_dwordx4 {v(44+8*sr,4)}, v20, s[16:19], s54 offen sc1")
        e(f"s_add_u32 s46, s46, 9216")
    e("s_mov_b32 s40, 0xffff0000")
    for it in range(2):
        for d in range(4):
            e(f"v_lshlrev_b32 v{104+8*it+2*d}, 16, v{28+4*it+d}")
            e(f"v_and_b32 v{105+8*it+2*d}, s40, v{28+4*it+d}")
    for sr in range(4):
        e(f"s_waitcnt vmcnt({6-2*sr})")
        for it in range(2):
            for d in range(4):
                r = 40 + 8 * sr + 4 * it + d
                e(f"v_lshlrev_b32 v120, 16, v{r}")
                e(f"v_and_b32 v121, s40, v{r}")
                e(f"v_pk_add_f32 {v(104+8*it+2*d,2)}, {v(104+8*it+2*d,2)}, v[120:121]")
    for it in range(2):
        for d in range(4):
            e(f"v_cvt_pk_bf16_f32 v{28+4*it+d}, v{104+8*it+2*d}, v{105+8*it+2*d}")
    e("buffer_store_dwordx4 v[28:31], v22, s[48:51], 0 offen")
    e("buffer_store_dwordx4 v[32:35], v22, s[48:51], 0 offen offset:144")
    e("s_mov_b64 exec, s[52:53]")
    A.label("kd_fin")
    if ST.on: e("s_waitcnt vmcnt(0)")
    ST.stamp(); ST.real(1)
    ST.dump(8)
    A.label("kd_done")
    e("s_endpgm")
    A.kernel_end(name, 256, 102 if ST.on else 60)


def k_e(A):
    name = "ke_kernel"
    A.launch(name, 256, 576, 0)
    A.kernel_begin(name)
    e = A.e
    e(f"""
    s_cmp_ge_u32 s2, 256
    s_cbranch_scc1 ke_done
    s_load_dwordx2 s[6:7], s[0:1], {KA_OUT}
    s_load_dwordx2 s[26:27], s[0:1], {KA_WS}
    s_lshr_b32 s29, s2, 4
    s_bfe_u32 s30, s2, 0x20002
    s_and_b32 s31, s2, 3
    v_lshlrev_b32 v20, 4, v0
    v_lshrrev_b32 v4, 5, v0
    v_and_b32 v5, 31, v0
    s_lshl_b32 s33, s29, 7
    s_lshl_b32 s34, s31, 5
    s_add_u32 s33, s33, s34
    v_add_u32 v5, s33, v5
    s_mul_i32 s34, s30, 18
    v_add_u32 v4, s34, v4
    v_lshlrev_b32 v21, 15, v4
    v_lshl_add_u32 v21, v5, 4, v21
    s_movk_i32 s35, 1152
    v_mul_lo_u32 v22, v5, s35
    v_lshl_add_u32 v22, v4, 4, v22
    s_mul_i32 s46, s2, {4*9216}
    s_waitcnt lgkmcnt(0)
    """)
    A.srd_off(16, 26, 27, WS_PART, FLAG_OFF)
    A.srd_off(20, 26, 27, WS_H, S * D * 2)
    A.srd(8, 6, 7, S * D * 2)
    e("buffer_load_dwordx4 v[28:31], v21, s[20:23], 0 offen")
    for sr in range(4):
        e(f"buffer_load_dwordx4 {v(32+4*sr,4)}, v20, s[16:19], s46 offen")
        e(f"s_add_u32 s46, s46, 9216")
    e("s_mov_b32 s40, 0xffff0000")
    e("s_waitcnt vmcnt(4)")
    for d in range(4):
        e(f"v_lshlrev_b32 v{8+2*d}, 16, v{28+d}")
        e(f"v_and_b32 v{9+2*d}, s40, v{28+d}")
    for sr in range(4):
        e(f"s_waitcnt vmcnt({3-sr})")
        for d in range(4):
            r = 32 + 4 * sr + d
            e(f"v_lshlrev_b32 v16, 16, v{r}")
            e(f"v_and_b32 v17, s40, v{r}")
            e(f"v_pk_add_f32 {v(8+2*d,2)}, {v(8+2*d,2)}, v[16:17]")
    for d in range(4):
        e(f"v_cvt_pk_bf16_f32 v{28+d}, v{8+2*d}, v{9+2*d}")
    e("buffer_store_dwordx4 v[28:31], v22, s[8:11], 0 offen")
    A.label("ke_done")
    e("s_endpgm")
    A.kernel_end(name, 48, 48)

HEADER = open("sequential_preLN__ssm_conv_h3__glu_gated_geglu__prompt.s.ref").read().split("; Override launch")[0]

def main():
    A = Asm()
    if FUSE_AB: k_ab(A)
    else:
        k_a(A)
        k_b(A)
    k_c(A)
    if not FUSE: k_d(A)
    if KD_SEP and not (FUSE and FUSE_E): k_e(A)
    A.label("code_end")
    A.e("s_endpgm")
    out = sys.argv[1] if len(sys.argv) > 1 else "k.s"
    open(out, "w").write(A.text(HEADER))

if __name__ == "__main__":
    main()
```

```python
import sys
from asmlib import Asm, v, a, s

S, D, F = 2048, 576, 4608
KA_X, KA_K, KA_V, KA_SK, KA_SSMK, KA_SSMD, KA_BX, KA_WG, KA_WU, KA_WD, KA_OUT, KA_DBG, KA_WS = [8 * i for i in range(13)]
import os
WS_R    = int(os.environ.get("WS_BASE_MB", "0")) << 20
WS_YQ   = WS_R + 576 * 8192
WS_XLN  = WS_YQ + S * D * 2
WS_H    = WS_XLN + S * D * 2
WS_HH   = WS_H + S * D * 2
WS_PART = WS_HH + S * F * 2
WS_XQ   = WS_XLN
WS_ST   = WS_PART + 4 * S * D * 4
WS_ST2  = WS_ST + S * 8
WS_CS   = WS_ST2 + S * 8
WS_WP   = (WS_CS + 12 * F * 4 + 4095) // 4096 * 4096
WS_WDP  = WS_WP + 2 * D * F * 2
WS_MB   = WS_WDP + D * F * 2
WS_END  = WS_MB + 144 * 128

import os
STAMP = os.environ.get("STAMP", "")
SCH = {"1": " sc1", "0": "", "nt": " nt"}[os.environ.get("SCH", "0")]
CODEPF = int(os.environ.get("CODEPF", "1"))
KC_ROT = int(os.environ.get("KC_ROT", "0"))
FUSE = int(os.environ.get("FUSE", "1"))
FUSE_E = int(os.environ.get("FUSE_E", "1"))
SENT = int(os.environ.get("SENT", "0"))
SENTW = int(os.environ.get("SENTW", "2"))
FUSE_AB = int(os.environ.get("FUSE_AB", "1"))
NP1 = int(os.environ.get("NP1", "3"))
SCP = {"1": " sc1", "0": "", "nt": " nt"}[os.environ.get("SCP", "1")]
KC_MAP = int(os.environ.get("KC_MAP", "1"))
KD_ROT = int(os.environ.get("KD_ROT", "0"))
KD_PRO = int(os.environ.get("KD_PRO", "2"))
KD_SEP = int(os.environ.get("KD_SEP", "1"))
KD_TOUCH = int(os.environ.get("KD_TOUCH", "0"))
KD_TDIST = int(os.environ.get("KD_TDIST", "5"))
WS_STAMP = WS_END + 4096
class Stamps:
    def __init__(self, A, on):
        self.A, self.on, self.n = A, on, 0
    def stamp(self):
        if not self.on or getattr(self, "mute", False): return
        assert self.n < 14
        op = "s_memrealtime" if os.environ.get("RT") else "s_memtime"
        self.A.e(f"{op} s[{72+2*self.n}:{73+2*self.n}]")
        self.n += 1
    def real(self, idx):
        if not self.on: return
        pass
    def dump(self, nwaves, wave_sgpr="s28"):
        if not self.on: return
        e = self.A.e
        e("s_waitcnt vmcnt(0) lgkmcnt(0)")
        self.A.srd_off(60, 26, 27, WS_STAMP, 1 << 20)
        e(f"s_mul_i32 s100, s2, {nwaves}")
        e(f"s_add_u32 s100, s100, {wave_sgpr}")
        e("s_lshl_b32 s100, s100, 7")
        e("v_mov_b32 v1, 0")
        for i in range(16):
            src_ = 72 + 2 * i if i < 14 else (72 if i == 14 else 98)
            e(f"v_mov_b32 v2, s{src_}")
            e(f"buffer_store_dword v2, v1, s[60:63], s100 offen offset:{4*i}")
        e("s_waitcnt vmcnt(0)")

class Cnt:
    def __init__(self, A, name, maxv):
        self.A, self.name, self.maxv = A, name, maxv
        self.q = []
        self.kind = {}
        self.total = 0
    def issue(self, tag, kind="L"):
        self.q.append(tag)
        self.kind[tag] = kind
        if kind == "L": self.total += 1
    def need(self, tag):
        if tag not in self.q:
            return
        idx = len(self.q) - 1 - self.q[::-1].index(tag)
        kd = self.kind.get(tag, "L")
        n = sum(1 for t in self.q[idx + 1:] if self.kind.get(t, "L") == kd)
        assert n <= self.maxv, (self.name, n)
        self.A.e(f"s_waitcnt {self.name}({n})")
        if n == 0: self.q = []
        else: self.q = [t for i, t in enumerate(self.q) if i > idx or self.kind.get(t, "L") != kd]
    def drain(self):
        if self.q:
            self.A.e(f"s_waitcnt {self.name}(0)")
            self.q = []

import struct, math
def fbits(x):
    return struct.unpack("<I", struct.pack("<f", x))[0]

def dpp_sum16(A, r):
    for sh in (8, 4, 2, 1):
        A.e("s_nop 1")
        A.e(f"v_add_f32_dpp v{r}, v{r}, v{r} row_ror:{sh} row_mask:0xf bank_mask:0xf")


def emit_w_packer(A, pfx, row0, nrows, fin, halves=False, ksplit=False):
    e = A.e
    nph = nrows // 96
    e(f"""
    s_load_dwordx4 s[4:7], s[0:1], {KA_WG}
    v_lshrrev_b32 v1, 6, v0
    v_and_b32 v2, 63, v0
    v_lshlrev_b32 v3, 4, v2
    v_readfirstlane_b32 s28, v1
    """)
    if halves:
        e(f"""
        v_and_b32 v0, 255, v0
        s_lshr_b32 s29, s28, 2
        s_and_b32 s28, s28, 3
        s_mul_i32 s48, s29, {nph*18432}
        """)
        if ksplit:
            e(f"s_mul_i32 s49, s29, {nph}")
        else:
            e("s_lshl_b32 s2, s2, 1")
            e("s_add_u32 s2, s2, s29")
            e("s_mov_b32 s49, 0")
    else:
        e("s_mov_b32 s48, 0")
        e("s_mov_b32 s49, 0")
    e(f"""
    s_cmp_ge_u32 s2, 48
    s_cselect_b32 s30, 1, 0
    s_mul_i32 s31, s30, 48
    s_sub_u32 s31, s2, s31
    s_movk_i32 s34, 5462
    s_movk_i32 s35, 9216
    """)
    for i in range(5):
        e(f"v_add_u32 v4, {256*i}, v0")
        e(f"v_mul_lo_u32 v5, v4, s34")
        e(f"v_lshrrev_b32 v5, 16, v5")
        e(f"v_mul_u32_u24 v6, 12, v5")
        e(f"v_sub_u32 v6, v4, v6")
        e(f"v_mul_lo_u32 v5, v5, s35")
        e(f"v_lshl_add_u32 v{10+i}, v6, 4, v5")
    e(f"""
    s_mul_i32 s32, s31, 192
    s_add_u32 s32, s32, {row0*9216}
    s_mul_i32 s33, s49, {96*9216}
    s_add_u32 s32, s32, s33
    s_lshl_b32 s33, s28, 10
    s_add_u32 s33, s33, s48
    s_waitcnt lgkmcnt(0)
    s_cmp_eq_u32 s30, 0
    s_cselect_b32 s8, s4, s6
    s_cselect_b32 s9, s5, s7
    s_mov_b32 s10, {D*F*2:#x}
    s_mov_b32 s11, 0x00020000
    """)
    A.srd_off(12, 26, 27, WS_CS, 12 * F * 4)
    A.srd_off(16, 26, 27, WS_WP, 2 * D * F * 2)
    for ph in range(nph):
        lab = A.newlabel(pfx + "_sk")
        e("s_cmp_ge_u32 s28, 2")
        e(f"s_cbranch_scc1 {lab}")
        e(f"s_add_u32 m0, s33, {18432*ph + 4096*4}")
        e("s_nop 0")
        e(f"buffer_load_dwordx4 v14, s[8:11], s32 offen lds")
        A.label(lab)
        for i in range(4):
            e(f"s_add_u32 m0, s33, {18432*ph + 4096*i}")
            e("s_nop 0")
            e(f"buffer_load_dwordx4 v{10+i}, s[8:11], s32 offen lds")
        e(f"s_add_u32 s32, s32, {96*9216}")
    e(f"""
    v_lshrrev_b32 v4, 4, v2
    v_lshlrev_b32 v4, 3, v4
    v_bfe_u32 v5, v2, 2, 2
    v_add_u32 v4, v4, v5
    v_mul_u32_u24 v4, 192, v4
    v_and_b32 v5, 3, v2
    v_lshl_add_u32 v4, v5, 3, v4
    v_add_u32 v4, s48, v4
    v_mov_b32 v7, 0x3f803f80
    v_lshlrev_b32 v9, 2, v2
    v_cmp_gt_u32 s[46:47], 16, v2
    s_mov_b32 s36, s28
    s_mov_b32 s45, 0
    """)
    for half in range((nph + 1) // 2):
        later = 4 * max(nph - 2, 0)
        e(f"s_waitcnt vmcnt({later})" if half == 0 else "s_waitcnt vmcnt(0)")
        e("s_barrier")
        lab = f"{pfx}_su{half}"
        A.label(lab)
        e(f"""
        s_mul_i32 s38, s36, 43
        s_lshr_b32 s38, s38, 8
        s_mul_i32 s37, s38, 6
        s_sub_u32 s37, s36, s37
        s_lshl_b32 s40, s37, 5
        s_mul_i32 s44, s38, 18432
        s_add_u32 s40, s40, s44
        v_add_u32 v5, s40, v4
        s_mul_i32 s39, s31, 6
        s_add_u32 s39, s39, s37
        """)
        for s_ in range(3):
            e(f"ds_read_b64_tr_b16 {v(16+4*s_,2)}, v5 offset:{32*192*s_}")
            e(f"ds_read_b64_tr_b16 {v(18+4*s_,2)}, v5 offset:{32*192*s_+4*192}")
        e(f"""
        s_mul_i32 s40, s39, 7282
        s_lshr_b32 s40, s40, 16
        s_mul_i32 s41, s40, 9
        s_sub_u32 s41, s39, s41
        s_cmp_lt_u32 s41, {NP1}
        s_cselect_b32 s42, 2, 36
        s_cselect_b32 s43, {2*NP1}, 2
        s_lshl_b32 s43, s43, 10
        s_mul_i32 s42, s42, s41
        s_mul_i32 s40, s40, 324
        s_add_u32 s42, s42, s40
        s_add_u32 s42, s42, s30
        s_lshl_b32 s42, s42, 10
        s_add_u32 s44, s38, {row0//96}
        s_add_u32 s44, s44, s49
        s_mul_i32 s40, s44, 3
        s_mul_i32 s40, s40, s43
        s_add_u32 s42, s42, s40
        s_lshl_b32 s44, s44, 1
        s_add_u32 s44, s44, s30
        s_mul_i32 s44, s44, {F*4}
        s_lshl_b32 s40, s39, 6
        s_add_u32 s44, s44, s40
        v_mov_b32 v6, 0
        """)
        for s_ in range(3):
            e(f"s_waitcnt lgkmcnt({2*(2-s_)})")
            if os.environ.get("PACKST", "1") == "1": e(f"buffer_store_dwordx4 {v(16+4*s_,4)}, v3, s[16:19], s42 offen{SCP}")
            e("s_add_u32 s42, s42, s43")
            for d in range(4):
                e(f"v_dot2_f32_bf16 v6, v{16+4*s_+d}, v7, v6")
        e("s_nop 2")
        for op in ("v_permlane32_swap_b32", "v_permlane16_swap_b32"):
            e("v_mov_b32 v8, v6")
            e("s_nop 1")
            e(f"{op} v6, v8")
            e("v_add_f32 v6, v6, v8")
        e(f"""
        s_mov_b64 exec, s[46:47]
        buffer_store_dword v6, v9, s[12:15], s44 offen
        s_mov_b64 exec, -1
        s_add_u32 s36, s36, 4
        s_cmp_lt_u32 s36, {min(12*(half+1), 6*nph)}
        s_cbranch_scc1 {lab}
        """)
    fin()

def k_a(A):
    name = "ka_kernel"
    A.launch(name, 288 + 128 + 96, 256, 36864)
    A.kernel_begin(name)
    e = A.e
    ST = Stamps(A, STAMP == "ka")
    ST.stamp(); ST.real(0)
    if ST.on:
        e("v_lshrrev_b32 v1, 6, v0")
        e("s_nop 0")
        e("v_readfirstlane_b32 s59, v1")
    def fin():
        if not ST.on: return
        n0 = ST.n
        ST.n = 12
        ST.stamp()
        e("s_waitcnt vmcnt(0)")
        ST.stamp(); ST.real(1)
        e("s_mov_b64 exec, -1")
        ST.dump(4, "s59")
        ST.n = n0
    e(f"""
    s_cmp_ge_u32 s2, {288+128+96}
    s_cbranch_scc1 ka_done
    s_cmp_ge_u32 s2, {288+128}
    s_cbranch_scc1 ka_pack
    s_load_dwordx4 s[4:7], s[0:1], {KA_K}
    s_load_dwordx2 s[24:25], s[0:1], {KA_SK}
    s_load_dwordx2 s[26:27], s[0:1], {KA_WS}
    s_load_dwordx2 s[38:39], s[0:1], {KA_X}
    s_cmp_ge_u32 s2, 288
    s_cbranch_scc1 ka_stats
    s_and_b32 s28, s2, 31
    s_lshr_b32 s29, s2, 5
    s_lshl_b32 s30, s28, 6
    v_lshrrev_b32 v1, 3, v0
    v_and_b32 v2, 7, v0
    v_lshlrev_b32 v3, 1, v1
    v_add_u32 v3, s30, v3
    s_movk_i32 s31, 1152
    v_mul_lo_u32 v4, v3, s31
    s_lshl_b32 s32, s29, 7
    v_lshlrev_b32 v5, 4, v2
    v_add3_u32 v4, v4, v5, s32
    """)
    for r in range(6):
        e(f"v_add_u32 v{10+r}, {(r-4)*1152 & 0xffffffff:#x}, v4")
    e(f"""
    s_lshl_b32 s33, s29, 9
    v_lshlrev_b32 v6, 6, v2
    v_add_u32 v6, s33, v6
    s_waitcnt lgkmcnt(0)
    """)
    A.srd(8, 4, 5, S * D * 2)
    A.srd(12, 6, 7, S * D * 2)
    A.srd(16, 24, 25, D * 8)
    A.srd_off(20, 26, 27, WS_R, 576 * 8192)
    A.srd_off(40, 26, 27, WS_PART + 4 * S * D * 2, 8192 + 1024 + 32768)
    e("""
    s_lshl_b32 s36, s2, 10
    v_lshlrev_b32 v8, 2, v0
    v_mov_b32 v9, 0
    buffer_store_dword v9, v8, s[40:43], s36 offen
    """)
    for r in range(6):
        e(f"buffer_load_dwordx4 {v(16+4*r,4)}, v{10+r}, s[8:11], 0 offen")
    for r in range(3):
        e(f"buffer_load_dwordx4 {v(40+4*r,4)}, v{13+r}, s[12:15], 0 offen")
    for r in range(4):
        e(f"buffer_load_dwordx4 {v(52+4*r,4)}, v6, s[16:19], 0 offen offset:{16*r}")
    e(f"""
    v_sub_u32 v7, 31, v1
    v_lshlrev_b32 v8, 2, v2
    v_xor_b32 v7, v7, v8
    v_lshlrev_b32 v7, 2, v7
    v_lshl_add_u32 v7, v2, 10, v7
    s_mov_b32 s34, 0xffff0000
    """)
    ST.stamp()
    e("s_waitcnt vmcnt(0)")
    ST.stamp()
    e(f"""
    """)
    for ch in range(8):
        d, hi = ch >> 1, ch & 1
        def unp(dst, src):
            if hi: e(f"v_and_b32 v{dst}, s34, v{src}")
            else:  e(f"v_lshlrev_b32 v{dst}, 16, v{src}")
        for r in range(6): unp(70 + r, 16 + 4 * r + d)
        for r in range(3): unp(76 + r, 40 + 4 * r + d)
        sk = 52 + 2 * ch
        e(f"v_lshlrev_b32 v80, 16, v{sk}")
        e(f"v_and_b32 v81, s34, v{sk}")
        e(f"v_lshlrev_b32 v82, 16, v{sk+1}")
        e(f"v_and_b32 v83, s34, v{sk+1}")
        for r in range(3):
            e(f"v_mul_f32 v{84+r}, v{70+r}, v83")
        for r in range(3):
            e(f"v_fmac_f32 v{84+r}, v{71+r}, v82")
        for r in range(3):
            e(f"v_fmac_f32 v{84+r}, v{72+r}, v81")
        for r in range(3):
            e(f"v_fmac_f32 v{84+r}, v{73+r}, v80")
        for r in range(3):
            e(f"v_mul_f32 v{84+r}, v{84+r}, v{76+r}")
        e(f"v_cvt_pk_bf16_f32 v{88+2*(ch&1)}, v85, v84")
        e(f"v_cvt_pk_bf16_f32 v{89+2*(ch&1)}, v86, v85")
        e(f"ds_write_b32 v7, v{88+2*(ch&1)} offset:{ch*128}")
        e(f"ds_write_b32 v7, v{89+2*(ch&1)} offset:{8192+ch*128}")
    ST.stamp()
    e(f"""
    v_lshrrev_b32 v8, 6, v0
    v_xor_b32 v9, v2, v8
    v_lshlrev_b32 v9, 4, v9
    v_lshl_add_u32 v9, v1, 7, v9
    v_xor_b32 v10, 64, v9
    s_lshl_b32 s35, s29, 19
    s_sub_u32 s36, 1984, s30
    s_lshl_b32 s36, s36, 1
    s_add_u32 s35, s35, s36
    v_lshlrev_b32 v11, 13, v1
    v_add3_u32 v11, v11, v5, s35
    v_add_u32 v12, 0x40000, v11
    s_waitcnt lgkmcnt(0)
    s_barrier
    ds_read_b128 v[16:19], v9
    ds_read_b128 v[20:23], v10 offset:4096
    ds_read_b128 v[24:27], v9 offset:8192
    ds_read_b128 v[28:31], v10 offset:12288
    s_movk_i32 s37, 0x1000
    s_waitcnt lgkmcnt(3)
    buffer_store_dwordx4 v[16:19], v11, s[20:23], 0 offen{SCP}
    s_waitcnt lgkmcnt(2)
    buffer_store_dwordx4 v[20:23], v12, s[20:23], 0 offen{SCP}
    s_waitcnt lgkmcnt(1)
    buffer_store_dwordx4 v[24:27], v11, s[20:23], s37 offen{SCP}
    s_waitcnt lgkmcnt(0)
    buffer_store_dwordx4 v[28:31], v12, s[20:23], s37 offen{SCP}
    """)
    fin()
    e("s_endpgm")
    A.label("ka_stats")
    if CODEPF:
        e("s_getpc_b64 s[12:13]")
        A.label("ka_pc")
        e("""
        s_sub_u32 s12, s12, ka_pc-ka_kernel
        s_subb_u32 s13, s13, 0
        s_mov_b32 s14, code_end-ka_kernel
        s_mov_b32 s15, 0x00020000
        s_sub_u32 s28, s2, 288
        s_lshl_b32 s28, s28, 10
        v_lshlrev_b32 v6, 2, v0
        buffer_load_dword v7, v6, s[12:15], s28 offen
        """)
    e(f"""
    s_sub_u32 s28, s2, 288
    s_lshl_b32 s28, s28, 4
    v_lshrrev_b32 v1, 4, v0
    v_add_u32 v1, s28, v1
    v_and_b32 v2, 15, v0
    s_movk_i32 s29, 1152
    v_mul_lo_u32 v3, v1, s29
    v_lshl_add_u32 v3, v2, 3, v3
    v_lshlrev_b32 v4, 3, v1
    s_waitcnt lgkmcnt(0)
    """)
    A.srd(40, 38, 39, S * D * 2)
    A.srd_off(44, 26, 27, WS_ST, 2 * S * 8)
    XR, XF = 16, 34
    for i in range(9):
        e(f"buffer_load_dwordx2 {v(XR+2*i,2)}, v3, s[40:43], 0 offen offset:{128*i}")
    A.srd_off(8, 26, 27, WS_XQ, S * D * 2)
    e("v_lshl_add_u32 v5, v2, 14, v4")
    e("s_mov_b32 s30, 0xffff0000")
    e(f"s_mov_b32 s31, {fbits(1.0/576):#x}")
    e(f"s_mov_b32 s32, {fbits(1e-5):#x}")
    e("s_mov_b32 s33, 0")
    e("s_waitcnt vmcnt(0)")
    for i in range(9):
        e(f"buffer_store_dwordx2 {v(XR+2*i,2)}, v5, s[8:11], s33 offen")
        e(f"s_add_u32 s33, s33, {16*16384}")
    for d in range(18):
        e(f"v_lshlrev_b32 v{XF+2*d}, 16, v{XR+d}")
        e(f"v_and_b32 v{XF+2*d+1}, s30, v{XR+d}")
    e(f"v_pk_add_f32 v[8:9], {v(XF,2)}, {v(XF+2,2)}")
    e(f"v_pk_add_f32 v[10:11], {v(XF+4,2)}, {v(XF+6,2)}")
    for i in range(2, 9):
        e(f"v_pk_add_f32 v[8:9], v[8:9], {v(XF+4*i,2)}")
        e(f"v_pk_add_f32 v[10:11], v[10:11], {v(XF+4*i+2,2)}")
    e("v_pk_add_f32 v[8:9], v[8:9], v[10:11]")
    e("v_add_f32 v8, v8, v9")
    dpp_sum16(A, 8)
    e("v_mul_f32 v8, s31, v8")
    for i in range(18):
        e(f"v_pk_add_f32 {v(XF+2*i,2)}, {v(XF+2*i,2)}, v[8:9] op_sel_hi:[1,0] neg_lo:[0,1] neg_hi:[0,1]")
    e(f"v_pk_mul_f32 v[10:11], {v(XF,2)}, {v(XF,2)}")
    e(f"v_pk_mul_f32 v[12:13], {v(XF+2,2)}, {v(XF+2,2)}")
    for i in range(1, 9):
        e(f"v_pk_fma_f32 v[10:11], {v(XF+4*i,2)}, {v(XF+4*i,2)}, v[10:11]")
        e(f"v_pk_fma_f32 v[12:13], {v(XF+4*i+2,2)}, {v(XF+4*i+2,2)}, v[12:13]")
    e("v_pk_add_f32 v[10:11], v[10:11], v[12:13]")
    e("v_add_f32 v9, v10, v11")
    dpp_sum16(A, 9)
    e("v_mov_b32 v10, s32")
    e("v_fmac_f32 v10, s31, v9")
    e("v_rsq_f32 v9, v10")
    e("v_cmp_eq_u32 vcc, 0, v2")
    e("s_and_saveexec_b64 s[34:35], vcc")
    e("buffer_store_dwordx2 v[8:9], v4, s[44:47], 0 offen")
    e("v_mov_b32 v10, -1")
    e("v_mov_b32 v11, -1")
    e(f"s_movk_i32 s33, {S*8}")
    e("buffer_store_dwordx2 v[10:11], v4, s[44:47], s33 offen")
    fin()
    e("s_endpgm")
    A.label("ka_pack")
    e(f"s_load_dwordx2 s[26:27], s[0:1], {KA_WS}")
    if ST.on: e("s_mov_b32 s58, s2")
    e(f"s_sub_u32 s2, s2, {288+128}")
    def fin2():
        if ST.on: e("s_mov_b32 s2, s58")
        fin()
    emit_w_packer(A, "ka", 0, 192, fin2)
    A.label("ka_done")
    e("s_endpgm")
    A.kernel_end(name, 100, 102 if ST.on else 52)

KB_CH = 25920
KB_KC = 4160
KB_RO = 16640
KB_RC = 4640
def k_b(A):
    name = "kb_kernel"
    A.launch(name, 240, 256, 4 * KB_CH)
    A.kernel_begin(name)
    e = A.e
    ST = Stamps(A, STAMP == "kb")
    ST.stamp(); ST.real(0)
    if ST.on:
        e("v_lshrrev_b32 v1, 6, v0")
        e("s_nop 0")
        e("v_readfirstlane_b32 s59, v1")
    def fin():
        if not ST.on: return
        n0 = ST.n
        ST.n = 12
        ST.stamp()
        e("s_waitcnt vmcnt(0)")
        ST.stamp(); ST.real(1)
        e("s_mov_b64 exec, -1")
        ST.dump(4, "s59")
        ST.n = n0
    e(f"""
    s_cmp_ge_u32 s2, 240
    s_cbranch_scc1 kb_done
    s_load_dwordx2 s[26:27], s[0:1], {KA_WS}
    s_cmp_ge_u32 s2, 144
    s_cbranch_scc1 kb_side
    s_load_dwordx4 s[4:7], s[0:1], {KA_SSMK}
    v_lshrrev_b32 v1, 6, v0
    v_and_b32 v2, 63, v0
    s_nop 0
    v_readfirstlane_b32 s28, v1
    s_nop 3
    s_lshl_b32 s29, s2, 2
    s_add_u32 s29, s29, s28
    s_mul_i32 s30, s28, {KB_CH}
    s_lshl_b32 s31, s29, 12
    s_lshl_b32 s32, s29, 13
    s_add_u32 s32, s32, {WS_R}
    s_lshl_b32 s33, s2, 14
    s_add_u32 s33, s33, {WS_XQ}
    s_lshr_b32 s34, s29, 1
    s_lshl_b32 s34, s34, 2
    v_lshlrev_b32 v3, 4, v2
    s_waitcnt lgkmcnt(0)
    """)
    A.srd_off(8, 4, 5, "s31", 4096)
    A.srd_off(12, 26, 27, "s32", 8192)
    A.srd_off(16, 26, 27, "s33", 16384)
    A.srd_off(20, 26, 27, WS_ST, S * 8)
    e("s_lshr_b32 s33, s2, 1")
    e("s_lshl_b32 s33, s33, 15")
    e(f"s_add_u32 s33, s33, {WS_H}")
    A.srd_off(44, 26, 27, "s33", 32768)
    e(f"""
    s_add_u32 s6, s6, s34
    s_addc_u32 s7, s7, 0
    s_load_dword s35, s[6:7], 0
    """)
    vm = Cnt(A, "vmcnt", 63)
    e(f"""
    v_lshrrev_b32 v4, 4, v2
    v_and_b32 v5, 15, v2
    v_add_u32 v6, v4, v5
    v_add_u32 v6, -15, v6
    v_lshlrev_b32 v6, 2, v6
    buffer_load_dword v7, v6, s[8:11], 0 offen
    """)
    vm.issue("front")
    for p in range(2):
        e(f"s_add_u32 s36, s30, {KB_RO + p * KB_RC}")
        e(f"s_mov_b32 m0, s36")
        e(f"s_movk_i32 s37, {p * 4096}")
        for b in range(4):
            e(f"buffer_load_dwordx4 v3, s[12:15], s37 offen offset:{b*1024} lds")
            vm.issue("R")
    late = []
    def kdma(b, c):
        e(f"s_add_u32 m0, s30, {c * KB_KC + 64}")
        e(f"s_movk_i32 s37, {4 * c + 4}")
        e(f"buffer_load_dwordx4 v3, s[8:11], s37 offen offset:{b*1024} lds")
        vm.issue(f"K{b}")
    for b in range(4):
        for c in range(4):
            if b <= 1: kdma(b, c)
            else: late.append((f"K{b}", lambda b=b, c=c: kdma(b, c)))
    e("v_lshlrev_b32 v18, 4, v0")
    def xsld(r):
        e(f"s_movk_i32 s37, {4096*r}")
        e(f"buffer_load_dwordx4 {v(80+8*r,4)}, v18, s[16:19], s37 offen")
        e(f"buffer_load_dwordx4 {v(84+8*r,4)}, v18, s[20:23], s37 offen")
        vm.issue("xs"); vm.issue("xs")
    for r in range(4): late.append(("xs", lambda r=r: xsld(r)))
    e(f"""
    s_movk_i32 s38, {KB_KC}
    v_mul_lo_u32 v8, v4, s38
    v_lshl_add_u32 v8, v5, 2, v8
    v_add_u32 v8, s30, v8
    v_lshrrev_b32 v9, 5, v2
    s_movk_i32 s38, {KB_RC}
    v_mul_lo_u32 v9, v9, s38
    v_and_b32 v10, 31, v2
    v_lshl_add_u32 v9, v10, 4, v9
    s_add_u32 s39, s30, {KB_RO + 4096}
    v_add_u32 v9, s39, v9
    v_mov_b32 v12, 0
    v_mov_b32 v13, 0
    v_mov_b32 v14, 0
    v_mov_b32 v15, 0
    ds_write_b128 v9, v[12:15]
    """)
    e(f"""
    v_and_b32 v10, 3, v5
    s_movk_i32 s38, {KB_KC}
    v_mul_lo_u32 v10, v10, s38
    v_lshrrev_b32 v11, 2, v5
    v_add_u32 v11, v11, v4
    v_lshl_add_u32 v10, v11, 4, v10
    v_add_u32 v10, s30, v10
    """)
    e(f"""
    v_and_b32 v11, 1, v5
    s_movk_i32 s38, {KB_RC}
    v_mul_lo_u32 v11, v11, s38
    v_lshrrev_b32 v16, 1, v5
    v_lshlrev_b32 v16, 2, v16
    v_sub_u32 v16, v4, v16
    v_add_u32 v16, 28, v16
    v_lshl_add_u32 v11, v16, 4, v11
    s_add_u32 s39, s30, {KB_RO}
    v_add_u32 v11, s39, v11
    """)
    e(f"""
    s_waitcnt lgkmcnt(0)
    s_and_b32 s40, s29, 1
    s_lshl_b32 s40, s40, 4
    s_lshr_b32 s35, s35, s40
    s_and_b32 s35, s35, 0xffff
    v_lshl_add_u32 v16, v4, 2, v5
    v_mov_b32 v17, s35
    """)
    for d in range(4):
        e(f"v_cmp_eq_u32 vcc, {15-d}, v16")
        e("s_nop 1")
        e(f"v_cndmask_b32 v{20+d}, 0, v17, vcc")
    ST.stamp()
    vm.need("front")
    e("ds_write_b32 v8, v7")
    vm.need("K0")
    e("s_waitcnt lgkmcnt(0)")
    ST.stamp()
    ACC = 32
    BR = 64
    NB = 4
    AR = 112
    lg = Cnt(A, "lgkmcnt", 15)
    groups = []
    for ph in range(2):
        for r in range(8):
            groups.append([r + 8 * u for u in range(4 * ph, 4 * ph + 4)])
    mf = []
    for g, il in enumerate(groups):
        for i in il:
            for j in range(7, (i >> 3) - 1, -1):
                mf.append((g, i, j))
    def areg(g, q):
        return AR + 32 * (g & 1) + 4 * ((q + 7) >> 3)
    reads = []
    seen = set()
    bidx = {}
    for x, (g, i, j) in enumerate(mf):
        if ("B", i) not in seen:
            seen.add(("B", i)); bidx[i] = len(bidx); reads.append((("B", i), x))
        t = ("A", g, 8 * j - i)
        if t not in seen:
            seen.add(t); reads.append((t, x))
    last_use = {}
    for x, (g, i, j) in enumerate(mf):
        last_use[("B", i)] = x; last_use[("G", g)] = x
    border = sorted(bidx, key=lambda i: bidx[i])
    rp = 0
    LOOK = 14
    def can_issue(tag, x):
        if tag[0] == "B":
            k = bidx[tag[1]]
            return k < NB or last_use[("B", border[k - NB])] < x
        g = tag[1]
        return g < 2 or last_use[("G", g - 2)] < x
    def issue_read(tag):
        if tag[0] == "B":
            idx = tag[1]
            blk = min(3, max(0, (4 * idx + 6 - 4) // 64))
            while any(t == f"K{blk}" for t, _ in late): late.pop(0)[1]()
            vm.need(f"K{blk}")
            e(f"ds_read_b128 {v(BR + 4 * (bidx[idx] % NB), 4)}, v10 offset:{64 * idx}")
        else:
            e(f"ds_read_b128 {v(areg(tag[1], tag[2]), 4)}, v11 offset:{64 * (56 - tag[2])}")
        lg.issue(tag)
    started = set()
    while rp < 9:
        issue_read(reads[rp][0]); rp += 1
    for x, (g, i, j) in enumerate(mf):
        if j == 7 and i in (2, 4, 32, 36): ST.stamp()
        while rp < len(reads) and reads[rp][1] <= x:
            issue_read(reads[rp][0]); rp += 1
        lg.need(("B", i)); lg.need(("A", g, 8 * j - i))
        c = v(ACC + 4 * j, 4)
        aq = v(areg(g, 8 * j - i), 4)
        if j not in started:
            started.add(j)
            e(f"v_mfma_f32_16x16x32_bf16 {c}, {aq}, v[20:23], 0")
        e(f"v_mfma_f32_16x16x32_bf16 {c}, {aq}, {v(BR+4*(bidx[i]%NB),4)}, {c}")
        if rp < len(reads) and reads[rp][1] <= x + LOOK and len(lg.q) < 14 and can_issue(reads[rp][0], x + 1):
            issue_read(reads[rp][0]); rp += 1
        elif late and x % 4 == 3: late.pop(0)[1]()
    assert rp == len(reads) and not late
    ST.stamp()
    e(f"""
    v_lshlrev_b32 v16, 7, v4
    v_lshl_add_u32 v16, v5, 2, v16
    v_add_u32 v16, s30, v16
    s_nop 7
    """)
    for j in range(8):
        c = ACC + 4 * j
        e(f"v_cvt_pk_bf16_f32 v{c}, v{c}, v{c+1}")
        e(f"v_cvt_pk_bf16_f32 v{c+1}, v{c+2}, v{c+3}")
        e(f"ds_write_b32 v16, v{c} offset:{512*j}")
        e(f"ds_write_b32 v16, v{c+1} offset:{512*j+64}")
    e(f"""
    v_lshlrev_b32 v17, 2, v0
    v_lshlrev_b32 v18, 5, v0
    s_and_b32 s40, s2, 1
    s_lshl_b32 s40, s40, 3
    v_add_u32 v18, s40, v18
    s_mov_b32 s41, 0xffff0000
    v_add_u32 v19, {2*KB_CH}, v17
    s_waitcnt lgkmcnt(0)
    s_barrier
    """)
    ST.stamp()
    for r in range(4):
        for ch in range(4):
            base = "v17" if ch < 2 else "v19"
            e(f"ds_read_b32 v{64+4*r+ch}, {base} offset:{(ch&1)*KB_CH + 1024*r}")
    e("s_waitcnt vmcnt(0)")
    for r in range(4):
        e(f"s_waitcnt lgkmcnt({12-4*r})")
        Y = 64 + 4 * r; X = 80 + 8 * r; M = 84 + 8 * r
        for tq in range(2):
            for d in range(2):
                e(f"v_lshlrev_b32 v{32+2*d}, 16, v{X+2*tq+d}")
                e(f"v_and_b32 v{33+2*d}, s41, v{X+2*tq+d}")
            for ch in range(4):
                if tq == 0: e(f"v_lshlrev_b32 v{36+ch}, 16, v{Y+ch}")
                else: e(f"v_and_b32 v{36+ch}, s41, v{Y+ch}")
            mp = v(M + 2 * tq, 2)
            for p in range(2):
                e(f"v_pk_mul_f32 {v(36+2*p,2)}, {v(36+2*p,2)}, {mp} op_sel:[0,1] op_sel_hi:[1,1]")
                e(f"v_pk_add_f32 {v(40+2*p,2)}, {v(32+2*p,2)}, {mp} op_sel_hi:[1,0] neg_lo:[0,1] neg_hi:[0,1]")
            for p in range(2):
                e(f"v_pk_fma_f32 {v(32+2*p,2)}, {v(40+2*p,2)}, {v(36+2*p,2)}, {v(32+2*p,2)}")
            O = 44 + 4 * (r & 1) + 2 * tq
            e(f"v_cvt_pk_bf16_f32 v{O}, v32, v33")
            e(f"v_cvt_pk_bf16_f32 v{O+1}, v34, v35")
            e(f"s_movk_i32 s37, {8192*r}")
            e(f"buffer_store_dwordx2 {v(O,2)}, v18, s[44:47], s37 offen offset:{16*tq}{SCH}")
    fin()
    e("s_endpgm")
    A.label("kb_side")
    if ST.on: e("s_mov_b32 s58, s2")
    e("s_sub_u32 s2, s2, 144")
    def fin2():
        if ST.on: e("s_mov_b32 s2, s58")
        fin()
    emit_w_packer(A, "kb", 192, 384, fin2)
    A.label("kb_done")
    e("s_endpgm")
    A.kernel_end(name, 176, 102 if ST.on else 52)

def k_ab(A):
    name = "ka_kernel"
    TS = 4 * KB_CH
    A.launch(name, 256, 512, 147456)
    A.kernel_begin(name)
    e = A.e
    ST = Stamps(A, STAMP == "ka")
    ST.stamp(); ST.real(0)
    if ST.on:
        e("v_lshrrev_b32 v1, 6, v0")
        e("s_nop 0")
        e("v_readfirstlane_b32 s101, v1")
        e("s_mov_b32 s3, s2")
    def fin():
        if not ST.on: return
        n0 = ST.n
        ST.n = 12
        ST.stamp()
        e("s_waitcnt vmcnt(0)")
        ST.stamp(); ST.real(1)
        e("s_mov_b64 exec, -1")
        e("s_mov_b32 s2, s3")
        ST.dump(8, "s101")
        ST.n = n0
    e(f"""
    s_cmp_ge_u32 s2, 256
    s_cbranch_scc1 ka_done
    s_load_dwordx2 s[26:27], s[0:1], {KA_WS}
    s_cmp_ge_u32 s2, 208
    s_cbranch_scc1 ka_pack0
    s_load_dwordx2 s[50:51], s[0:1], {KA_DBG}
    s_load_dwordx2 s[38:39], s[0:1], {KA_X}
    s_cmp_ge_u32 s2, 144
    s_cbranch_scc1 ka_stats
    s_load_dwordx4 s[4:7], s[0:1], {KA_K}
    s_load_dwordx2 s[24:25], s[0:1], {KA_SK}
    s_load_dwordx4 s[64:67], s[0:1], {KA_SSMK}
    v_lshrrev_b32 v1, 6, v0
    v_and_b32 v100, 63, v0
    v_and_b32 v101, 255, v0
    v_readfirstlane_b32 s60, v1
    s_lshr_b32 s29, s2, 4
    s_and_b32 s28, s2, 15
    s_lshr_b32 s61, s60, 2
    s_and_b32 s62, s60, 3
    s_lshl_b32 s28, s28, 1
    s_add_u32 s28, s28, s61
    s_lshl_b32 s30, s28, 6
    v_lshrrev_b32 v1, 3, v101
    v_and_b32 v2, 7, v101
    v_lshlrev_b32 v3, 1, v1
    v_add_u32 v3, s30, v3
    s_movk_i32 s31, 1152
    v_mul_lo_u32 v4, v3, s31
    s_lshl_b32 s32, s29, 7
    v_lshlrev_b32 v5, 4, v2
    v_add3_u32 v4, v4, v5, s32
    """)
    KS, VS, SKS = 0, 17408, 34816
    e(f"""
    s_lshl_b32 s63, s2, 2
    s_add_u32 s63, s63, s62
    s_mul_i32 s68, s62, {KB_CH}
    s_lshl_b32 s31, s63, 12
    v_lshlrev_b32 v102, 4, v100
    v_lshrrev_b32 v6, 3, v100
    v_mul_u32_u24 v6, 1152, v6
    v_and_b32 v7, 7, v100
    v_lshl_add_u32 v6, v7, 4, v6
    s_and_b32 s33, s2, 15
    s_mul_i32 s33, s33, {128*1152}
    s_add_u32 s33, s33, s32
    s_mul_i32 s34, s60, {16*1152}
    s_add_u32 s34, s34, s33
    s_add_u32 s35, s34, {8*1152}
    s_lshl_b32 s36, s60, 11
    s_sub_u32 s37, s33, {8*1152}
    s_cmp_lt_u32 s33, {8*1152}
    s_cselect_b32 s37, 0x7ffffff0, s37
    s_waitcnt lgkmcnt(0)
    """)
    A.srd(8, 4, 5, S * D * 2)
    A.srd(12, 6, 7, S * D * 2)
    A.srd(16, 24, 25, D * 8)
    A.srd(40, 38, 39, S * D * 2)
    for base, srd in ((KS, 8), (VS, 12)):
        for i in range(2):
            e(f"s_add_u32 m0, s36, {base + 1024 + 1024*i}")
            e("s_nop 0")
            e(f"buffer_load_dwordx4 v6, s[{srd}:{srd+3}], s{34+i} offen lds")
    e(f"""
    s_cmp_lg_u32 s60, 0
    s_cbranch_scc1 ka_h1
    s_mov_b32 m0, {KS}
    s_nop 0
    buffer_load_dwordx4 v6, s[8:11], s37 offen lds
    """)
    A.label("ka_h1")
    e(f"""
    s_cmp_lg_u32 s60, 1
    s_cbranch_scc1 ka_h2
    s_mov_b32 m0, {VS}
    s_nop 0
    buffer_load_dwordx4 v6, s[12:15], s37 offen lds
    """)
    A.label("ka_h2")
    e(f"""
    s_cmp_lg_u32 s60, 2
    s_cbranch_scc1 ka_h3
    s_mov_b32 m0, {SKS}
    s_lshl_b32 s33, s29, 9
    buffer_load_dwordx4 v102, s[16:19], s33 offen lds
    """)
    A.label("ka_h3")
    e("buffer_load_dwordx4 v[92:95], v4, s[40:43], 0 offen")
    e("buffer_load_dwordx4 v[96:99], v4, s[40:43], 0 offen offset:1152")
    e(f"""
    v_lshrrev_b32 v10, 3, v0
    v_lshlrev_b32 v10, 8, v10
    v_add_u32 v10, v10, v5
    v_lshlrev_b32 v11, 6, v2
    """)
    A.srd_off(8, 64, 65, "s31", 4096)
    e(f"""
    s_lshl_b32 s24, s61, 11
    s_add_u32 s25, s68, s24
    v_lshrrev_b32 v103, 4, v100
    v_and_b32 v104, 15, v100
    v_add_u32 v6, v103, v104
    v_add_u32 v6, -15, v6
    v_lshlrev_b32 v6, 2, v6
    buffer_load_dword v105, v6, s[8:11], 0 offen
    """)
    e("v_lshlrev_b32 v6, 6, v100")
    e("buffer_load_dword v107, v6, s[8:11], 0 offen")
    A.srd_off(56, 26, 27, WS_MB, 144 * 128)
    e("""
    s_lshl_b32 s71, s2, 7
    v_lshlrev_b32 v106, 2, v100
    v_mov_b32 v68, 0
    v_cmp_gt_u32 vcc, 16, v0
    s_and_saveexec_b64 s[34:35], vcc
    s_cbranch_execz ka_nc
    buffer_store_dword v68, v106, s[56:59], s71 offen sc1
    """)
    A.label("ka_nc")
    e("s_mov_b64 exec, s[34:35]")
    A.srd_off(20, 26, 27, WS_R, 576 * 8192)
    A.srd_off(44, 26, 27, WS_XQ, S * D * 2)
    A.srd(52, 50, 51, 256)
    e(f"""
    s_lshr_b32 s34, s63, 1
    s_lshl_b32 s34, s34, 2
    s_add_u32 s66, s66, s34
    s_addc_u32 s67, s67, 0
    s_load_dword s69, s[66:67], 0
    s_lshl_b32 s35, s29, 18
    v_lshlrev_b32 v9, 15, v2
    v_lshl_add_u32 v9, v3, 3, v9
    v_add_u32 v9, s35, v9
    s_movk_i32 s36, 0x4000
    v_sub_u32 v7, 31, v1
    v_lshlrev_b32 v8, 2, v2
    v_xor_b32 v7, v7, v8
    v_lshlrev_b32 v7, 2, v7
    v_lshl_add_u32 v7, v2, 10, v7
    s_lshl_b32 s70, s61, 14
    s_add_u32 s70, s70, {TS}
    v_add_u32 v7, s70, v7
    s_mov_b32 s34, 0xffff0000
    """)
    ST.stamp()
    e("s_waitcnt vmcnt(0)")
    e("s_barrier")
    ST.stamp()
    for r in range(6):
        e(f"ds_read_b128 {v(16+4*r,4)}, v10 offset:{KS + (4+r)*128}")
    for r in range(3):
        e(f"ds_read_b128 {v(40+4*r,4)}, v10 offset:{VS + (7+r)*128}")
    for r in range(4):
        e(f"ds_read_b128 {v(52+4*r,4)}, v11 offset:{SKS + 16*r}")
    e("""
    v_swap_b32 v94, v96
    v_swap_b32 v95, v97
    buffer_store_dwordx4 v[92:95], v9, s[44:47], 0 offen sc1
    buffer_store_dwordx4 v[96:99], v9, s[44:47], s36 offen sc1
    s_waitcnt lgkmcnt(0)
    """)
    for ch in range(8):
        d, hi = ch >> 1, ch & 1
        def unp(dst, src_):
            if hi: e(f"v_and_b32 v{dst}, s34, v{src_}")
            else:  e(f"v_lshlrev_b32 v{dst}, 16, v{src_}")
        for r in range(6): unp(70 + r, 16 + 4 * r + d)
        for r in range(3): unp(76 + r, 40 + 4 * r + d)
        sk = 52 + 2 * ch
        e(f"v_lshlrev_b32 v80, 16, v{sk}")
        e(f"v_and_b32 v81, s34, v{sk}")
        e(f"v_lshlrev_b32 v82, 16, v{sk+1}")
        e(f"v_and_b32 v83, s34, v{sk+1}")
        for r in range(3): e(f"v_mul_f32 v{84+r}, v{70+r}, v83")
        for r in range(3): e(f"v_fmac_f32 v{84+r}, v{71+r}, v82")
        for r in range(3): e(f"v_fmac_f32 v{84+r}, v{72+r}, v81")
        for r in range(3): e(f"v_fmac_f32 v{84+r}, v{73+r}, v80")
        for r in range(3): e(f"v_mul_f32 v{84+r}, v{84+r}, v{76+r}")
        e(f"v_cvt_pk_bf16_f32 v{88+2*(ch&1)}, v85, v84")
        e(f"v_cvt_pk_bf16_f32 v{89+2*(ch&1)}, v86, v85")
        e(f"ds_write_b32 v7, v{88+2*(ch&1)} offset:{ch*128}")
        e(f"ds_write_b32 v7, v{89+2*(ch&1)} offset:{8192+ch*128}")
    e(f"""
    v_lshrrev_b32 v8, 6, v101
    v_xor_b32 v9, v2, v8
    v_lshlrev_b32 v9, 4, v9
    v_lshl_add_u32 v9, v1, 7, v9
    v_xor_b32 v10, 64, v9
    v_add_u32 v9, s70, v9
    v_add_u32 v10, s70, v10
    s_lshl_b32 s35, s29, 19
    s_sub_u32 s36, 1984, s30
    s_lshl_b32 s36, s36, 1
    s_add_u32 s35, s35, s36
    v_lshlrev_b32 v11, 13, v1
    v_add3_u32 v11, v11, v5, s35
    v_add_u32 v12, 0x40000, v11
    s_waitcnt lgkmcnt(0)
    s_barrier
    ds_read_b128 v[16:19], v9
    ds_read_b128 v[20:23], v10 offset:4096
    ds_read_b128 v[24:27], v9 offset:8192
    ds_read_b128 v[28:31], v10 offset:12288
    s_movk_i32 s37, 0x1000
    s_waitcnt lgkmcnt(3)
    buffer_store_dwordx4 v[16:19], v11, s[20:23], 0 offen sc1
    s_waitcnt lgkmcnt(2)
    buffer_store_dwordx4 v[20:23], v12, s[20:23], 0 offen sc1
    s_waitcnt lgkmcnt(1)
    buffer_store_dwordx4 v[24:27], v11, s[20:23], s37 offen sc1
    s_waitcnt lgkmcnt(0)
    buffer_store_dwordx4 v[28:31], v12, s[20:23], s37 offen sc1
    """)
    ST.stamp()
    e(f"""
    v_mov_b32 v2, v100
    v_mov_b32 v4, v103
    v_mov_b32 v5, v104
    s_mov_b32 s30, s68
    s_lshl_b32 s32, s63, 13
    s_add_u32 s32, s32, {WS_R}
    s_lshl_b32 s33, s2, 14
    s_add_u32 s33, s33, {WS_XQ}
    """)
    A.srd_off(12, 26, 27, "s32", 8192)
    A.srd_off(16, 26, 27, "s33", 16384)
    A.srd_off(20, 26, 27, WS_ST, S * 8)
    e("s_lshr_b32 s33, s2, 1")
    e("s_lshl_b32 s33, s33, 15")
    e(f"s_add_u32 s33, s33, {WS_H}")
    A.srd_off(44, 26, 27, "s33", 32768)
    A.srd_off(40, 26, 27, WS_PART + 4 * S * D * 2, 8192 + 1024 + 32768)
    e(f"""
    s_lshl_b32 s36, s2, 11
    v_lshlrev_b32 v8, 2, v0
    v_mov_b32 v12, 0
    v_mov_b32 v13, 0
    v_mov_b32 v14, 0
    v_mov_b32 v15, 0
    buffer_store_dword v12, v8, s[40:43], s36 offen
    s_movk_i32 s38, {KB_KC}
    v_mul_lo_u32 v8, v4, s38
    v_lshl_add_u32 v8, v5, 2, v8
    v_add_u32 v8, s30, v8
    v_lshrrev_b32 v9, 5, v2
    s_movk_i32 s38, {KB_RC}
    v_mul_lo_u32 v9, v9, s38
    v_and_b32 v10, 31, v2
    v_lshl_add_u32 v9, v10, 4, v9
    s_add_u32 s39, s30, {KB_RO + 4096}
    v_add_u32 v9, s39, v9
    ds_write_b128 v9, v[12:15]
    v_and_b32 v10, 3, v5
    s_movk_i32 s38, {KB_KC}
    v_mul_lo_u32 v10, v10, s38
    v_lshrrev_b32 v11, 2, v5
    v_add_u32 v11, v11, v4
    v_lshl_add_u32 v10, v11, 4, v10
    v_add_u32 v10, s30, v10
    v_and_b32 v11, 1, v5
    s_movk_i32 s38, {KB_RC}
    v_mul_lo_u32 v11, v11, s38
    v_lshrrev_b32 v6, 1, v5
    v_lshlrev_b32 v6, 2, v6
    v_sub_u32 v6, v4, v6
    v_add_u32 v6, 28, v6
    v_lshl_add_u32 v11, v6, 4, v11
    s_add_u32 s39, s30, {KB_RO}
    v_add_u32 v11, s39, v11
    s_and_b32 s40, s63, 1
    s_lshl_b32 s40, s40, 4
    s_lshr_b32 s35, s69, s40
    s_and_b32 s35, s35, 0xffff
    v_lshl_add_u32 v6, v4, 2, v5
    v_mov_b32 v7, s35
    """)
    for d in range(4):
        e(f"v_cmp_eq_u32 vcc, {15-d}, v6")
        e("s_nop 1")
        e(f"v_cndmask_b32 v{108+d}, 0, v7, vcc")
    e(f"""
    s_lshl_b32 s34, s29, 4
    v_and_b32 v6, 3, v2
    v_lshlrev_b32 v6, 2, v6
    v_add_u32 v6, s34, v6
    v_and_b32 v7, 15, v2
    v_lshlrev_b32 v12, 2, v7
    v_lshlrev_b32 v7, 7, v7
    s_lshl_b32 s34, s29, 11
    s_and_b32 s35, s2, 15
    s_lshl_b32 s35, s35, 2
    s_add_u32 s34, s34, s35
    v_mov_b32 v13, 1
    v_mov_b32 v14, s2
    s_mul_i32 s36, s61, {KB_RC}
    s_add_u32 s36, s36, s39
    s_lshl_b32 s37, s61, 12
    s_waitcnt vmcnt(0)
    s_barrier
    """)
    ST.stamp()
    e("s_mov_b32 s33, s37")
    for c in range(4):
        e(f"s_add_u32 m0, s25, {c * KB_KC + 64}")
        e(f"s_add_u32 s37, s24, {4 * c + 4}")
        for b in range(2):
            e(f"buffer_load_dwordx4 v102, s[8:11], s37 offen offset:{b*1024} lds")
    e("s_mov_b32 s37, s33")
    e(f"""
    s_cmp_lg_u32 s60, 0
    s_cbranch_scc1 ka_go
    s_mov_b64 exec, 0xffff
    buffer_store_dword v13, v7, s[56:59], s34 offen sc1
    s_mov_b64 exec, 1
    buffer_store_byte v13, v14, s[52:55], 0 offen sc1
    s_mov_b64 exec, -1
    s_mov_b32 s38, 0
    s_mov_b32 s35, 0x01010101
    """)
    A.label("ka_poll")
    e(f"""
    buffer_load_dword v15, v12, s[56:59], s71 offen sc1
    s_add_u32 s38, s38, 1
    s_waitcnt vmcnt(0)
    v_cmp_ne_u32 vcc, 1, v15
    s_and_b32 s34, s38, 15
    s_cbranch_vccz ka_go
    s_cmp_lg_u32 s34, 0
    s_cbranch_scc1 ka_poll
    buffer_load_dword v15, v6, s[52:55], 0 offen sc1
    s_waitcnt vmcnt(0)
    v_cmp_ne_u32 vcc, s35, v15
    s_cmp_ge_u32 s38, 0x8000
    s_cbranch_scc1 ka_go
    s_cbranch_vccnz ka_poll
    """)
    A.label("ka_go")
    e("s_mov_b32 m0, s36")
    e("s_barrier")
    ST.stamp()
    for b in range(4):
        e(f"buffer_load_dwordx4 v102, s[12:15], s37 offen offset:{b*1024} sc1 lds")
    e("""
    s_cmp_lg_u32 s61, 0
    s_cbranch_scc1 ka_epi
    s_waitcnt vmcnt(0)
    ds_write_b32 v8, v105
    s_waitcnt lgkmcnt(0)
    s_barrier
    """)
    ST.stamp()
    ACC, BR, NB, AR = 32, 64, 8, 112
    lg = Cnt(A, "lgkmcnt", 15)
    def rdA(p, slot):
        e(f"ds_read_b128 {v(AR + 32 * (p & 1) + 4 * slot, 4)}, v11 offset:{64 * p + 64 * (56 - 8 * slot)}")
        lg.issue(("A", p, slot))
    def rdB(p, u):
        e(f"ds_read_b128 {v(BR + 4 * (u % NB), 4)}, v10 offset:{64 * (p + 8 * u)}")
        lg.issue(("B", p, u))
    for sl in range(7, -1, -1): rdA(0, sl)
    for u in range(4): rdB(0, u)
    e("s_mov_b32 s38, 0")
    for j in range(7, -1, -1):
        lg.need(("A", 0, j))
        e(f"v_mfma_f32_16x16x32_bf16 {v(ACC+4*j,4)}, {v(AR+4*j,4)}, v[108:111], 0")
        if j >= 5: rdB(0, 11 - j)
    e("s_waitcnt lgkmcnt(0)")
    A.label("ka_cl")
    e("s_waitcnt lgkmcnt(3)")
    lg.q = [("B", 0, 4), ("B", 0, 5), ("B", 0, 6)]
    for p in range(2):
        mfs = [(u, j) for u in range(8) for j in range(7, u - 1, -1)]
        first = {}
        for x, (u, j) in enumerate(mfs): first.setdefault(u, x)
        fill = {}
        fill[0] = [lambda: rdB(p, 7)]
        for u in range(7):
            fill.setdefault(first[u + 1], []).append(lambda u=u: rdB(p + 1, u))
        for n, sl in enumerate(range(7, -1, -1)):
            fill.setdefault(3 + 3 * n if (3 + 3 * n) not in fill else 4 + 3 * n, []).append(lambda sl=sl: rdA(p + 1, sl))
        for x, (u, j) in enumerate(mfs):
            lg.need(("B", p, u)); lg.need(("A", p, j - u))
            c = v(ACC + 4 * j, 4)
            e(f"v_mfma_f32_16x16x32_bf16 {c}, {v(AR+32*p+4*(j-u),4)}, {v(BR+4*(u%NB),4)}, {c}")
            for fn in fill.get(x, []): fn()
    e("""
    v_add_u32 v10, 128, v10
    v_add_u32 v11, 128, v11
    s_add_u32 s38, s38, 1
    s_cmp_lt_u32 s38, 4
    s_cbranch_scc1 ka_cl
    s_waitcnt lgkmcnt(0)
    """)
    ST.stamp()
    e(f"""
    v_lshlrev_b32 v16, 7, v4
    v_lshl_add_u32 v16, v5, 2, v16
    v_add_u32 v16, s30, v16
    s_nop 7
    """)
    for j in range(8):
        c = ACC + 4 * j
        e(f"v_cvt_pk_bf16_f32 v{c}, v{c}, v{c+1}")
        e(f"v_cvt_pk_bf16_f32 v{c+1}, v{c+2}, v{c+3}")
        e(f"ds_write_b32 v16, v{c} offset:{512*j}")
        e(f"ds_write_b32 v16, v{c+1} offset:{512*j+64}")
    e("s_waitcnt lgkmcnt(0)")
    e("s_barrier")
    fin()
    e("s_endpgm")
    A.label("ka_epi")
    e("v_lshlrev_b32 v16, 4, v101")
    e("v_lshlrev_b32 v17, 2, v101")
    e("v_lshlrev_b32 v18, 5, v101")
    e("""
    v_and_b32 v6, 15, v2
    v_lshlrev_b32 v6, 2, v6
    s_mov_b32 s35, 0x01010101
    s_mov_b32 s38, 0
    """)
    for r in range(4):
        e(f"s_movk_i32 s37, {4096*r}")
        e(f"buffer_load_dwordx4 {v(80+8*r,4)}, v16, s[16:19], s37 offen sc1")
    e("""
    s_waitcnt vmcnt(4) lgkmcnt(0)
    s_barrier
    """)
    A.label("ka_poll2")
    e("""
    buffer_load_dword v15, v6, s[52:55], 0 offen offset:144 sc1
    s_add_u32 s38, s38, 1
    s_waitcnt vmcnt(0)
    v_cmp_ne_u32 vcc, s35, v15
    s_cmp_ge_u32 s38, 0x8000
    s_cbranch_scc1 ka_go2
    s_cbranch_vccnz ka_poll2
    """)
    A.label("ka_go2")
    for r in range(4):
        e(f"s_movk_i32 s37, {4096*r}")
        e(f"buffer_load_dwordx4 {v(84+8*r,4)}, v16, s[20:23], s37 offen sc1")
    e(f"""
    s_and_b32 s40, s2, 1
    s_lshl_b32 s40, s40, 3
    v_add_u32 v18, s40, v18
    s_mov_b32 s41, 0xffff0000
    v_add_u32 v19, {2*KB_CH}, v17
    s_waitcnt vmcnt(0)
    """)
    XF, XH = 112, 144
    for r in range(4):
        X = 80 + 8 * r; M = 84 + 8 * r
        for tq in range(2):
            b = 8 * r + 4 * tq
            for d in range(2):
                e(f"v_lshlrev_b32 v{XF+b+2*d}, 16, v{X+2*tq+d}")
                e(f"v_and_b32 v{XF+b+2*d+1}, s41, v{X+2*tq+d}")
            mp = v(M + 2 * tq, 2)
            for p in range(2):
                e(f"v_pk_add_f32 {v(XH+b+2*p,2)}, {v(XF+b+2*p,2)}, {mp} op_sel_hi:[1,0] neg_lo:[0,1] neg_hi:[0,1]")
            for p in range(2):
                e(f"v_pk_mul_f32 {v(XH+b+2*p,2)}, {v(XH+b+2*p,2)}, {mp} op_sel:[0,1] op_sel_hi:[1,1]")
    e("s_barrier")
    for r in range(4):
        for ch in range(4):
            base = "v17" if ch < 2 else "v19"
            e(f"ds_read_b32 v{64+4*r+ch}, {base} offset:{(ch&1)*KB_CH + 1024*r}")
    for r in range(4):
        e(f"s_waitcnt lgkmcnt({12-4*r})")
        Y = 64 + 4 * r
        e(f"s_movk_i32 s37, {8192*r}")
        for tq in range(2):
            b = 8 * r + 4 * tq
            for ch in range(4):
                if tq == 0: e(f"v_lshlrev_b32 v{36+ch}, 16, v{Y+ch}")
                else: e(f"v_and_b32 v{36+ch}, s41, v{Y+ch}")
            for p in range(2):
                e(f"v_pk_fma_f32 {v(XF+b+2*p,2)}, {v(XH+b+2*p,2)}, {v(36+2*p,2)}, {v(XF+b+2*p,2)}")
            O = 44 + 4 * (r & 1) + 2 * tq
            e(f"v_cvt_pk_bf16_f32 v{O}, v{XF+b}, v{XF+b+1}")
            e(f"v_cvt_pk_bf16_f32 v{O+1}, v{XF+b+2}, v{XF+b+3}")
            e(f"buffer_store_dwordx2 {v(O,2)}, v18, s[44:47], s37 offen offset:{16*tq}{SCH}")
    fin()
    e("s_endpgm")
    A.label("ka_stats")
    e(f"""
    s_sub_u32 s28, s2, 144
    s_lshl_b32 s28, s28, 5
    v_lshrrev_b32 v1, 4, v0
    v_add_u32 v1, s28, v1
    v_and_b32 v2, 15, v0
    s_movk_i32 s29, 1152
    v_mul_lo_u32 v3, v1, s29
    v_lshl_add_u32 v3, v2, 3, v3
    v_lshlrev_b32 v4, 3, v1
    s_waitcnt lgkmcnt(0)
    """)
    A.srd(40, 38, 39, S * D * 2)
    A.srd_off(44, 26, 27, WS_ST, 2 * S * 8)
    A.srd(52, 50, 51, 256)
    XR, XF = 72, 34
    for rd in range(1):
        e(f"s_mov_b32 s33, {rd*32*1152}")
        for i in range(9):
            e(f"buffer_load_dwordx2 {v(XR+18*rd+2*i,2)}, v3, s[40:43], s33 offen offset:{128*i}")
    e("s_mov_b32 s30, 0xffff0000")
    e(f"s_mov_b32 s31, {fbits(1.0/576):#x}")
    e(f"s_mov_b32 s32, {fbits(1e-5):#x}")
    e("v_cmp_eq_u32 s[36:37], 0, v2")
    e(f"s_movk_i32 s33, {S*8}")
    e("v_mov_b32 v14, -1")
    e("v_mov_b32 v15, -1")
    for rd in range(1):
        e("s_waitcnt vmcnt(0)")
        for d in range(18):
            e(f"v_lshlrev_b32 v{XF+2*d}, 16, v{XR+18*rd+d}")
            e(f"v_and_b32 v{XF+2*d+1}, s30, v{XR+18*rd+d}")
        M = 8 + 8 * (rd & 1)
        e(f"v_pk_add_f32 v[{M}:{M+1}], {v(XF,2)}, {v(XF+2,2)}")
        e(f"v_pk_add_f32 v[10:11], {v(XF+4,2)}, {v(XF+6,2)}")
        for i in range(2, 9):
            e(f"v_pk_add_f32 v[{M}:{M+1}], v[{M}:{M+1}], {v(XF+4*i,2)}")
            e(f"v_pk_add_f32 v[10:11], v[10:11], {v(XF+4*i+2,2)}")
        e(f"v_pk_add_f32 v[{M}:{M+1}], v[{M}:{M+1}], v[10:11]")
        e(f"v_add_f32 v{M}, v{M}, v{M+1}")
        dpp_sum16(A, M)
        e(f"v_mul_f32 v{M}, s31, v{M}")
        for i in range(18):
            e(f"v_pk_add_f32 {v(XF+2*i,2)}, {v(XF+2*i,2)}, v[{M}:{M+1}] op_sel_hi:[1,0] neg_lo:[0,1] neg_hi:[0,1]")
        e(f"v_pk_mul_f32 v[10:11], {v(XF,2)}, {v(XF,2)}")
        e(f"v_pk_mul_f32 v[12:13], {v(XF+2,2)}, {v(XF+2,2)}")
        for i in range(1, 9):
            e(f"v_pk_fma_f32 v[10:11], {v(XF+4*i,2)}, {v(XF+4*i,2)}, v[10:11]")
            e(f"v_pk_fma_f32 v[12:13], {v(XF+4*i+2,2)}, {v(XF+4*i+2,2)}, v[12:13]")
        e("v_pk_add_f32 v[10:11], v[10:11], v[12:13]")
        e(f"v_add_f32 v{M+1}, v10, v11")
        dpp_sum16(A, M + 1)
        e(f"""
        v_mov_b32 v10, s32
        v_fmac_f32 v10, s31, v{M+1}
        v_rsq_f32 v{M+1}, v10
        s_mov_b64 exec, s[36:37]
        buffer_store_dwordx2 v[{M}:{M+1}], v4, s[44:47], 0 offen offset:{256*rd} sc1
        buffer_store_dwordx2 v[14:15], v4, s[44:47], s33 offen offset:{256*rd}
        s_mov_b64 exec, -1
        """)
    e(f"""
    v_mov_b32 v13, 1
    v_mov_b32 v12, s2
    s_waitcnt vmcnt(0)
    s_barrier
    v_cmp_eq_u32 vcc, 0, v0
    s_and_saveexec_b64 s[34:35], vcc
    s_cbranch_execz ka_nf
    buffer_store_byte v13, v12, s[52:55], 0 offen sc1
    """)
    A.label("ka_nf")
    e("s_mov_b64 exec, s[34:35]")
    e("s_cmp_ge_u32 s2, 160")
    e("s_cbranch_scc1 ka_pack0")
    fin()
    e("s_endpgm")
    A.label("ka_pack0")
    e("s_sub_u32 s2, s2, 160")
    emit_w_packer(A, "ka0", 0, 288, fin, halves=True, ksplit=True)
    A.label("ka_done")
    e("s_endpgm")
    A.kernel_end(name, 176, 102 if ST.on else 72)

def k_ln(A):
    name = "kl_kernel"
    A.launch(name, 256, 128, 0)
    A.kernel_begin(name)
    e = A.e
    e(f"""
    s_cmp_ge_u32 s2, 256
    s_cbranch_scc1 kl_done
    s_load_dwordx2 s[4:5], s[0:1], {KA_X}
    s_load_dwordx2 s[26:27], s[0:1], {KA_WS}
    v_lshrrev_b32 v1, 4, v0
    v_and_b32 v2, 15, v0
    s_lshl_b32 s28, s2, 3
    v_add_u32 v1, s28, v1
    s_movk_i32 s29, 1152
    v_mul_lo_u32 v3, v1, s29
    v_lshl_add_u32 v3, v2, 3, v3
    v_lshlrev_b32 v4, 14, v2
    v_lshl_add_u32 v4, v1, 3, v4
    v_lshrrev_b32 v5, 1, v2
    v_lshlrev_b32 v5, 15, v5
    v_lshl_add_u32 v5, v1, 4, v5
    v_and_b32 v6, 1, v2
    v_lshl_add_u32 v5, v6, 3, v5
    s_waitcnt lgkmcnt(0)
    """)
    A.srd(8, 4, 5, S * D * 2)
    A.srd_off(12, 26, 27, WS_YQ, S * D * 2)
    A.srd_off(16, 26, 27, WS_XLN, S * D * 2)
    A.srd_off(20, 26, 27, WS_H, S * D * 2)
    XR, YR, XF = 16, 34, 52
    A.srd_off(44, 26, 27, WS_PART + 4 * S * D * 2, 8192)
    e("""
    s_lshl_b32 s43, s2, 9
    v_lshlrev_b32 v7, 2, v0
    v_add_u32 v7, s43, v7
    v_mov_b32 v8, 0
    buffer_store_dword v8, v7, s[44:47], 0 offen
    """)
    for i in range(9):
        e(f"buffer_load_dwordx2 {v(XR+2*i,2)}, v3, s[8:11], 0 offen offset:{128*i}")
    for i in range(9):
        e(f"s_mov_b32 s{30+i}, {i*262144:#x}")
    for i in range(9):
        e(f"buffer_load_dwordx2 {v(YR+2*i,2)}, v4, s[12:15], s{30+i} offen")
    e("s_mov_b32 s40, 0xffff0000")
    e(f"s_mov_b32 s41, {fbits(1.0/576):#x}")
    e(f"s_mov_b32 s42, {fbits(1e-5):#x}")
    e("s_waitcnt vmcnt(9)")
    def unpack(dst, src):
        for d in range(18):
            e(f"v_lshlrev_b32 v{dst+2*d}, 16, v{src+d}")
            e(f"v_and_b32 v{dst+2*d+1}, s40, v{src+d}")
    def stats():
        for k in range(4):
            e(f"v_add_f32 v{8+k}, v{XF+k}, v{XF+4+k}")
        for i in range(2, 9):
            for k in range(4):
                e(f"v_add_f32 v{8+k}, v{8+k}, v{XF+4*i+k}")
        e("v_add_f32 v8, v8, v9")
        e("v_add_f32 v10, v10, v11")
        e("v_add_f32 v8, v8, v10")
        dpp_sum16(A, 8)
        e("v_mul_f32 v8, s41, v8")
        for i in range(36):
            e(f"v_sub_f32 v{XF+i}, v{XF+i}, v8")
        for k in range(4):
            e(f"v_mul_f32 v{9+k}, v{XF+k}, v{XF+k}")
        for i in range(1, 9):
            for k in range(4):
                e(f"v_fmac_f32 v{9+k}, v{XF+4*i+k}, v{XF+4*i+k}")
        e("v_add_f32 v9, v9, v10")
        e("v_add_f32 v11, v11, v12")
        e("v_add_f32 v9, v9, v11")
        dpp_sum16(A, 9)
        e("v_mov_b32 v10, s42")
        e("v_fmac_f32 v10, s41, v9")
        e("v_rsq_f32 v9, v10")
        e("s_nop 0")
    unpack(XF, XR)
    stats()
    e("s_waitcnt vmcnt(0)")
    for d in range(18):
        e(f"v_lshlrev_b32 v10, 16, v{YR+d}")
        e(f"v_and_b32 v11, s40, v{YR+d}")
        e(f"v_fma_f32 v10, v10, v9, 1.0")
        e(f"v_fma_f32 v11, v11, v9, 1.0")
        e(f"v_fma_f32 v10, v{XF+2*d}, v10, v8")
        e(f"v_fma_f32 v11, v{XF+2*d+1}, v11, v8")
        e(f"v_cvt_pk_bf16_f32 v{XR+d}, v10, v11")
    for i in range(9):
        e(f"buffer_store_dwordx2 {v(XR+2*i,2)}, v5, s[20:23], s{30+i} offen")
    unpack(XF, XR)
    stats()
    for d in range(18):
        e(f"v_mul_f32 v10, v{XF+2*d}, v9")
        e(f"v_mul_f32 v11, v{XF+2*d+1}, v9")
        e(f"v_cvt_pk_bf16_f32 v{YR+d}, v10, v11")
    for i in range(9):
        e(f"buffer_store_dwordx2 {v(YR+2*i,2)}, v5, s[16:19], s{30+i} offen")
    A.label("kl_done")
    e("s_endpgm")
    A.kernel_end(name, 88, 48)


def emit_piece_voffsets(A, vdst, n, vP0, row_stride, tmp=(4, 5, 6, 7, 8)):
    e = A.e
    t0, t1, t2, t3, t4 = tmp
    e("s_movk_i32 s34, 3641")
    e(f"s_movk_i32 s35, {row_stride}")
    for i in range(n):
        e(f"v_add_u32 v{t0}, {256*i}, v{vP0}")
        e(f"v_mul_lo_u32 v{t1}, v{t0}, s34")
        e(f"v_lshrrev_b32 v{t1}, 16, v{t1}")
        e(f"v_mul_u32_u24 v{t2}, 18, v{t1}")
        e(f"v_sub_u32 v{t2}, v{t0}, v{t2}")
        e(f"v_and_b32 v{t3}, 0xfffffff3, v{t1}")
        e(f"v_and_b32 v{t4}, 4, v{t1}")
        e(f"v_lshl_or_b32 v{t3}, v{t4}, 1, v{t3}")
        e(f"v_and_b32 v{t4}, 8, v{t1}")
        e(f"v_lshrrev_b32 v{t4}, 1, v{t4}")
        e(f"v_or_b32 v{t3}, v{t3}, v{t4}")
        e(f"v_mul_lo_u32 v{t3}, v{t3}, s35")
        e(f"v_lshl_add_u32 v{vdst+i}, v{t2}, 4, v{t3}")

def emit_tr_base(A, vdst, vlane, stage, nstage):
    e = A.e
    e(f"""
    v_lshrrev_b32 v6, 5, v{vlane}
    v_lshlrev_b32 v6, 4, v6
    v_bfe_u32 v7, v{vlane}, 4, 1
    v_lshl_add_u32 v6, v7, 2, v6
    v_bfe_u32 v7, v{vlane}, 2, 2
    v_add_u32 v6, v6, v7
    v_mul_u32_u24 v6, 288, v6
    v_and_b32 v7, 3, v{vlane}
    v_lshl_add_u32 v{vdst}, v7, 3, v6
    """)
    for sidx in range(1, nstage):
        e(f"v_add_u32 v{vdst+sidx}, {sidx*stage}, v{vdst}")

KC_UP = 18432
KC_STAGE = 36864
SC1 = " sc1" if os.environ.get("SC1", "1") == "1" else ""
SC1C = {"1": " sc1", "0": "", "nt": " nt", "sc0": " sc0", "sc01": " sc0 sc1"}[os.environ.get("SC1C", "1")]

def emit_d_tail(A, ACC, srd, s_tt, s_nt, s_ks, s_r, s_h, base=None):
    e = A.e
    l0, l1 = A.newlabel("kd_h0"), A.newlabel("kd_hj")
    e(f"""
    s_mul_i32 s33, s28, 9216
    v_lshlrev_b32 v3, 4, v2
    v_add_u32 v4, s33, v3
    s_xor_b32 s34, s28, 4
    s_mul_i32 s34, s34, 9216
    v_add_u32 v5, s34, v3
    """)
    if base is None:
        e("s_barrier")
    else:
        e(f"v_add_u32 v4, {base}, v4")
        e(f"v_add_u32 v5, {base}, v5")
    e(f"""
    s_cmp_eq_u32 s{s_h}, 0
    s_cbranch_scc1 {l0}
    """)
    for j in range(9):
        e(f"ds_write_b128 v4, {v(ACC+4*j,4)} offset:{1024*j}")
    for j in range(9):
        for r in range(4):
            e(f"v_mov_b32 v{ACC+4*j+r}, v{ACC+36+4*j+r}")
    e(f"s_branch {l1}")
    A.label(l0)
    for j in range(9):
        e(f"ds_write_b128 v4, {v(ACC+36+4*j,4)} offset:{1024*j}")
    A.label(l1)
    e("s_waitcnt lgkmcnt(0)")
    e("s_barrier")
    for j in range(9):
        e(f"ds_read_b128 {v(40+4*j,4)}, v5 offset:{1024*j}")
    e(f"""
    s_lshl_b32 s42, s{s_tt}, 2
    s_add_u32 s42, s42, s{s_nt}
    s_lshl_b32 s42, s42, 2
    s_add_u32 s43, s42, s{s_r}
    s_lshl_b32 s43, s43, 2
    s_add_u32 s43, s43, s{s_ks}
    s_mul_i32 s44, s43, 9216
    s_lshl_b32 s33, s{s_h}, 8
    s_add_u32 s44, s44, s33
    v_and_b32 v6, 15, v2
    v_lshlrev_b32 v6, 4, v6
    v_bfe_u32 v7, v2, 4, 1
    v_lshl_add_u32 v8, v7, 10, v6
    v_lshrrev_b32 v24, 5, v2
    v_lshl_add_u32 v8, v24, 9, v8
    v_lshl_add_u32 v6, v24, 9, v6
    v_lshl_add_u32 v6, v7, 3, v6
    s_add_u32 s45, s44, 4096
    s_add_u32 s46, s44, 8192
    """)
    for j in range(9):
        e(f"s_waitcnt lgkmcnt({8-j})")
        e(f"v_pk_add_f32 {v(ACC+4*j,2)}, {v(ACC+4*j,2)}, {v(40+4*j,2)}")
        e(f"v_pk_add_f32 {v(ACC+4*j+2,2)}, {v(ACC+4*j+2,2)}, {v(40+4*j+2,2)}")
        O = 80 + 2 * j
        e(f"v_cvt_pk_bf16_f32 v{O}, v{ACC+4*j}, v{ACC+4*j+1}")
        e(f"v_cvt_pk_bf16_f32 v{O+1}, v{ACC+4*j+2}, v{ACC+4*j+3}")
        if j >= 2 and j % 2 == 0:
            jp = j // 2 - 1
            P_ = 80 + 4 * jp
            e(f"v_permlane16_swap_b32 v{P_}, v{P_+2}")
            e(f"v_permlane16_swap_b32 v{P_+1}, v{P_+3}")
            e(f"buffer_store_dwordx4 {v(P_,4)}, v8, s[{srd}:{srd+3}], s{44+jp//2} offen offset:{2048*(jp%2)} sc1")
    e(f"buffer_store_dwordx2 v[96:97], v6, s[{srd}:{srd+3}], s46 offen sc1")

FLAG_OFF = 4 * S * D * 2
def k_c(A):
    name = "kc_kernel"
    CS_L = 4 * KC_STAGE
    A.launch(name, 256, 512, 4 * KC_STAGE + 2048 + 8192)
    A.kernel_begin(name)
    e = A.e
    XR = 112
    ACC = 64
    WR = 40
    NW = 6
    T, O, CS = 24, 24, 32
    K = 16
    PK = int(os.environ.get("KC_PK", "0"))
    ST = Stamps(A, STAMP in ("kc", "kd2"))
    ST.stamp(); ST.real(0)
    ST.mute = STAMP == "kd2"
    e(f"""
    s_cmp_ge_u32 s2, 256
    s_cbranch_scc1 kc_done
    s_load_dwordx2 s[26:27], s[0:1], {KA_WS}
    s_load_dwordx2 s[4:5], s[0:1], {KA_WD}
    v_lshrrev_b32 v1, 6, v0
    v_and_b32 v2, 63, v0
    v_lshlrev_b32 v3, 4, v2
    v_readfirstlane_b32 s28, v1
    s_and_b32 s33, s2, 7
    s_lshr_b32 s34, s2, 3
    s_lshr_b32 s29, s33, 1
    s_lshl_b32 s29, s29, 3
    s_and_b32 s31, s34, 7
    s_add_u32 s29, s29, s31
    s_and_b32 s30, s33, 1
    s_lshl_b32 s30, s30, 2
    s_lshr_b32 s31, s34, 3
    s_add_u32 s30, s30, s31
    s_lshl_b32 s33, s30, 8
    s_lshl_b32 s34, s28, 5
    s_add_u32 s33, s33, s34
    v_and_b32 v4, 15, v2
    v_add_u32 v4, s33, v4
    v_lshrrev_b32 v5, 4, v2
    v_lshlrev_b32 v5, 15, v5
    v_lshl_add_u32 v9, v4, 4, v5
    s_lshl_b32 s36, s28, 12
    s_mul_i32 s37, s29, {324*1024}
    s_lshl_b32 s31, s28, 10
    s_add_u32 s31, s31, 32768
    s_and_b32 s64, s29, {7 if KC_ROT else 0}
    s_mul_i32 s65, s64, {4096*NP1}
    s_add_u32 s66, s65, s36
    s_add_u32 s67, s65, s31
    s_lshl_b32 s65, s64, 12
    s_add_u32 s68, s65, s36
    s_add_u32 s69, s65, s31
    s_sub_u32 s65, s68, {KC_STAGE}
    s_cmp_ge_u32 s68, {KC_STAGE}
    s_cselect_b32 s68, s65, s68
    s_sub_u32 s65, s69, {KC_STAGE}
    s_cmp_ge_u32 s69, {KC_STAGE}
    s_cselect_b32 s69, s65, s69
    s_add_u32 s68, s68, s37
    s_add_u32 s69, s69, s37
    s_lshl_b32 s70, s64, 18
    s_waitcnt lgkmcnt(0)
    """)
    A.srd_off(8, 26, 27, WS_WP, 2 * D * F * 2)
    A.srd_off(12, 26, 27, WS_H, S * D * 2)
    vm = Cnt(A, "vmcnt", 63)
    lg = Cnt(A, "lgkmcnt", 15)
    issued = set()
    done_st = lambda vm_, iss: iss
    def soff(c, sfirst, slater):
        if c >= NP1:
            e(f"s_add_u32 s38, s{slater}, {c*KC_STAGE}")
        else:
            e(f"s_add_u32 s38, s{sfirst}, {c*KC_STAGE}")
            e(f"s_sub_u32 s65, s38, {NP1*KC_STAGE}")
            e(f"s_cmp_ge_u32 s38, {NP1*KC_STAGE}")
            e("s_cselect_b32 s38, s65, s38")
            e("s_add_u32 s38, s38, s37")
    def dma_ops(c):
        st = c % 4
        def opt():
            lab = A.newlabel("kc_skip")
            e("s_cmp_ge_u32 s28, 4")
            e(f"s_cbranch_scc1 {lab}")
            e(f"s_add_u32 m0, s31, {st*KC_STAGE}")
            soff(c, 67, 69)
            e(f"buffer_load_dwordx4 v3, s[8:11], s38 offen lds")
            A.label(lab)
        ops = [opt, lambda: e(f"s_add_u32 m0, s36, {st*KC_STAGE}"), lambda: soff(c, 66, 68)]
        for i in range(4):
            def ld(i=i):
                e(f"buffer_load_dwordx4 v3, s[8:11], s38 offen offset:{1024*i} lds")
                vm.issue(("W", c))
            ops.append(ld)
        return [("W", c, op) for op in ops]
    def x_ops(sx):
        def so():
            e("s_mov_b32 s40, s70")
            e(f"s_add_u32 s70, s70, {4*32768:#x}")
            e(f"s_cmp_ge_u32 s70, {72*32768:#x}")
            e("s_cselect_b32 s70, 0, s70")
        ops = [so]
        for tt in range(2):
            def ld(tt=tt):
                e(f"buffer_load_dwordx4 {v(XR+8*sx+4*tt,4)}, v9, s[12:15], s40 offen offset:{256*tt}")
                vm.issue(("X", sx))
            ops.append(ld)
        return [("X", sx, op) for op in ops]
    def run_ops(ops):
        for op in ops: op[2]()
    PF8 = int(os.environ.get("PF8", "3"))
    NXP = int(os.environ.get("KC_NXP", "4"))
    NX0 = int(os.environ.get("KC_NX0", "2"))
    run_ops(dma_ops(0))
    for sx in range(NX0): run_ops(x_ops(sx))
    A.srd_off(48, 26, 27, WS_ST2, S * 8)
    e(f"""
    s_lshl_b32 s52, s30, 8
    s_lshl_b32 s53, s29, 3
    s_add_u32 s52, s52, s53
    s_add_u32 s52, s52, s28
    s_lshl_b32 s53, s52, 4
    s_add_u32 s54, s53, {36*32768}
    v_lshlrev_b32 v4, 15, v2
    v_mov_b32 v5, 0x7ffffff0
    v_cmp_gt_u32 s[56:57], 36, v2
    s_lshl_b32 s52, s52, 3
    s_nop 0
    v_cndmask_b32 v4, v5, v4, s[56:57]
    buffer_load_dwordx4 v[{T}:{T+3}], v4, s[12:15], s53 offen
    buffer_load_dwordx4 v[{T+4}:{T+7}], v4, s[12:15], s54 offen
    """)
    vm.issue("row"); vm.issue("row")
    A.srd_off(16, 26, 27, WS_HH, S * F * 2)
    A.srd_off(20, 26, 27, WS_CS, 12 * F * 4)
    e(f"""
    v_and_b32 v4, 31, v2
    v_add_u32 v4, s33, v4
    v_lshrrev_b32 v5, 5, v2
    v_lshlrev_b32 v5, 15, v5
    v_lshl_add_u32 v1, v4, 4, v5
    v_add_u32 v6, {KC_STAGE}, v3
    v_add_u32 v7, {2*KC_STAGE}, v3
    v_add_u32 v8, {3*KC_STAGE}, v3
    v_lshrrev_b32 v10, 4, v2
    v_lshlrev_b32 v10, 4, v10
    v_add_u32 v10, {CS_L}, v10
    s_lshr_b32 s32, s28, 2
    s_mul_i32 s33, s32, {F*4}
    s_mul_i32 s34, s29, 576
    s_add_u32 s33, s33, s34
    v_mov_b32 v5, 0x7ffffff0
    v_cmp_gt_u32 vcc, 36, v2
    s_lshl_b32 s32, s32, 10
    s_add_u32 s32, s32, {CS_L}
    v_cndmask_b32 v13, v5, v3, vcc
    v_add_u32 v11, s32, v3
    s_mov_b32 s55, s33
    s_mov_b32 s47, 0xffff0000
    s_mul_i32 s42, s29, {18*32768}
    """)
    e(f"""
    s_mov_b32 s44, {fbits(1.0/576):#x}
    v_and_b32 v12, 0x7fff, v9
    v_lshrrev_b32 v12, 1, v12
    """)
    def pub_ops():
        L = [lambda: vm.need("row")]
        q = lambda s_: L.append(lambda: e(s_))
        def wave_sum(r, t):
            for sh in (8, 4, 2, 1):
                q(f"s_nop 1\nv_add_f32_dpp v{r}, v{r}, v{r} row_ror:{sh} row_mask:0xf bank_mask:0xf")
            for op in ("v_permlane16_swap_b32", "v_permlane32_swap_b32"):
                q(f"v_mov_b32 v{t}, v{r}")
                q(f"s_nop 1\n{op} v{r}, v{t}")
                q(f"v_add_f32 v{r}, v{r}, v{t}")
        for d in range(8):
            q(f"v_lshlrev_b32 v{K+4+(d&1)*2}, 16, v{T+d}")
            q(f"v_and_b32 v{K+5+(d&1)*2}, s47, v{T+d}")
            if d == 0:
                q(f"v_add_f32 v{K}, v{K+4}, v{K+5}")
            else:
                q(f"v_add_f32 v{K}, v{K}, v{K+4+(d&1)*2}")
                q(f"v_add_f32 v{K}, v{K}, v{K+5+(d&1)*2}")
        wave_sum(K, K + 1)
        q(f"v_mul_f32 v{K}, s44, v{K}")
        q(f"v_mov_b32 v{K+2}, 0")
        for d in range(8):
            u = K + 4 + (d & 1) * 2
            q(f"v_lshlrev_b32 v{u}, 16, v{T+d}")
            q(f"v_and_b32 v{u+1}, s47, v{T+d}")
            q(f"v_sub_f32 v{u}, v{u}, v{K}")
            q(f"v_sub_f32 v{u+1}, v{u+1}, v{K}")
            q(f"v_fmac_f32 v{K+2}, v{u}, v{u}")
            q(f"v_fmac_f32 v{K+2}, v{u+1}, v{u+1}")
        q(f"v_cndmask_b32 v{K+2}, 0, v{K+2}, s[56:57]")
        wave_sum(K + 2, K + 3)
        q(f"v_mov_b32 v{K+1}, {fbits(1e-5):#x}")
        q(f"v_fmac_f32 v{K+1}, s44, v{K+2}")
        q("v_mov_b32 v4, 0")
        def st():
            e("s_mov_b64 exec, 1")
            e(f"buffer_store_dwordx2 v[{K}:{K+1}], v4, s[48:51], s52 offen sc1")
            e("s_mov_b64 exec, -1")
            vm.issue("pub", "S")
        L.append(st)
        return L
    RB = [3, 6, 7, 8]
    def finfo(f):
        b = f // 36
        if b < NP1: return (f // (2 * NP1), (f % (2 * NP1)) >> 1, f & 1)
        return ((f % 36) // 2, b, f & 1)
    def wread(f):
        e(f"ds_read_b128 {v(WR+4*(f%NW),4)}, v{RB[(f//36)%4]} offset:{1024*(f%36)}")
        lg.issue(("w", f))
    def stat_ops(sx):
        ops = []
        for tt in range(2):
            for d in range(4):
                r = XR + 8 * sx + 4 * tt + d
                k = K + 4 * tt
                ops.append(lambda r=r: e(f"v_lshlrev_b32 v4, 16, v{r}"))
                ops.append(lambda r=r: e(f"v_and_b32 v5, s47, v{r}"))
                ops.append(lambda k=k: e(f"v_add_f32 v{k}, v{k}, v4"))
                ops.append(lambda k=k: e(f"v_add_f32 v{k+1}, v{k+1}, v5"))
                ops.append(lambda k=k: e(f"v_fmac_f32 v{k+2}, v4, v4"))
                ops.append(lambda k=k: e(f"v_fmac_f32 v{k+3}, v5, v5"))
        return ops
    c0 = -2.0 * math.sqrt(2.0 / math.pi) * math.log2(math.e)
    c1 = c0 * 0.044715
    def statld_ops():
        L = []
        for tt in range(2):
            def ld(tt=tt):
                e(f"buffer_load_dwordx2 v[{K+4*tt}:{K+4*tt+1}], v12, s[48:51], 0 offen offset:{128*tt} sc1")
                vm.issue("stat")
            L.append(ld)
        return L
    def statfin_ops():
        L = []
        q = lambda s_: L.append(lambda: e(s_))
        def chk():
            vm.need("stat")
            e(f"v_cmp_eq_u32 vcc, -1, v{K+1}")
            e(f"v_cmp_eq_u32 s[58:59], -1, v{K+5}")
            e("s_nop 1")
            e("s_or_b64 vcc, vcc, s[58:59]")
            e("s_cbranch_vccnz kc_slowstat" if not os.environ.get("KC_FORCESLOW") else "s_branch kc_slowstat")
            A.label("kc_statok")
        L.append(chk)
        q(f"s_mov_b32 s45, {fbits(c0):#x}")
        q(f"s_mov_b32 s46, {fbits(c1):#x}")
        for tt in range(2):
            k = K + 4 * tt
            q(f"v_rsq_f32 v{k+2}, v{k+1}")
            q(f"v_sub_f32 v{k}, 0, v{k}")
            q(f"v_mul_f32 v{k+3}, v{k+2}, v{k+2}")
            q(f"v_mul_f32 v{k+3}, v{k+3}, v{k+2}")
            q(f"v_mul_f32 v{k+3}, s46, v{k+3}")
            q(f"v_mul_f32 v{k+2}, s45, v{k+2}")
        return L
    def slowstat():
        A.label("kc_slowstat")
        for r in range(8): e(f"v_mov_b32 v{K+r}, 0")
        for sx in range(18):
            for op in stat_ops(sx): op()
        R4 = [K, K + 2, K + 4, K + 6]
        for r in R4: e(f"v_add_f32 v{r}, v{r}, v{r+1}")
        for op in ("v_permlane32_swap_b32", "v_permlane16_swap_b32"):
            for r in R4: e(f"v_mov_b32 v{r+1}, v{r}")
            e("s_nop 1")
            for r in R4: e(f"{op} v{r}, v{r+1}")
            for r in R4: e(f"v_add_f32 v{r}, v{r}, v{r+1}")
        for tt in range(2):
            k = K + 4 * tt
            e(f"v_mul_f32 v{k}, s44, v{k}")
            e(f"v_mul_f32 v{k+1}, s44, v{k+2}")
            e(f"v_fma_f32 v{k+1}, -v{k}, v{k}, v{k+1}")
            e(f"v_max_f32 v{k+1}, 0, v{k+1}")
            e(f"v_add_f32 v{k+1}, {fbits(1e-5):#x}, v{k+1}")
        e("s_branch kc_statok")
    def cs_rd(j):
        if j > 8: return
        e(f"ds_read_b128 {v(CS,4)}, v10 offset:{64*j}"); lg.issue(("cs", j))
        e(f"ds_read_b128 {v(CS+4,4)}, v10 offset:{1024+64*j}"); lg.issue(("cs", j))
    def epi_ops(j):
        L = []
        q = lambda s_: L.append(lambda: e(s_))
        g0 = ACC + 16 * (j % 3)
        L.append(lambda: lg.need(("cs", j)))
        kk = lambda r: K + 4 * (r // 4)
        P = lambda r: v(r, 2)
        stages = [
            (0, lambda r: [f"v_fmac_f32 v{g0+r}, v{CS+(r%4)}, v{kk(r)}", f"v_fmac_f32 v{g0+8+r}, v{CS+4+(r%4)}, v{kk(r)}"]),
            (1, lambda r: [f"v_mul_f32 v{T+r}, v{g0+r}, v{g0+r}"]),
            (2, lambda r: [f"v_fma_f32 v{T+r}, v{T+r}, v{kk(r)+3}, v{kk(r)+2}"]),
            (3, lambda r: [f"v_mul_f32 v{T+r}, v{T+r}, v{g0+r}"]),
            (4, lambda r: [f"v_exp_f32 v{T+r}, v{T+r}", f"v_mul_f32 v{g0+r}, v{g0+r}, v{g0+8+r}"]),
            (5, lambda r: [f"v_fma_f32 v{T+r}, v{T+r}, v{kk(r)+1}, v{kk(r)+1}"]),
            (6, lambda r: [f"v_rcp_f32 v{T+r}, v{T+r}"]),
            (7, lambda r: [f"v_mul_f32 v{g0+r}, v{g0+r}, v{T+r}"]),
        ]
        order = [6, 0, 1, 7, 4, 2, 3, 5]
        for k_ in range(8 + 7):
            for si in order:
                off, fn = stages[si]
                r = k_ - off
                if 0 <= r < 8:
                    for s_ in fn(r): q(s_)
            if k_ == 7: L.append(lambda: cs_rd(j + 1))
            if k_ == 13: q("s_nop 0")
        for d in range(4): q(f"v_cvt_pk_bf16_f32 v{O+d}, v{g0+2*d}, v{g0+2*d+1}")
        q(f"s_add_u32 s43, s42, {2*j*32768}")
        q("s_nop 0")
        q(f"v_permlane16_swap_b32 v{O}, v{O+2}")
        q(f"v_permlane16_swap_b32 v{O+1}, v{O+3}")
        def st_():
            e(f"buffer_store_dwordx4 {v(O,4)}, v1, s[16:19], s43 offen{SC1C}")
            vm.issue(("st", j), "S"); issued.add(("st", j))
        L.append(st_)
        q("s_nop 0")
        return L
    def wd_setup_ops():
        L = []
        q = lambda s_: L.append(lambda: e(s_))
        for s_ in f"""s_mov_b32 s6, {F*D*2:#x}
        s_mov_b32 s7, 0x00020000
        s_add_u32 s60, s26, {WS_WDP:#x}
        s_addc_u32 s61, s27, 0
        s_mov_b32 s62, {F*D*2:#x}
        s_mov_b32 s63, 0x00020000
        s_lshl_b32 s24, s2, 3
        s_add_u32 s24, s24, s28
        s_mul_i32 s25, s24, 7282
        s_lshr_b32 s25, s25, 16
        s_mul_i32 s39, s25, 9
        s_sub_u32 s24, s24, s39
        s_mul_i32 s39, s25, 36864
        s_lshl_b32 s41, s24, 7
        s_add_u32 s39, s39, s41
        s_mul_i32 s41, s25, 1821
        s_lshr_b32 s41, s41, 16
        s_mul_i32 s52, s41, 36
        s_sub_u32 s25, s25, s52
        s_mul_i32 s41, s41, {4*36*9}
        s_mul_i32 s25, s25, 9
        s_add_u32 s41, s41, s25
        s_lshl_b32 s24, s24, 2
        v_lshrrev_b32 v4, 3, v2
        v_mul_u32_u24 v4, 1152, v4
        v_and_b32 v5, 7, v2
        v_lshl_add_u32 v13, v5, 4, v4
        v_lshrrev_b32 v4, 4, v2
        v_lshlrev_b32 v4, 3, v4
        v_bfe_u32 v5, v2, 2, 2
        v_add_u32 v4, v4, v5
        v_lshlrev_b32 v4, 7, v4
        v_and_b32 v5, 3, v2
        v_lshl_add_u32 v14, v5, 3, v4
        v_add_u32 v14, s36, v14""".split("\n"):
            q(s_.strip())
        L[2:4] = [lambda: (e(f"s_add_u32 s60, s26, {WS_WDP:#x}"), e("s_addc_u32 s61, s27, 0"))]
        for q4 in range(4):
            d = 52 + q4
            q(f"s_add_u32 s25, s24, {q4}")
            q(f"s_mul_i32 s{d}, s25, 7282")
            q(f"s_lshr_b32 s{d}, s{d}, 16")
            q(f"s_mul_i32 s{d}, s{d}, {36*9-9}")
            q(f"s_add_u32 s{d}, s{d}, s25")
            q(f"s_add_u32 s{d}, s{d}, s41")
            q(f"s_lshl_b32 s{d}, s{d}, 10")
        return L
    def wd_dma_ops():
        ops = []
        for i in range(4):
            ops.append(lambda i=i: e(f"s_add_u32 m0, s36, {KC_STAGE + 1024*i}"))
            def ld(i=i):
                e(f"buffer_load_dwordx4 v13, s[4:7], s39 offen lds")
                e(f"s_add_u32 s39, s39, {8*1152}")
                vm.issue("wd")
            ops.append(ld)
        return [("P", 99, op) for op in ops]
    def wd_pack_ops():
        L = [lambda: vm.need("wd")]
        for q4 in range(4):
            def rd(q4=q4):
                e(f"ds_read_b64_tr_b16 {v(ACC+4*q4,2)}, v14 offset:{KC_STAGE+32*q4}"); lg.issue(("wdr", q4))
                e(f"ds_read_b64_tr_b16 {v(ACC+4*q4+2,2)}, v14 offset:{KC_STAGE+32*q4+512}"); lg.issue(("wdr", q4))
            L.append(rd)
        L += [lambda: None] * 12
        for q4 in range(4):
            def st(q4=q4):
                lg.need(("wdr", q4))
                e(f"buffer_store_dwordx4 {v(ACC+4*q4,4)}, v3, s[60:63], s{52+q4} offen{SCP}")
                vm.issue("wds", "S")
            L.append(st)
        return L
    DA, DH, DACC, DWR, DNW, DNH = 112, 128, 184, 44, 8, 6
    PK_L = CS_L + 2048
    def d_salu_ops():
        L = []
        q = lambda s_: L.append(lambda: e(s_))
        for s_ in f"""s_mov_b32 s6, {F*D*2:#x}
        s_mov_b32 s7, 0x00020000
        s_mov_b32 s62, {FLAG_OFF+8192+1024+32768:#x}
        s_mov_b32 s63, 0x00020000
        s_mov_b32 s22, {F*D*2:#x}
        s_and_b32 s24, s2, 7
        s_lshr_b32 s25, s2, 3
        s_lshr_b32 s52, s24, 1
        s_and_b32 s24, s24, 1
        s_lshl_b32 s24, s24, 3
        s_lshr_b32 s53, s25, 2
        s_add_u32 s53, s53, s24
        s_and_b32 s54, s25, 3
        s_and_b32 s56, s28, 3
        s_lshr_b32 s57, s28, 2
        s_lshl_b32 s24, s52, 2
        s_add_u32 s24, s24, s54
        s_mul_i32 s39, s24, {324*1024}
        s_lshl_b32 s24, s24, 6
        s_add_u32 s32, s24, {FLAG_OFF+8192}
        s_lshl_b32 s24, s53, 2
        s_add_u32 s33, s32, s24
        s_mul_i32 s41, s52, {144*32768}
        s_mul_i32 s24, s57, {36*32768}
        s_add_u32 s41, s41, s24
        s_lshl_b32 s24, s30, 3
        s_add_u32 s24, s24, s28
        s_lshl_b32 s24, s24, 5
        s_add_u32 s24, s24, s29
        s_lshl_b32 s24, s24, 2
        s_add_u32 s55, s24, {FLAG_OFF}
        s_lshl_b32 s24, s53, 7
        s_lshl_b32 s25, s52, 3
        s_add_u32 s24, s24, s25
        s_lshl_b32 s24, s24, 2
        s_add_u32 s71, s24, {FLAG_OFF}
        s_lshl_b32 s24, s53, 3
        s_add_u32 s24, s24, s28
        s_mul_i32 s35, s24, 3072
        s_add_u32 s35, s35, s39
        s_mul_i32 s25, s24, 171
        s_lshr_b32 s25, s25, 9
        s_mul_i32 s34, s25, 3
        s_sub_u32 s34, s24, s34
        s_mul_i32 s34, s34, 96
        s_mul_i32 s64, s54, 288
        s_add_u32 s34, s34, s64
        s_lshr_b32 s64, s25, 2
        s_and_b32 s25, s25, 3
        s_mul_i32 s25, s25, 288
        s_lshl_b32 s64, s64, 4
        s_add_u32 s25, s25, s64
        s_mul_i32 s64, s52, 1152
        s_add_u32 s25, s25, s64
        s_mul_i32 s25, s25, 1152
        s_add_u32 s34, s34, s25""".split("\n"):
            q(s_.strip())
        L.append(lambda: (e("s_cmp_ge_u32 s24, 108"), e(f"s_cselect_b32 s34, {F*D*2:#x}, s34"), e(f"s_cselect_b32 s35, {F*D*2:#x}, s35")))
        L.append(lambda: (e(f"s_add_u32 s60, s26, {WS_PART:#x}"), e("s_addc_u32 s61, s27, 0")))
        L.append(lambda: (e(f"s_add_u32 s20, s26, {WS_WDP:#x}"), e("s_addc_u32 s21, s27, 0")))
        return L
    def pk_addr_ops():
        L = []
        q = lambda s_: L.append(lambda: e(s_))
        for s_ in f"""v_lshrrev_b32 v4, 5, v2
        v_mul_u32_u24 v4, 144, v4
        v_bfe_u32 v5, v2, 1, 4
        v_add_u32 v4, v4, v5
        v_mul_u32_u24 v4, 1152, v4
        v_and_b32 v5, 1, v2
        v_lshl_add_u32 v9, v5, 4, v4
        v_lshrrev_b32 v4, 4, v2
        v_lshlrev_b32 v4, 3, v4
        v_bfe_u32 v5, v2, 2, 2
        v_add_u32 v4, v4, v5
        v_lshlrev_b32 v4, 5, v4
        v_and_b32 v5, 3, v2
        v_lshl_add_u32 v4, v5, 3, v4
        s_lshl_b32 s64, s28, 10
        s_add_u32 s64, s64, {PK_L}
        v_add_u32 v11, s64, v4""".split("\n"):
            q(s_.strip())
        return L
    def prefill_ops():
        L = []
        q = lambda s_: L.append(lambda: e(s_))
        for r in range(12, 16): q(f"v_mov_b32 v{r}, -1")
        for s_ in f"""s_lshl_b32 s24, s53, 2
        s_add_u32 s24, s24, s54
        s_lshl_b32 s24, s24, 2
        s_add_u32 s24, s24, s56
        s_lshl_b32 s24, s24, 2
        s_add_u32 s24, s24, s52
        s_mul_i32 s24, s24, 9216
        s_lshl_b32 s25, s57, 12
        s_add_u32 s24, s24, s25
        s_add_u32 s25, s24, 4096""".split("\n"):
            q(s_.strip())
        for i in range(5):
            def st(i=i):
                e(f"buffer_store_dwordx4 v[12:15], v3, s[60:63], s{24 if i < 4 else 25} offen offset:{1024*(i%4)} sc1")
                vm.issue("pf", "S")
            L.append(st)
        return L
    def pk_touch_ops():
        L = []
        q = lambda s_: L.append(lambda: e(s_))
        for s_ in f"""v_lshrrev_b32 v4, 5, v2
        v_mul_u32_u24 v4, 144, v4
        v_bfe_u32 v5, v2, 1, 4
        v_add_u32 v4, v4, v5
        v_mul_u32_u24 v4, 1152, v4
        v_and_b32 v5, 1, v2
        v_mul_u32_u24 v5, 92, v5
        v_add_u32 v{T}, v5, v4""".split("\n"):
            q(s_.strip())
        def ld():
            e(f"buffer_load_dword v{T+1}, v{T}, s[4:7], s34 offen")
            vm.issue("pkt")
        L.append(ld)
        return L
    def pk_dma_ops(i):
        def ld():
            e("s_mov_b32 m0, s64")
            e("s_nop 0")
            e(f"buffer_load_dwordx4 v9, s[4:7], s34 offen lds")
            e("s_add_u32 s34, s34, 32")
            vm.issue(("pkd", i))
        return [("P", 99, ld)]
    def pk_rd_ops(i):
        def rd():
            vm.need(("pkd", i))
            e("ds_read_b64_tr_b16 v[12:13], v11"); lg.issue(("pkr", i))
            e("ds_read_b64_tr_b16 v[14:15], v11 offset:128"); lg.issue(("pkr", i))
        def st():
            lg.need(("pkr", i))
            e(f"buffer_store_dwordx4 v[12:15], v3, s[20:23], s35 offen offset:{1024*i} sc1")
            vm.issue(("pks", i), "S"); issued.add(("pks", i))
            if i < 2: mem.extend(pk_dma_ops(i + 1))
        return [rd], [st]
    def publish(level):
        e(f"v_mov_b32 v4, {level}")
        e("v_mov_b32 v5, 0")
        e("s_mov_b64 exec, 1")
        e("buffer_store_dword v4, v5, s[60:63], s55 offen sc1")
        e("s_mov_b64 exec, -1")
        vm.issue("prog", "S")
    def retired_level():
        lv = 0
        while ("st", lv) in issued and ("st", lv) not in vm.q: lv += 1
        return lv
    def d_valu_ops():
        L = []
        q = lambda s_: L.append(lambda: e(s_))
        for s_ in f"""s_lshl_b32 s24, s53, 7
        s_lshl_b32 s25, s56, 5
        s_add_u32 s24, s24, s25
        v_and_b32 v4, 15, v2
        v_add_u32 v4, s24, v4
        v_lshrrev_b32 v5, 5, v2
        v_mul_u32_u24 v5, 18, v5
        v_bfe_u32 v{DA}, v2, 4, 1
        v_add_u32 v5, v5, v{DA}
        v_lshlrev_b32 v5, 15, v5
        v_lshl_add_u32 v{DA+5}, v4, 4, v5
        s_mul_i32 s24, s57, 9216
        v_add_u32 v{DA+6}, s24, v3
        v_add_u32 v{DA+7}, s24, v6
        v_add_u32 v{DA+8}, s24, v7
        v_add_u32 v{DA+9}, s24, v8
        s_add_u32 s68, s39, s36
        s_add_u32 s69, s39, s31""".split("\n"):
            q(s_.strip())
        return L
    def d_dma_ops(c):
        st = (c + 1) % 4
        def opt():
            lab = A.newlabel("kc_skip")
            e("s_cmp_ge_u32 s28, 4")
            e(f"s_cbranch_scc1 {lab}")
            e(f"s_add_u32 m0, s31, {st*KC_STAGE}")
            e(f"s_add_u32 s38, s69, {c*KC_STAGE}")
            e(f"buffer_load_dwordx4 v3, s[20:23], s38 offen sc1 lds")
            A.label(lab)
        ops = [opt, lambda: e(f"s_add_u32 m0, s36, {st*KC_STAGE}"), lambda: e(f"s_add_u32 s38, s68, {c*KC_STAGE}")]
        for i in range(4):
            def ld(i=i):
                e(f"buffer_load_dwordx4 v3, s[20:23], s38 offen offset:{1024*i} sc1 lds")
                vm.issue(("DW", c))
            ops.append(ld)
        return [("DW", c, op) for op in ops]
    def d_h_ops(sx):
        c, hlf = divmod(sx, 2)
        sr = [40, 70, 65, 66][sx % 4]
        ops = [lambda: e(f"s_add_u32 s{sr}, s41, {(72*hlf + 2*c)*32768:#x}")]
        for tt in range(2):
            def ld(tt=tt):
                e(f"buffer_load_dwordx4 {v(DH+8*(sx%DNH)+4*tt,4)}, v{DA+5}, s[16:19], s{sr} offen offset:{256*tt} sc1")
                vm.issue(("H", sx))
            ops.append(ld)
        return [("H", sx, op) for op in ops]
    FV, FX = 12, 13
    def flag_addr_ops():
        L = []
        q = lambda s_: L.append(lambda: e(s_))
        for s_ in f"""v_and_b32 v4, 7, v2
        v_bfe_u32 v5, v2, 3, 2
        v_lshlrev_b32 v5, 5, v5
        v_add_u32 v4, v4, v5
        v_lshlrev_b32 v4, 2, v4
        v_add_u32 v4, s71, v4
        v_and_b32 v5, 15, v2
        v_lshlrev_b32 v5, 2, v5
        v_add_u32 v5, s32, v5
        v_cmp_gt_u32 vcc, 32, v2
        s_nop 1
        v_cndmask_b32 v{FV}, v5, v4, vcc
        s_lshl_b32 s24, s54, 6
        s_lshl_b32 s25, s53, 2
        s_add_u32 s24, s24, s25
        s_add_u32 s24, s24, {FLAG_OFF+8192}
        v_and_b32 v4, 3, v2
        v_lshlrev_b32 v4, 8, v4
        v_add_u32 v4, s24, v4
        v_cmp_gt_u32 vcc, 48, v2
        s_nop 1
        v_cndmask_b32 v{FV}, v4, v{FV}, vcc""".split("\n"):
            q(s_.strip())
        return L
    mark = [0]
    def flag_ld():
        lab = A.newlabel("kc_fl")
        e("s_cmp_lg_u32 s28, 0")
        e(f"s_cbranch_scc1 {lab}")
        e(f"buffer_load_dword v{FX}, v{FV}, s[60:63], 0 offen sc1")
        A.label(lab)
        mark[0] = vm.total
    spins = []
    def flag_chk(level):
        ok, sp = A.newlabel("kc_fok"), A.newlabel("kc_spin")
        e("s_cmp_lg_u32 s28, 0")
        e(f"s_cbranch_scc1 {ok}")
        e(f"s_waitcnt vmcnt({min(vm.total - mark[0], 63)})")
        e(f"v_cmp_gt_u32 vcc, {level}, v{FX}")
        e("s_nop 1")
        e(f"s_cbranch_vccnz {sp}")
        A.label(ok)
        spins.append((ok, sp, level))
    def emit_spins():
        for ok, sp, level in spins:
            A.label(sp)
            e("s_mov_b32 s67, 0")
            lp = A.newlabel("kc_sl")
            A.label(lp)
            e(f"""
            buffer_load_dword v{FX}, v{FV}, s[60:63], 0 offen sc1
            s_add_u32 s67, s67, 1
            s_waitcnt vmcnt(0)
            v_cmp_gt_u32 vcc, {level}, v{FX}
            s_cmp_ge_u32 s67, 0x8000
            s_cbranch_scc1 {ok}
            s_cbranch_vccnz {lp}
            s_branch {ok}
            """)
    def cs_ld_ops(grp):
        L = []
        dst = [CS, CS + 4, T] if grp == 0 else [CS + 4, T, T + 4]
        for i in range(3):
            def ld(i=i):
                e(f"buffer_load_dwordx4 {v(dst[i],4)}, v13, s[20:23], s55 offen")
                e(f"s_add_u32 s55, s55, {2*F*4}")
                vm.issue(("cs", grp))
            L.append(ld)
        return L
    def cs_add_ops(grp):
        L = [lambda: vm.need(("cs", grp))]
        for sr in ([CS + 4, T] if grp == 0 else [CS + 4, T, T + 4]):
            for r in range(4): L.append(lambda r=r, sr=sr: e(f"v_add_f32 v{CS+r}, v{CS+r}, v{sr+r}"))
        if grp == 1:
            def w():
                e(f"ds_write_b128 v11, {v(CS,4)}"); lg.issue("csw"); issued.add("csw")
            L.append(w)
        return L
    ST.stamp()
    if int(os.environ.get("KC_PRIO", "0")):
        lab = A.newlabel("kc_prio")
        e("s_cmp_lt_u32 s28, 4")
        e(f"s_cbranch_scc1 {lab}")
        e("s_setprio 1")
        A.label(lab)
    vm.need(("W", 0))
    e("s_barrier")
    ST.stamp()
    NF = 324
    AHEAD = NW - 1
    KC_D1 = int(os.environ.get("KC_D1", "1"))
    mem = dma_ops(1) + ([] if KC_D1 else dma_ops(2))
    val = [lambda: None] * 16 + pub_ops()
    nr = 0
    F1 = 36 * NP1
    def flush(kind, idx):
        while any(p[0] == kind and p[1] <= idx for p in mem):
            mem.pop(0)[2]()
    def next_read():
        nonlocal nr, mem
        if nr >= NF: return
        if nr % 36 == 0 and nr > 0:
            c = nr // 36
            lg.drain()
            flush("W", c)
            vm.need(("W", c))
            if FUSE and c == 6:
                assert ("pks", 2) in issued
                vm.need(("pks", 2))
            if FUSE and c >= 6: vm.need(("st", c - 3))
            if FUSE and c == 8: flag_chk(4)
            e("s_barrier")
            ST.stamp()
            if c == NP1 - 1: assert "csw" in issued
            if KC_D1 and c <= NP1: mem += dma_ops(c + 1)
            if c + 2 < 9 and (not KC_D1 or c >= NP1): mem += dma_ops(c + 2)
            if not FUSE:
                if c == 7: mem += wd_dma_ops()
            else:
                if c >= 6: publish(retired_level())
                if c == 6:
                    lab = A.newlabel("kc_pkf")
                    e("s_cmp_lg_u32 s28, 0")
                    e(f"s_cbranch_scc1 {lab}")
                    e("v_mov_b32 v4, 15")
                    e("s_mov_b64 exec, 1")
                    e("buffer_store_dword v4, v5, s[60:63], s33 offen sc1")
                    e("s_mov_b64 exec, -1")
                    A.label(lab)
        wread(nr); nr += 1
    for _ in range(AHEAD): next_read()
    xq = []
    for sx in range(NX0, NXP): xq += x_ops(sx)
    for f in range(NF):
        s_, j, m = finfo(f)
        if f < F1 and f % (2 * NP1) == 0:
            while any(p[1] <= s_ for p in xq): xq.pop(0)[2]()
            vm.need(("X", s_))
            if s_ + NXP < 18: xq += x_ops(s_ + NXP)
            if s_ == 1: val += cs_ld_ops(0)
            if s_ == 7: val += cs_add_ops(0) + cs_ld_ops(1)
            if s_ == 10: val += cs_add_ops(1)
            if s_ == 11: val += (d_salu_ops() + pk_touch_ops()) if FUSE else wd_setup_ops()
            if s_ == 14: val += statld_ops()
            if s_ == 17: val += [lambda: cs_rd(0)] + statfin_ops()
        if f == F1:
            if NP1 == 3:
                while val: val.pop(0)()
                e("s_nop 3")
                for op in epi_ops(0): op()
                val += epi_ops(1) + epi_ops(2)
            else:
                val += [lambda: None] * 4 + epi_ops(0) + epi_ops(1)
        if f > F1 and f % 36 == 2 and f // 36 > NP1:
            ep = epi_ops(f // 36 - 1)
            if f // 36 == 8 and not FUSE:
                wp = wd_pack_ops()
                ep = ep[:60] + wp[:5] + ep[60:] + wp[17:]
            val += ep
        if FUSE and f in (F1 + 30, F1 + 56, F1 + 82):
            rd_, st_2 = pk_rd_ops((f - F1 - 30) // 26)
            val = rd_ + val[:8] + st_2 + val[8:]
        if FUSE and f == 216 + 4: val = flag_addr_ops() + val
        if FUSE and f == 252 + 8: val = [flag_ld] + val
        if FUSE and f == F1 + 2:
            val = pk_addr_ops() + [lambda: mem.extend(pk_dma_ops(0))] + (prefill_ops() if SENT else []) + val
        if f >= 108 and f % 36 == 0:
            need = ("st", f // 36 - 3)
            while need not in issued:
                val.pop(0)()
        if FUSE and f == 288 + 4:
            dv = d_valu_ops()
            val = dv + [lambda: xq.extend(d_dma_ops(0) + (d_dma_ops(1) if PF8 >= 2 else []))] + val
        if FUSE and f == 288 + 17:
            for sx in range(2 * PF8): xq.extend(d_h_ops(sx))
        if f % 2 == 0: lg.need(("w", f + 1))
        for tt in range(2):
            c_ = v(ACC + 16 * (j % 3) + 8 * m + 4 * tt, 4)
            src_c = "0" if s_ == 0 else c_
            e(f"v_mfma_f32_16x16x32_bf16 {c_}, {v(WR+4*(f%NW),4)}, {v(XR+8*s_+4*tt,4)}, {src_c}")
            if tt == 0: next_read()
            if tt == 1 or f < 12 or (FUSE and f >= 288):
                if xq: xq.pop(0)[2]()
                elif mem: mem.pop(0)[2]()
            if f < F1: nv = 2
            else:
                rem = (36 - f % 36) * 2 - tt
                nv = min(-(-len(val) // max(rem - 6, 1)), 3 if f < F1 + 72 else 99)
                if f < F1 + 72: nv = min(nv, 2)
                if FUSE and 288 + 4 <= f < 288 + 9: nv = 3
            for _ in range(nv):
                if val: val.pop(0)()
    ST.mute = False
    ST.stamp()
    while val: val.pop(0)()
    if not FUSE:
        e("s_nop 7")
        for op in epi_ops(8): op()
        assert not mem
        ST.stamp()
        if ST.on: e("s_waitcnt vmcnt(0)")
        ST.stamp(); ST.real(1)
        ST.dump(8)
        A.label("kc_done")
        e("s_endpgm")
        slowstat()
        A.kernel_end(name, 256, 102 if ST.on else 72)
        return
    while xq: xq.pop(0)[2]()
    while mem: mem.pop(0)[2]()
    flag_ld()
    for op in epi_ops(8): op()
    val = []
    pend = []
    for c_ in range(PF8, 3):
        if c_ >= 2 or c_ >= PF8: pend += d_dma_ops(c_)
        pend += d_h_ops(2 * c_) + d_h_ops(2 * c_ + 1)
    if PF8 == 3: pend = d_dma_ops(2)
    DNF = 18 * 9
    DHOLD = int(os.environ.get("DHOLD", "10"))
    DAH = 6
    nh = 0
    def dflush(kind, idx):
        while any(p[0] == kind and p[1] <= idx for p in pend):
            pend.pop(0)[2]()
    def d_read(h):
        f, hf = divmod(h, 2)
        st_, j = divmod(f, 9)
        c, ks = divmod(st_, 2)
        r = DWR + 4 * (f % DNW)
        if hf: return
        e(f"ds_read_b128 {v(r,4)}, v{DA+6+(c+1)%4} offset:{18432*ks + 1024*j}")
        lg.issue(("dw", f))
    def d_next_read():
        nonlocal nh, pend
        if nh >= 2 * DNF: return
        if nh % 36 == 0:
            c = nh // 36
            lg.drain()
            dflush("DW", c)
            vm.need(("DW", c))
            if c in (1, 4): flag_chk({1: 6, 4: 9}[c])
            e("s_barrier")
            if c == 4: pend = defer + pend
            if STAMP == "kd2": ST2.stamp()
            if c + 3 < 9: pend += d_dma_ops(c + 3)

        d_read(nh); nh += 1
    defer = []
    ST2 = ST
    for _ in range(2 * DAH): d_next_read()
    for f in range(DNF):
        st_, j = divmod(f, 9)
        if j == 0:
            dflush("H", st_)
            vm.need(("H", st_))
        if f == 44: flag_ld()
        if f % 2 == 0:
            lg.need(("dw", min(f + 1, DNF - 1)))
        for tt in range(2):
            c_ = v(DACC + 36 * tt + 4 * j, 4)
            src_c = "0" if st_ == 0 else c_
            e(f"v_mfma_f32_16x16x32_bf16 {c_}, {v(DWR+4*(f%DNW),4)}, {v(DH+8*(st_%DNH)+4*tt,4)}, {src_c}")
            d_next_read()
            if f == DHOLD and tt == 0:
                vm.drain()
                publish(9)
            if pend and f >= DHOLD and (tt == 1 or f < 40): pend.pop(0)[2]()
            if f >= 2:
                for _ in range(3):
                    if val: val.pop(0)()
        if j == 8 and st_ + DNH < 18:
            nx = st_ + DNH
            if nx == 12:
                defer.extend(d_h_ops(nx)); continue

            pend = d_h_ops(nx) + pend
    assert not pend and not val
    ST.n = 12
    ST.stamp()
    emit_d_tail(A, DACC, 60, 53, 54, 52, 56, 57, base=2 * KC_STAGE)
    if FUSE_E and SENT:
        e(f"""
        s_cmp_ge_u32 s28, 5
        s_cbranch_scc1 kc_fin
        s_load_dwordx2 s[4:5], s[0:1], {KA_OUT}
        v_lshlrev_b32 v20, 4, v0
        v_lshrrev_b32 v4, 5, v0
        v_and_b32 v5, 31, v0
        s_lshl_b32 s33, s53, 7
        s_lshl_b32 s34, s52, 5
        s_add_u32 s33, s33, s34
        v_add_u32 v5, s33, v5
        s_mul_i32 s34, s54, 18
        v_add_u32 v4, s34, v4
        v_lshlrev_b32 v21, 15, v4
        v_lshl_add_u32 v21, v5, 4, v21
        s_movk_i32 s35, 1152
        v_mul_lo_u32 v22, v5, s35
        v_lshl_add_u32 v22, v4, 4, v22
        v_cmp_gt_u32 vcc, 288, v0
        s_and_saveexec_b64 s[58:59], vcc
        s_mov_b32 s34, {9*32768}
        buffer_load_dwordx4 v[28:31], v21, s[12:15], 0 offen
        buffer_load_dwordx4 v[32:35], v21, s[12:15], s34 offen
        s_add_u32 s47, s42, s52
        s_mul_i32 s47, s47, {4*9216}
        s_mov_b32 s6, {S*D*2:#x}
        s_mov_b32 s40, 0xffff0000
        s_mov_b32 s67, 0
        s_waitcnt vmcnt({SENTW})
        """)
        A.label("kc_poll")
        e("s_mov_b32 s46, s47")
        for sr in range(4):
            e(f"buffer_load_dwordx4 {v(40+8*sr,4)}, v20, s[60:63], s46 offen sc1")
            e(f"s_add_u32 s34, s46, {288*16}")
            e(f"buffer_load_dwordx4 {v(44+8*sr,4)}, v20, s[60:63], s34 offen sc1")
            e(f"s_add_u32 s46, s46, 9216")
        e("s_add_u32 s67, s67, 1")
        for k_ in range(8):
            e(f"s_waitcnt vmcnt({7-k_})")
            b = 40 + 4 * k_
            if k_ == 0:
                e(f"v_max_u32 v26, v{b}, v{b+1}")
                e(f"v_max3_u32 v26, v26, v{b+2}, v{b+3}")
            else:
                e(f"v_max3_u32 v26, v26, v{b}, v{b+1}")
                e(f"v_max3_u32 v26, v26, v{b+2}, v{b+3}")
        e("""
        v_cmp_eq_u32 vcc, -1, v26
        s_cmp_ge_u32 s67, 0x4000
        s_cbranch_scc1 kc_go
        s_cbranch_vccnz kc_poll
        """)
        A.label("kc_go")
        for it in range(2):
            for d in range(4):
                e(f"v_lshlrev_b32 v{104+8*it+2*d}, 16, v{28+4*it+d}")
                e(f"v_and_b32 v{105+8*it+2*d}, s40, v{28+4*it+d}")
        for sr in range(4):
            for it in range(2):
                for d in range(4):
                    r = 40 + 8 * sr + 4 * it + d
                    e(f"v_lshlrev_b32 v120, 16, v{r}")
                    e(f"v_and_b32 v121, s40, v{r}")
                    e(f"v_pk_add_f32 {v(104+8*it+2*d,2)}, {v(104+8*it+2*d,2)}, v[120:121]")
        for it in range(2):
            for d in range(4):
                e(f"v_cvt_pk_bf16_f32 v{28+4*it+d}, v{104+8*it+2*d}, v{105+8*it+2*d}")
        e("s_waitcnt lgkmcnt(0)")
        e("buffer_store_dwordx4 v[28:31], v22, s[4:7], 0 offen")
        e("buffer_store_dwordx4 v[32:35], v22, s[4:7], 0 offen offset:144")
        e("s_mov_b64 exec, s[58:59]")
        A.label("kc_fin")
    elif FUSE_E:
        F2 = FLAG_OFF + 8192 + 1024
        e(f"""
        s_load_dwordx2 s[4:5], s[0:1], {KA_OUT}
        v_lshlrev_b32 v20, 4, v0
        v_lshrrev_b32 v4, 5, v0
        v_and_b32 v5, 31, v0
        s_lshl_b32 s33, s53, 7
        s_lshl_b32 s34, s52, 5
        s_add_u32 s33, s33, s34
        v_add_u32 v5, s33, v5
        s_mul_i32 s34, s54, 18
        v_add_u32 v4, s34, v4
        v_lshlrev_b32 v21, 15, v4
        v_lshl_add_u32 v21, v5, 4, v21
        s_movk_i32 s35, 1152
        v_mul_lo_u32 v22, v5, s35
        v_lshl_add_u32 v22, v4, 4, v22
        s_add_u32 s45, s42, s56
        s_lshl_b32 s45, s45, 7
        s_lshl_b32 s33, s52, 3
        s_add_u32 s45, s45, s33
        s_lshl_b32 s33, s57, 2
        s_add_u32 s45, s45, s33
        s_add_u32 s45, s45, {F2}
        v_mov_b32 v23, 1
        v_mov_b32 v24, 0
        s_add_u32 s46, s42, s52
        s_lshl_b32 s47, s46, 7
        s_add_u32 s47, s47, {F2}
        s_mul_i32 s46, s46, {4*9216}
        v_and_b32 v25, 7, v2
        v_lshlrev_b32 v25, 2, v25
        s_mov_b32 s34, {9*32768}
        s_waitcnt vmcnt(0) lgkmcnt(0)
        s_mov_b64 exec, 1
        buffer_store_dword v23, v24, s[60:63], s45 offen sc1
        s_mov_b64 exec, -1
        s_mov_b32 s6, {S*D*2:#x}
        s_cmp_ge_u32 s28, 5
        s_cbranch_scc1 kc_fin
        buffer_load_dwordx4 v[28:31], v21, s[12:15], 0 offen
        buffer_load_dwordx4 v[32:35], v21, s[12:15], s34 offen
        s_cmp_lg_u32 s28, 0
        s_cbranch_scc1 kc_go
        s_mov_b32 s67, 0
        """)
        A.label("kc_poll")
        e(f"""
        buffer_load_dword v26, v25, s[60:63], s47 offen sc1
        s_add_u32 s67, s67, 1
        s_waitcnt vmcnt(0)
        v_cmp_ne_u32 vcc, 1, v26
        s_cmp_ge_u32 s67, 0x8000
        s_cbranch_scc1 kc_go
        s_cbranch_vccnz kc_poll
        """)
        A.label("kc_go")
        e("""
        s_barrier
        v_cmp_gt_u32 vcc, 288, v0
        s_and_saveexec_b64 s[58:59], vcc
        """)
        for sr in range(4):
            e(f"buffer_load_dwordx4 {v(40+8*sr,4)}, v20, s[60:63], s46 offen sc1")
            e(f"s_add_u32 s34, s46, {288*16}")
            e(f"buffer_load_dwordx4 {v(44+8*sr,4)}, v20, s[60:63], s34 offen sc1")
            e(f"s_add_u32 s46, s46, 9216")
        e("s_mov_b32 s40, 0xffff0000")
        e("s_waitcnt vmcnt(8)")
        for it in range(2):
            for d in range(4):
                e(f"v_lshlrev_b32 v{104+8*it+2*d}, 16, v{28+4*it+d}")
                e(f"v_and_b32 v{105+8*it+2*d}, s40, v{28+4*it+d}")
        for sr in range(4):
            e(f"s_waitcnt vmcnt({6-2*sr})")
            for it in range(2):
                for d in range(4):
                    r = 40 + 8 * sr + 4 * it + d
                    e(f"v_lshlrev_b32 v120, 16, v{r}")
                    e(f"v_and_b32 v121, s40, v{r}")
                    e(f"v_pk_add_f32 {v(104+8*it+2*d,2)}, {v(104+8*it+2*d,2)}, v[120:121]")
        for it in range(2):
            for d in range(4):
                e(f"v_cvt_pk_bf16_f32 v{28+4*it+d}, v{104+8*it+2*d}, v{105+8*it+2*d}")
        e("buffer_store_dwordx4 v[28:31], v22, s[4:7], 0 offen")
        e("buffer_store_dwordx4 v[32:35], v22, s[4:7], 0 offen offset:144")
        e("s_mov_b64 exec, s[58:59]")
        A.label("kc_fin")
    if ST.on: e("s_waitcnt vmcnt(0)")
    ST.stamp(); ST.real(1)
    ST.dump(8)
    A.label("kc_done")
    e("s_endpgm")
    slowstat()
    emit_spins()
    A.kernel_end(name, 256, 102 if ST.on else 72)

KD_STAGE = 36864
FLAG_OFF = 4 * S * D * 2
def k_d(A):
    name = "kd_kernel"
    A.launch(name, 256, 512, 4 * KD_STAGE)
    A.kernel_begin(name)
    e = A.e
    ACC = 184
    WR = 136
    NW = 12
    HR = 40
    NH = int(os.environ.get("KD_NH", "6"))
    DW = int(os.environ.get("KD_DW", "3"))
    XP = os.environ.get("XP", "")
    ST = Stamps(A, STAMP == "kd")
    ST.stamp(); ST.real(0)
    e(f"""
    s_cmp_ge_u32 s2, 256
    s_cbranch_scc1 kd_done
    s_load_dwordx4 s[4:7], s[0:1], {KA_WD}
    s_load_dwordx2 s[26:27], s[0:1], {KA_WS}
    v_lshrrev_b32 v1, 6, v0
    v_and_b32 v2, 63, v0
    s_nop 0
    v_readfirstlane_b32 s28, v1
    s_nop 3
    s_and_b32 s29, s2, 7
    s_lshr_b32 s30, s2, 3
    s_lshr_b32 s31, s29, 1
    s_and_b32 s29, s29, 1
    s_lshl_b32 s29, s29, 3
    s_lshr_b32 s32, s30, 2
    s_add_u32 s29, s29, s32
    s_and_b32 s30, s30, 3
    s_and_b32 s56, s28, 3
    s_lshr_b32 s57, s28, 2
    """)
    e(f"""
    s_lshl_b32 s33, s29, 7
    s_lshl_b32 s34, s56, 5
    s_add_u32 s33, s33, s34
    v_and_b32 v4, 15, v2
    v_add_u32 v4, s33, v4
    v_lshrrev_b32 v5, 4, v2
    v_lshlrev_b32 v5, 15, v5
    v_lshl_add_u32 v9, v4, 4, v5
    """)
    e(f"""
    v_lshlrev_b32 v3, 4, v2
    s_mul_i32 s33, s57, 9216
    v_add_u32 v16, s33, v3
    v_add_u32 v17, {KD_STAGE}, v16
    v_add_u32 v18, {2*KD_STAGE}, v16
    v_add_u32 v19, {3*KD_STAGE}, v16
    """)
    e("s_waitcnt lgkmcnt(0)")
    A.srd_off(8, 26, 27, WS_WDP, F * D * 2)
    A.srd_off(12, 26, 27, WS_HH, S * F * 2)
    A.srd_off(16, 26, 27, WS_PART, FLAG_OFF + 8192)
    A.srd_off(20, 26, 27, WS_H, S * D * 2)
    A.srd(48, 6, 7, S * D * 2)
    e(f"""
    s_lshl_b32 s36, s28, 12
    s_lshl_b32 s33, s31, 2
    s_add_u32 s33, s33, s30
    s_mul_i32 s33, s33, {36*9216}
    s_add_u32 s37, s33, s36
    s_lshl_b32 s25, s28, 10
    s_add_u32 s25, s25, 32768
    s_add_u32 s35, s33, s25
    s_mul_i32 s41, s31, {144*32768}
    s_lshl_b32 s33, s57, 17
    s_add_u32 s41, s41, s33
    """)
    vm = Cnt(A, "vmcnt", 63)
    lg = Cnt(A, "lgkmcnt", 15)
    def dma_ops(c):
        st = c % 4
        def opt():
            lab = A.newlabel("kd_skip")
            e("s_cmp_ge_u32 s28, 4")
            e(f"s_cbranch_scc1 {lab}")
            e(f"s_add_u32 m0, s25, {st*KD_STAGE}")
            e(f"s_add_u32 s38, s35, {c*KD_STAGE}")
            e(f"buffer_load_dwordx4 v3, s[8:11], s38 offen lds")
            A.label(lab)
        ops = [opt, lambda: e(f"s_add_u32 m0, s36, {st*KD_STAGE}"), lambda: e(f"s_add_u32 s38, s37, {c*KD_STAGE}")]
        for i in range(4):
            def ld(i=i):
                e(f"buffer_load_dwordx4 v3, s[8:11], s38 offen offset:{1024*i} lds")
                vm.issue(("W", c))
            ops.append(ld)
        return [("W", c, op) for op in ops]
    def h_ops(sx):
        sr = [40, 58, 59, 24][sx % 4]
        ops = [lambda: e(f"s_add_u32 s{sr}, s41, {sx*8*32768:#x}")]
        for tt in range(2):
            def ld(tt=tt):
                e(f"buffer_load_dwordx4 {v(HR+8*(sx%NH)+4*tt,4)}, v9, s[12:15], s{sr} offen offset:{256*tt}")
                vm.issue(("H", sx))
            ops.append(ld)
        return [("H", sx, op) for op in ops]
    def run_ops(ops):
        for op in ops:
            op[2]()
    def wread_half(h):
        f, hf = divmod(h, 2)
        st_, j = divmod(f, 9)
        c, ks = divmod(st_, 2)
        base = 16 + c % 4
        r = WR + 4 * (f % NW)
        if hf: return
        e(f"ds_read_b128 {v(r,4)}, v{base} offset:{18432*ks + 1024*j}")
        lg.issue(("w", f))
    PRO = KD_PRO
    for c in range(PRO):
        run_ops(dma_ops(c))
        for sx in range(2 * c, min(2 * c + 2, NH)): run_ops(h_ops(sx))
    ST.stamp()
    vm.need(("W", 0))
    e("s_barrier")
    ST.stamp()
    NF = 18 * 9
    AHEAD = 6
    GRP = int(os.environ.get("GRP", "2"))
    pend = []
    for c in range(PRO, max(DW + 1, (NH + 1) // 2)):
        if c <= DW and c < 4: pend += dma_ops(c)
        for sx in range(2 * c, min(2 * c + 2, NH)): pend += h_ops(sx)
    nh = 0
    def flush(kind, idx):
        while any(p[0] == kind and p[1] <= idx for p in pend):
            run_ops([pend.pop(0)])
    def next_read():
        nonlocal nh, pend
        if nh >= 2 * NF: return
        if nh % 36 == 0 and nh > 0:
            c = nh // 36
            lg.drain()
            flush("W", c)
            vm.need(("W", c))
            e("s_barrier")
            ST.stamp()
            if c + DW < 9:
                pend += dma_ops(c + DW)
        wread_half(nh); nh += 1
    for _ in range(2 * AHEAD): next_read()
    for f in range(NF):
        st_, j = divmod(f, 9)
        if j == 0:
            flush("H", st_)
            vm.need(("H", st_))
        if f % GRP == 0:
            lg.need(("w", min(f + GRP - 1, NF - 1)))
        for tt in range(2):
            c_ = v(ACC + 36 * tt + 4 * j, 4)
            src_c = "0" if st_ == 0 else c_
            e(f"v_mfma_f32_16x16x32_bf16 {c_}, {v(WR+4*(f%NW),4)}, {v(HR+8*(st_%NH)+4*tt,4)}, {src_c}")
            next_read()
            if pend and tt == 1:
                pend.pop(0)[2]()
        if j == 8 and st_ + NH < 18:
            pend = h_ops(st_ + NH) + pend
    assert not pend
    ST.stamp()
    e(f"""
    s_mul_i32 s33, s28, 9216
    v_lshlrev_b32 v3, 4, v2
    v_add_u32 v4, s33, v3
    s_xor_b32 s34, s28, 4
    s_mul_i32 s34, s34, 9216
    v_add_u32 v5, s34, v3
    s_barrier
    s_cmp_eq_u32 s57, 0
    s_cbranch_scc1 kd_h0
    """)
    for j in range(9):
        e(f"ds_write_b128 v4, {v(ACC+4*j,4)} offset:{1024*j}")
    for j in range(9):
        for r in range(4):
            e(f"v_mov_b32 v{ACC+4*j+r}, v{ACC+36+4*j+r}")
    e("s_branch kd_hj")
    A.label("kd_h0")
    for j in range(9):
        e(f"ds_write_b128 v4, {v(ACC+36+4*j,4)} offset:{1024*j}")
    A.label("kd_hj")
    e("s_waitcnt lgkmcnt(0)")
    e("s_barrier")
    for j in range(9):
        e(f"ds_read_b128 {v(40+4*j,4)}, v5 offset:{1024*j}")
    e(f"""
    s_lshl_b32 s42, s29, 2
    s_add_u32 s42, s42, s30
    s_lshl_b32 s42, s42, 2
    s_add_u32 s43, s42, s56
    s_lshl_b32 s43, s43, 2
    s_add_u32 s43, s43, s31
    s_mul_i32 s44, s43, 9216
    s_lshl_b32 s33, s57, 8
    s_add_u32 s44, s44, s33
    v_and_b32 v6, 15, v2
    v_lshlrev_b32 v6, 4, v6
    v_bfe_u32 v7, v2, 4, 1
    v_lshl_add_u32 v8, v7, 10, v6
    v_lshrrev_b32 v24, 5, v2
    v_lshl_add_u32 v8, v24, 9, v8
    v_lshl_add_u32 v6, v24, 9, v6
    v_lshl_add_u32 v6, v7, 3, v6
    s_add_u32 s45, s44, 4096
    s_add_u32 s46, s44, 8192
    """)
    for j in range(9):
        e(f"s_waitcnt lgkmcnt({8-j})")
        e(f"v_pk_add_f32 {v(ACC+4*j,2)}, {v(ACC+4*j,2)}, {v(40+4*j,2)}")
        e(f"v_pk_add_f32 {v(ACC+4*j+2,2)}, {v(ACC+4*j+2,2)}, {v(40+4*j+2,2)}")
        O = 80 + 2 * j
        e(f"v_cvt_pk_bf16_f32 v{O}, v{ACC+4*j}, v{ACC+4*j+1}")
        e(f"v_cvt_pk_bf16_f32 v{O+1}, v{ACC+4*j+2}, v{ACC+4*j+3}")
        if j >= 2 and j % 2 == 0:
            jp = j // 2 - 1
            P_ = 80 + 4 * jp
            e(f"v_permlane16_swap_b32 v{P_}, v{P_+2}")
            e(f"v_permlane16_swap_b32 v{P_+1}, v{P_+3}")
            e(f"buffer_store_dwordx4 {v(P_,4)}, v8, s[16:19], s{44+jp//2} offen offset:{2048*(jp%2)} sc1")
    e(f"buffer_store_dwordx2 v[96:97], v6, s[16:19], s46 offen sc1")
    if KD_SEP:
        ST.stamp()
        if ST.on: e("s_waitcnt vmcnt(0)")
        ST.stamp(); ST.real(1)
        ST.dump(8)
        A.label("kd_done")
        e("s_endpgm")
        A.kernel_end(name, 256, 102 if ST.on else 60)
        return
    e(f"""
    v_lshlrev_b32 v20, 4, v0
    v_lshrrev_b32 v4, 5, v0
    v_and_b32 v5, 31, v0
    s_lshl_b32 s33, s29, 7
    s_lshl_b32 s34, s31, 5
    s_add_u32 s33, s33, s34
    v_add_u32 v5, s33, v5
    s_mul_i32 s34, s30, 18
    v_add_u32 v4, s34, v4
    v_lshlrev_b32 v21, 15, v4
    v_lshl_add_u32 v21, v5, 4, v21
    s_movk_i32 s35, 1152
    v_mul_lo_u32 v22, v5, s35
    v_lshl_add_u32 v22, v4, 4, v22
    s_lshl_b32 s45, s43, 1
    s_add_u32 s45, s45, s57
    s_lshl_b32 s45, s45, 2
    s_add_u32 s45, s45, {FLAG_OFF}
    v_mov_b32 v23, 1
    v_mov_b32 v24, 0
    s_add_u32 s46, s42, s31
    s_lshl_b32 s47, s46, 5
    s_add_u32 s47, s47, {FLAG_OFF}
    s_mul_i32 s46, s46, {4*9216}
    v_and_b32 v25, 7, v2
    v_lshlrev_b32 v25, 2, v25
    s_waitcnt vmcnt(0)
    v_cmp_eq_u32 vcc, 0, v2
    s_and_saveexec_b64 s[52:53], vcc
    buffer_store_dword v23, v24, s[16:19], s45 offen sc1
    s_mov_b64 exec, s[52:53]
    """)
    ST.stamp()
    e(f"""
    s_cmp_ge_u32 s28, 5
    s_cbranch_scc1 kd_fin
    v_cmp_gt_u32 vcc, 288, v0
    s_and_saveexec_b64 s[52:53], vcc
    s_mov_b32 s54, {9*32768}
    buffer_load_dwordx4 v[28:31], v21, s[20:23], 0 offen
    buffer_load_dwordx4 v[32:35], v21, s[20:23], s54 offen
    s_mov_b32 s55, 0
    """)
    A.label("kd_poll")
    e(f"""
    buffer_load_dword v26, v25, s[16:19], s47 offen sc1
    s_add_u32 s55, s55, 1
    s_waitcnt vmcnt(0)
    v_cmp_ne_u32 vcc, 1, v26
    s_cmp_ge_u32 s55, 0x40000
    s_cbranch_scc1 kd_go
    s_cbranch_vccnz kd_poll
    """)
    A.label("kd_go")
    for sr in range(4):
        e(f"buffer_load_dwordx4 {v(40+8*sr,4)}, v20, s[16:19], s46 offen sc1")
        e(f"s_add_u32 s54, s46, {288*16}")
        e(f"buffer_load_dwordx4 {v(44+8*sr,4)}, v20, s[16:19], s54 offen sc1")
        e(f"s_add_u32 s46, s46, 9216")
    e("s_mov_b32 s40, 0xffff0000")
    for it in range(2):
        for d in range(4):
            e(f"v_lshlrev_b32 v{104+8*it+2*d}, 16, v{28+4*it+d}")
            e(f"v_and_b32 v{105+8*it+2*d}, s40, v{28+4*it+d}")
    for sr in range(4):
        e(f"s_waitcnt vmcnt({6-2*sr})")
        for it in range(2):
            for d in range(4):
                r = 40 + 8 * sr + 4 * it + d
                e(f"v_lshlrev_b32 v120, 16, v{r}")
                e(f"v_and_b32 v121, s40, v{r}")
                e(f"v_pk_add_f32 {v(104+8*it+2*d,2)}, {v(104+8*it+2*d,2)}, v[120:121]")
    for it in range(2):
        for d in range(4):
            e(f"v_cvt_pk_bf16_f32 v{28+4*it+d}, v{104+8*it+2*d}, v{105+8*it+2*d}")
    e("buffer_store_dwordx4 v[28:31], v22, s[48:51], 0 offen")
    e("buffer_store_dwordx4 v[32:35], v22, s[48:51], 0 offen offset:144")
    e("s_mov_b64 exec, s[52:53]")
    A.label("kd_fin")
    if ST.on: e("s_waitcnt vmcnt(0)")
    ST.stamp(); ST.real(1)
    ST.dump(8)
    A.label("kd_done")
    e("s_endpgm")
    A.kernel_end(name, 256, 102 if ST.on else 60)


def k_e(A):
    name = "ke_kernel"
    A.launch(name, 256, 576, 0)
    A.kernel_begin(name)
    e = A.e
    e(f"""
    s_cmp_ge_u32 s2, 256
    s_cbranch_scc1 ke_done
    s_load_dwordx2 s[6:7], s[0:1], {KA_OUT}
    s_load_dwordx2 s[26:27], s[0:1], {KA_WS}
    s_lshr_b32 s29, s2, 4
    s_bfe_u32 s30, s2, 0x20002
    s_and_b32 s31, s2, 3
    v_lshlrev_b32 v20, 4, v0
    v_lshrrev_b32 v4, 5, v0
    v_and_b32 v5, 31, v0
    s_lshl_b32 s33, s29, 7
    s_lshl_b32 s34, s31, 5
    s_add_u32 s33, s33, s34
    v_add_u32 v5, s33, v5
    s_mul_i32 s34, s30, 18
    v_add_u32 v4, s34, v4
    v_lshlrev_b32 v21, 15, v4
    v_lshl_add_u32 v21, v5, 4, v21
    s_movk_i32 s35, 1152
    v_mul_lo_u32 v22, v5, s35
    v_lshl_add_u32 v22, v4, 4, v22
    s_mul_i32 s46, s2, {4*9216}
    s_waitcnt lgkmcnt(0)
    """)
    A.srd_off(16, 26, 27, WS_PART, FLAG_OFF)
    A.srd_off(20, 26, 27, WS_H, S * D * 2)
    A.srd(8, 6, 7, S * D * 2)
    e("buffer_load_dwordx4 v[28:31], v21, s[20:23], 0 offen")
    for sr in range(4):
        e(f"buffer_load_dwordx4 {v(32+4*sr,4)}, v20, s[16:19], s46 offen")
        e(f"s_add_u32 s46, s46, 9216")
    e("s_mov_b32 s40, 0xffff0000")
    e("s_waitcnt vmcnt(4)")
    for d in range(4):
        e(f"v_lshlrev_b32 v{8+2*d}, 16, v{28+d}")
        e(f"v_and_b32 v{9+2*d}, s40, v{28+d}")
    for sr in range(4):
        e(f"s_waitcnt vmcnt({3-sr})")
        for d in range(4):
            r = 32 + 4 * sr + d
            e(f"v_lshlrev_b32 v16, 16, v{r}")
            e(f"v_and_b32 v17, s40, v{r}")
            e(f"v_pk_add_f32 {v(8+2*d,2)}, {v(8+2*d,2)}, v[16:17]")
    for d in range(4):
        e(f"v_cvt_pk_bf16_f32 v{28+d}, v{8+2*d}, v{9+2*d}")
    e("buffer_store_dwordx4 v[28:31], v22, s[8:11], 0 offen")
    A.label("ke_done")
    e("s_endpgm")
    A.kernel_end(name, 48, 48)

HEADER = open("sequential_preLN__ssm_conv_h3__glu_gated_geglu__prompt.s.ref").read().split("; Override launch")[0]

def main():
    A = Asm()
    if FUSE_AB: k_ab(A)
    else:
        k_a(A)
        k_b(A)
    k_c(A)
    if not FUSE: k_d(A)
    if KD_SEP and not (FUSE and FUSE_E): k_e(A)
    A.label("code_end")
    A.e("s_endpgm")
    out = sys.argv[1] if len(sys.argv) > 1 else "k.s"
    open(out, "w").write(A.text(HEADER))

if __name__ == "__main__":
    main()
```

```python
import re, sys
import gen as G
src = open(sys.argv[1]).read()
kz = f"""
.globl kz_kernel
.p2align 8
.type kz_kernel,@function
kz_kernel:
    s_cmp_ge_u32 s2, 1024
    s_cbranch_scc1 kz_done
    s_load_dwordx2 s[4:5], s[0:1], 96
    s_load_dwordx2 s[6:7], s[0:1], 80
    s_waitcnt lgkmcnt(0)
    s_add_u32 s4, s4, {G.WS_STAMP}
    s_addc_u32 s5, s5, 0
    s_lshl_b32 s3, s2, 8
    v_add_u32 v1, s3, v0
    global_load_ubyte v3, v1, s[4:5]
    s_waitcnt vmcnt(0)
    v_cvt_f32_u32 v3, v3
    v_lshrrev_b32 v3, 16, v3
    v_lshlrev_b32 v5, 1, v1
    global_store_short v5, v3, s[6:7]
    s_waitcnt vmcnt(0)
kz_done:
    s_endpgm
.section .rodata,"a"
.p2align 6
.amdhsa_kernel kz_kernel
  .amdhsa_next_free_vgpr 8
  .amdhsa_next_free_sgpr 16
  .amdhsa_accum_offset 8
  .amdhsa_group_segment_fixed_size 0
  .amdhsa_kernarg_size 104
  .amdhsa_user_sgpr_count 2
  .amdhsa_user_sgpr_kernarg_segment_ptr 1
  .amdhsa_system_sgpr_workgroup_id_x 1
.end_amdhsa_kernel
"""
out = src.replace('.section .rodata,"a"\n', kz.lstrip("\n"), 1)
lines = out.split("\n")
idx = max(i for i, l in enumerate(lines) if l.startswith("; @launch"))
lines.insert(idx + 1, "; @launch kernel=kz_kernel grid=(1024,1,1) block=(256,1,1) lds=0")
open(sys.argv[2], "w").write("\n".join(lines))
```

```python
import sys
from asmlib import Asm, v, a, s

S, D, F = 2048, 576, 4608
KA_X, KA_K, KA_V, KA_SK, KA_SSMK, KA_SSMD, KA_BX, KA_WG, KA_WU, KA_WD, KA_OUT, KA_DBG, KA_WS = [8 * i for i in range(13)]
import os
WS_R    = int(os.environ.get("WS_BASE_MB", "0")) << 20
WS_YQ   = WS_R + 576 * 8192
WS_XLN  = WS_YQ + S * D * 2
WS_H    = WS_XLN + S * D * 2
WS_HH   = WS_H + S * D * 2
WS_PART = WS_HH + S * F * 2
WS_XQ   = WS_XLN
WS_ST   = WS_PART + 4 * S * D * 4
WS_ST2  = WS_ST + S * 8
WS_CS   = WS_ST2 + S * 8
WS_WP   = (WS_CS + 12 * F * 4 + 4095) // 4096 * 4096
WS_WDP  = WS_WP + 2 * D * F * 2
WS_MB   = WS_WDP + D * F * 2
WS_END  = WS_MB + 144 * 128

import os
STAMP = os.environ.get("STAMP", "")
SCH = {"1": " sc1", "0": "", "nt": " nt"}[os.environ.get("SCH", "0")]
CODEPF = int(os.environ.get("CODEPF", "1"))
KC_ROT = int(os.environ.get("KC_ROT", "0"))
FUSE = int(os.environ.get("FUSE", "1"))
FUSE_E = int(os.environ.get("FUSE_E", "1"))
SENT = int(os.environ.get("SENT", "0"))
SENTW = int(os.environ.get("SENTW", "2"))
FUSE_AB = int(os.environ.get("FUSE_AB", "1"))
NP1 = int(os.environ.get("NP1", "3"))
SCP = {"1": " sc1", "0": "", "nt": " nt"}[os.environ.get("SCP", "1")]
KC_MAP = int(os.environ.get("KC_MAP", "1"))
KD_ROT = int(os.environ.get("KD_ROT", "0"))
KD_PRO = int(os.environ.get("KD_PRO", "2"))
KD_SEP = int(os.environ.get("KD_SEP", "1"))
KD_TOUCH = int(os.environ.get("KD_TOUCH", "0"))
KD_TDIST = int(os.environ.get("KD_TDIST", "5"))
WS_STAMP = WS_END + 4096
class Stamps:
    def __init__(self, A, on):
        self.A, self.on, self.n = A, on, 0
    def stamp(self):
        if not self.on or getattr(self, "mute", False): return
        assert self.n < 14
        op = "s_memrealtime" if os.environ.get("RT") else "s_memtime"
        self.A.e(f"{op} s[{72+2*self.n}:{73+2*self.n}]")
        self.n += 1
    def real(self, idx):
        if not self.on: return
        pass
    def dump(self, nwaves, wave_sgpr="s28"):
        if not self.on: return
        e = self.A.e
        e("s_waitcnt vmcnt(0) lgkmcnt(0)")
        self.A.srd_off(60, 26, 27, WS_STAMP, 1 << 20)
        e(f"s_mul_i32 s100, s2, {nwaves}")
        e(f"s_add_u32 s100, s100, {wave_sgpr}")
        e("s_lshl_b32 s100, s100, 7")
        e("v_mov_b32 v1, 0")
        for i in range(16):
            src_ = 72 + 2 * i if i < 14 else (72 if i == 14 else 98)
            e(f"v_mov_b32 v2, s{src_}")
            e(f"buffer_store_dword v2, v1, s[60:63], s100 offen offset:{4*i}")
        e("s_waitcnt vmcnt(0)")

class Cnt:
    def __init__(self, A, name, maxv):
        self.A, self.name, self.maxv = A, name, maxv
        self.q = []
        self.kind = {}
        self.total = 0
    def issue(self, tag, kind="L"):
        self.q.append(tag)
        self.kind[tag] = kind
        if kind == "L": self.total += 1
    def need(self, tag):
        if tag not in self.q:
            return
        idx = len(self.q) - 1 - self.q[::-1].index(tag)
        kd = self.kind.get(tag, "L")
        n = sum(1 for t in self.q[idx + 1:] if self.kind.get(t, "L") == kd)
        assert n <= self.maxv, (self.name, n)
        self.A.e(f"s_waitcnt {self.name}({n})")
        if n == 0: self.q = []
        else: self.q = [t for i, t in enumerate(self.q) if i > idx or self.kind.get(t, "L") != kd]
    def drain(self):
        if self.q:
            self.A.e(f"s_waitcnt {self.name}(0)")
            self.q = []

import struct, math
def fbits(x):
    return struct.unpack("<I", struct.pack("<f", x))[0]

def dpp_sum16(A, r):
    for sh in (8, 4, 2, 1):
        A.e("s_nop 1")
        A.e(f"v_add_f32_dpp v{r}, v{r}, v{r} row_ror:{sh} row_mask:0xf bank_mask:0xf")


def emit_w_packer(A, pfx, row0, nrows, fin, halves=False, ksplit=False):
    e = A.e
    nph = nrows // 96
    e(f"""
    s_load_dwordx4 s[4:7], s[0:1], {KA_WG}
    v_lshrrev_b32 v1, 6, v0
    v_and_b32 v2, 63, v0
    v_lshlrev_b32 v3, 4, v2
    v_readfirstlane_b32 s28, v1
    """)
    if halves:
        e(f"""
        v_and_b32 v0, 255, v0
        s_lshr_b32 s29, s28, 2
        s_and_b32 s28, s28, 3
        s_mul_i32 s48, s29, {nph*18432}
        """)
        if ksplit:
            e(f"s_mul_i32 s49, s29, {nph}")
        else:
            e("s_lshl_b32 s2, s2, 1")
            e("s_add_u32 s2, s2, s29")
            e("s_mov_b32 s49, 0")
    else:
        e("s_mov_b32 s48, 0")
        e("s_mov_b32 s49, 0")
    e(f"""
    s_cmp_ge_u32 s2, 48
    s_cselect_b32 s30, 1, 0
    s_mul_i32 s31, s30, 48
    s_sub_u32 s31, s2, s31
    s_movk_i32 s34, 5462
    s_movk_i32 s35, 9216
    """)
    for i in range(5):
        e(f"v_add_u32 v4, {256*i}, v0")
        e(f"v_mul_lo_u32 v5, v4, s34")
        e(f"v_lshrrev_b32 v5, 16, v5")
        e(f"v_mul_u32_u24 v6, 12, v5")
        e(f"v_sub_u32 v6, v4, v6")
        e(f"v_mul_lo_u32 v5, v5, s35")
        e(f"v_lshl_add_u32 v{10+i}, v6, 4, v5")
    e(f"""
    s_mul_i32 s32, s31, 192
    s_add_u32 s32, s32, {row0*9216}
    s_mul_i32 s33, s49, {96*9216}
    s_add_u32 s32, s32, s33
    s_lshl_b32 s33, s28, 10
    s_add_u32 s33, s33, s48
    s_waitcnt lgkmcnt(0)
    s_cmp_eq_u32 s30, 0
    s_cselect_b32 s8, s4, s6
    s_cselect_b32 s9, s5, s7
    s_mov_b32 s10, {D*F*2:#x}
    s_mov_b32 s11, 0x00020000
    """)
    A.srd_off(12, 26, 27, WS_CS, 12 * F * 4)
    A.srd_off(16, 26, 27, WS_WP, 2 * D * F * 2)
    for ph in range(nph):
        lab = A.newlabel(pfx + "_sk")
        e("s_cmp_ge_u32 s28, 2")
        e(f"s_cbranch_scc1 {lab}")
        e(f"s_add_u32 m0, s33, {18432*ph + 4096*4}")
        e("s_nop 0")
        e(f"buffer_load_dwordx4 v14, s[8:11], s32 offen lds")
        A.label(lab)
        for i in range(4):
            e(f"s_add_u32 m0, s33, {18432*ph + 4096*i}")
            e("s_nop 0")
            e(f"buffer_load_dwordx4 v{10+i}, s[8:11], s32 offen lds")
        e(f"s_add_u32 s32, s32, {96*9216}")
    e(f"""
    v_lshrrev_b32 v4, 4, v2
    v_lshlrev_b32 v4, 3, v4
    v_bfe_u32 v5, v2, 2, 2
    v_add_u32 v4, v4, v5
    v_mul_u32_u24 v4, 192, v4
    v_and_b32 v5, 3, v2
    v_lshl_add_u32 v4, v5, 3, v4
    v_add_u32 v4, s48, v4
    v_mov_b32 v7, 0x3f803f80
    v_lshlrev_b32 v9, 2, v2
    v_cmp_gt_u32 s[46:47], 16, v2
    s_mov_b32 s36, s28
    s_mov_b32 s45, 0
    """)
    for half in range((nph + 1) // 2):
        later = 4 * max(nph - 2, 0)
        e(f"s_waitcnt vmcnt({later})" if half == 0 else "s_waitcnt vmcnt(0)")
        e("s_barrier")
        lab = f"{pfx}_su{half}"
        A.label(lab)
        e(f"""
        s_mul_i32 s38, s36, 43
        s_lshr_b32 s38, s38, 8
        s_mul_i32 s37, s38, 6
        s_sub_u32 s37, s36, s37
        s_lshl_b32 s40, s37, 5
        s_mul_i32 s44, s38, 18432
        s_add_u32 s40, s40, s44
        v_add_u32 v5, s40, v4
        s_mul_i32 s39, s31, 6
        s_add_u32 s39, s39, s37
        """)
        for s_ in range(3):
            e(f"ds_read_b64_tr_b16 {v(16+4*s_,2)}, v5 offset:{32*192*s_}")
            e(f"ds_read_b64_tr_b16 {v(18+4*s_,2)}, v5 offset:{32*192*s_+4*192}")
        e(f"""
        s_mul_i32 s40, s39, 7282
        s_lshr_b32 s40, s40, 16
        s_mul_i32 s41, s40, 9
        s_sub_u32 s41, s39, s41
        s_cmp_lt_u32 s41, {NP1}
        s_cselect_b32 s42, 2, 36
        s_cselect_b32 s43, {2*NP1}, 2
        s_lshl_b32 s43, s43, 10
        s_mul_i32 s42, s42, s41
        s_mul_i32 s40, s40, 324
        s_add_u32 s42, s42, s40
        s_add_u32 s42, s42, s30
        s_lshl_b32 s42, s42, 10
        s_add_u32 s44, s38, {row0//96}
        s_add_u32 s44, s44, s49
        s_mul_i32 s40, s44, 3
        s_mul_i32 s40, s40, s43
        s_add_u32 s42, s42, s40
        s_lshl_b32 s44, s44, 1
        s_add_u32 s44, s44, s30
        s_mul_i32 s44, s44, {F*4}
        s_lshl_b32 s40, s39, 6
        s_add_u32 s44, s44, s40
        v_mov_b32 v6, 0
        """)
        for s_ in range(3):
            e(f"s_waitcnt lgkmcnt({2*(2-s_)})")
            if os.environ.get("PACKST", "1") == "1": e(f"buffer_store_dwordx4 {v(16+4*s_,4)}, v3, s[16:19], s42 offen{SCP}")
            e("s_add_u32 s42, s42, s43")
            for d in range(4):
                e(f"v_dot2_f32_bf16 v6, v{16+4*s_+d}, v7, v6")
        e("s_nop 2")
        for op in ("v_permlane32_swap_b32", "v_permlane16_swap_b32"):
            e("v_mov_b32 v8, v6")
            e("s_nop 1")
            e(f"{op} v6, v8")
            e("v_add_f32 v6, v6, v8")
        e(f"""
        s_mov_b64 exec, s[46:47]
        buffer_store_dword v6, v9, s[12:15], s44 offen
        s_mov_b64 exec, -1
        s_add_u32 s36, s36, 4
        s_cmp_lt_u32 s36, {min(12*(half+1), 6*nph)}
        s_cbranch_scc1 {lab}
        """)
    fin()

def k_a(A):
    name = "ka_kernel"
    A.launch(name, 288 + 128 + 96, 256, 36864)
    A.kernel_begin(name)
    e = A.e
    ST = Stamps(A, STAMP == "ka")
    ST.stamp(); ST.real(0)
    if ST.on:
        e("v_lshrrev_b32 v1, 6, v0")
        e("s_nop 0")
        e("v_readfirstlane_b32 s59, v1")
    def fin():
        if not ST.on: return
        n0 = ST.n
        ST.n = 12
        ST.stamp()
        e("s_waitcnt vmcnt(0)")
        ST.stamp(); ST.real(1)
        e("s_mov_b64 exec, -1")
        ST.dump(4, "s59")
        ST.n = n0
    e(f"""
    s_cmp_ge_u32 s2, {288+128+96}
    s_cbranch_scc1 ka_done
    s_cmp_ge_u32 s2, {288+128}
    s_cbranch_scc1 ka_pack
    s_load_dwordx4 s[4:7], s[0:1], {KA_K}
    s_load_dwordx2 s[24:25], s[0:1], {KA_SK}
    s_load_dwordx2 s[26:27], s[0:1], {KA_WS}
    s_load_dwordx2 s[38:39], s[0:1], {KA_X}
    s_cmp_ge_u32 s2, 288
    s_cbranch_scc1 ka_stats
    s_and_b32 s28, s2, 31
    s_lshr_b32 s29, s2, 5
    s_lshl_b32 s30, s28, 6
    v_lshrrev_b32 v1, 3, v0
    v_and_b32 v2, 7, v0
    v_lshlrev_b32 v3, 1, v1
    v_add_u32 v3, s30, v3
    s_movk_i32 s31, 1152
    v_mul_lo_u32 v4, v3, s31
    s_lshl_b32 s32, s29, 7
    v_lshlrev_b32 v5, 4, v2
    v_add3_u32 v4, v4, v5, s32
    """)
    for r in range(6):
        e(f"v_add_u32 v{10+r}, {(r-4)*1152 & 0xffffffff:#x}, v4")
    e(f"""
    s_lshl_b32 s33, s29, 9
    v_lshlrev_b32 v6, 6, v2
    v_add_u32 v6, s33, v6
    s_waitcnt lgkmcnt(0)
    """)
    A.srd(8, 4, 5, S * D * 2)
    A.srd(12, 6, 7, S * D * 2)
    A.srd(16, 24, 25, D * 8)
    A.srd_off(20, 26, 27, WS_R, 576 * 8192)
    A.srd_off(40, 26, 27, WS_PART + 4 * S * D * 2, 8192 + 1024 + 32768)
    e("""
    s_lshl_b32 s36, s2, 10
    v_lshlrev_b32 v8, 2, v0
    v_mov_b32 v9, 0
    buffer_store_dword v9, v8, s[40:43], s36 offen
    """)
    for r in range(6):
        e(f"buffer_load_dwordx4 {v(16+4*r,4)}, v{10+r}, s[8:11], 0 offen")
    for r in range(3):
        e(f"buffer_load_dwordx4 {v(40+4*r,4)}, v{13+r}, s[12:15], 0 offen")
    for r in range(4):
        e(f"buffer_load_dwordx4 {v(52+4*r,4)}, v6, s[16:19], 0 offen offset:{16*r}")
    e(f"""
    v_sub_u32 v7, 31, v1
    v_lshlrev_b32 v8, 2, v2
    v_xor_b32 v7, v7, v8
    v_lshlrev_b32 v7, 2, v7
    v_lshl_add_u32 v7, v2, 10, v7
    s_mov_b32 s34, 0xffff0000
    """)
    ST.stamp()
    e("s_waitcnt vmcnt(0)")
    ST.stamp()
    e(f"""
    """)
    for ch in range(8):
        d, hi = ch >> 1, ch & 1
        def unp(dst, src):
            if hi: e(f"v_and_b32 v{dst}, s34, v{src}")
            else:  e(f"v_lshlrev_b32 v{dst}, 16, v{src}")
        for r in range(6): unp(70 + r, 16 + 4 * r + d)
        for r in range(3): unp(76 + r, 40 + 4 * r + d)
        sk = 52 + 2 * ch
        e(f"v_lshlrev_b32 v80, 16, v{sk}")
        e(f"v_and_b32 v81, s34, v{sk}")
        e(f"v_lshlrev_b32 v82, 16, v{sk+1}")
        e(f"v_and_b32 v83, s34, v{sk+1}")
        for r in range(3):
            e(f"v_mul_f32 v{84+r}, v{70+r}, v83")
        for r in range(3):
            e(f"v_fmac_f32 v{84+r}, v{71+r}, v82")
        for r in range(3):
            e(f"v_fmac_f32 v{84+r}, v{72+r}, v81")
        for r in range(3):
            e(f"v_fmac_f32 v{84+r}, v{73+r}, v80")
        for r in range(3):
            e(f"v_mul_f32 v{84+r}, v{84+r}, v{76+r}")
        e(f"v_cvt_pk_bf16_f32 v{88+2*(ch&1)}, v85, v84")
        e(f"v_cvt_pk_bf16_f32 v{89+2*(ch&1)}, v86, v85")
        e(f"ds_write_b32 v7, v{88+2*(ch&1)} offset:{ch*128}")
        e(f"ds_write_b32 v7, v{89+2*(ch&1)} offset:{8192+ch*128}")
    ST.stamp()
    e(f"""
    v_lshrrev_b32 v8, 6, v0
    v_xor_b32 v9, v2, v8
    v_lshlrev_b32 v9, 4, v9
    v_lshl_add_u32 v9, v1, 7, v9
    v_xor_b32 v10, 64, v9
    s_lshl_b32 s35, s29, 19
    s_sub_u32 s36, 1984, s30
    s_lshl_b32 s36, s36, 1
    s_add_u32 s35, s35, s36
    v_lshlrev_b32 v11, 13, v1
    v_add3_u32 v11, v11, v5, s35
    v_add_u32 v12, 0x40000, v11
    s_waitcnt lgkmcnt(0)
    s_barrier
    ds_read_b128 v[16:19], v9
    ds_read_b128 v[20:23], v10 offset:4096
    ds_read_b128 v[24:27], v9 offset:8192
    ds_read_b128 v[28:31], v10 offset:12288
    s_movk_i32 s37, 0x1000
    s_waitcnt lgkmcnt(3)
    buffer_store_dwordx4 v[16:19], v11, s[20:23], 0 offen{SCP}
    s_waitcnt lgkmcnt(2)
    buffer_store_dwordx4 v[20:23], v12, s[20:23], 0 offen{SCP}
    s_waitcnt lgkmcnt(1)
    buffer_store_dwordx4 v[24:27], v11, s[20:23], s37 offen{SCP}
    s_waitcnt lgkmcnt(0)
    buffer_store_dwordx4 v[28:31], v12, s[20:23], s37 offen{SCP}
    """)
    fin()
    e("s_endpgm")
    A.label("ka_stats")
    if CODEPF:
        e("s_getpc_b64 s[12:13]")
        A.label("ka_pc")
        e("""
        s_sub_u32 s12, s12, ka_pc-ka_kernel
        s_subb_u32 s13, s13, 0
        s_mov_b32 s14, code_end-ka_kernel
        s_mov_b32 s15, 0x00020000
        s_sub_u32 s28, s2, 288
        s_lshl_b32 s28, s28, 10
        v_lshlrev_b32 v6, 2, v0
        buffer_load_dword v7, v6, s[12:15], s28 offen
        """)
    e(f"""
    s_sub_u32 s28, s2, 288
    s_lshl_b32 s28, s28, 4
    v_lshrrev_b32 v1, 4, v0
    v_add_u32 v1, s28, v1
    v_and_b32 v2, 15, v0
    s_movk_i32 s29, 1152
    v_mul_lo_u32 v3, v1, s29
    v_lshl_add_u32 v3, v2, 3, v3
    v_lshlrev_b32 v4, 3, v1
    s_waitcnt lgkmcnt(0)
    """)
    A.srd(40, 38, 39, S * D * 2)
    A.srd_off(44, 26, 27, WS_ST, 2 * S * 8)
    XR, XF = 16, 34
    for i in range(9):
        e(f"buffer_load_dwordx2 {v(XR+2*i,2)}, v3, s[40:43], 0 offen offset:{128*i}")
    A.srd_off(8, 26, 27, WS_XQ, S * D * 2)
    e("v_lshl_add_u32 v5, v2, 14, v4")
    e("s_mov_b32 s30, 0xffff0000")
    e(f"s_mov_b32 s31, {fbits(1.0/576):#x}")
    e(f"s_mov_b32 s32, {fbits(1e-5):#x}")
    e("s_mov_b32 s33, 0")
    e("s_waitcnt vmcnt(0)")
    for i in range(9):
        e(f"buffer_store_dwordx2 {v(XR+2*i,2)}, v5, s[8:11], s33 offen")
        e(f"s_add_u32 s33, s33, {16*16384}")
    for d in range(18):
        e(f"v_lshlrev_b32 v{XF+2*d}, 16, v{XR+d}")
        e(f"v_and_b32 v{XF+2*d+1}, s30, v{XR+d}")
    e(f"v_pk_add_f32 v[8:9], {v(XF,2)}, {v(XF+2,2)}")
    e(f"v_pk_add_f32 v[10:11], {v(XF+4,2)}, {v(XF+6,2)}")
    for i in range(2, 9):
        e(f"v_pk_add_f32 v[8:9], v[8:9], {v(XF+4*i,2)}")
        e(f"v_pk_add_f32 v[10:11], v[10:11], {v(XF+4*i+2,2)}")
    e("v_pk_add_f32 v[8:9], v[8:9], v[10:11]")
    e("v_add_f32 v8, v8, v9")
    dpp_sum16(A, 8)
    e("v_mul_f32 v8, s31, v8")
    for i in range(18):
        e(f"v_pk_add_f32 {v(XF+2*i,2)}, {v(XF+2*i,2)}, v[8:9] op_sel_hi:[1,0] neg_lo:[0,1] neg_hi:[0,1]")
    e(f"v_pk_mul_f32 v[10:11], {v(XF,2)}, {v(XF,2)}")
    e(f"v_pk_mul_f32 v[12:13], {v(XF+2,2)}, {v(XF+2,2)}")
    for i in range(1, 9):
        e(f"v_pk_fma_f32 v[10:11], {v(XF+4*i,2)}, {v(XF+4*i,2)}, v[10:11]")
        e(f"v_pk_fma_f32 v[12:13], {v(XF+4*i+2,2)}, {v(XF+4*i+2,2)}, v[12:13]")
    e("v_pk_add_f32 v[10:11], v[10:11], v[12:13]")
    e("v_add_f32 v9, v10, v11")
    dpp_sum16(A, 9)
    e("v_mov_b32 v10, s32")
    e("v_fmac_f32 v10, s31, v9")
    e("v_rsq_f32 v9, v10")
    e("v_cmp_eq_u32 vcc, 0, v2")
    e("s_and_saveexec_b64 s[34:35], vcc")
    e("buffer_store_dwordx2 v[8:9], v4, s[44:47], 0 offen")
    e("v_mov_b32 v10, -1")
    e("v_mov_b32 v11, -1")
    e(f"s_movk_i32 s33, {S*8}")
    e("buffer_store_dwordx2 v[10:11], v4, s[44:47], s33 offen")
    fin()
    e("s_endpgm")
    A.label("ka_pack")
    e(f"s_load_dwordx2 s[26:27], s[0:1], {KA_WS}")
    if ST.on: e("s_mov_b32 s58, s2")
    e(f"s_sub_u32 s2, s2, {288+128}")
    def fin2():
        if ST.on: e("s_mov_b32 s2, s58")
        fin()
    emit_w_packer(A, "ka", 0, 192, fin2)
    A.label("ka_done")
    e("s_endpgm")
    A.kernel_end(name, 100, 102 if ST.on else 52)

KB_CH = 25920
KB_KC = 4160
KB_RO = 16640
KB_RC = 4640
def k_b(A):
    name = "kb_kernel"
    A.launch(name, 240, 256, 4 * KB_CH)
    A.kernel_begin(name)
    e = A.e
    ST = Stamps(A, STAMP == "kb")
    ST.stamp(); ST.real(0)
    if ST.on:
        e("v_lshrrev_b32 v1, 6, v0")
        e("s_nop 0")
        e("v_readfirstlane_b32 s59, v1")
    def fin():
        if not ST.on: return
        n0 = ST.n
        ST.n = 12
        ST.stamp()
        e("s_waitcnt vmcnt(0)")
        ST.stamp(); ST.real(1)
        e("s_mov_b64 exec, -1")
        ST.dump(4, "s59")
        ST.n = n0
    e(f"""
    s_cmp_ge_u32 s2, 240
    s_cbranch_scc1 kb_done
    s_load_dwordx2 s[26:27], s[0:1], {KA_WS}
    s_cmp_ge_u32 s2, 144
    s_cbranch_scc1 kb_side
    s_load_dwordx4 s[4:7], s[0:1], {KA_SSMK}
    v_lshrrev_b32 v1, 6, v0
    v_and_b32 v2, 63, v0
    s_nop 0
    v_readfirstlane_b32 s28, v1
    s_nop 3
    s_lshl_b32 s29, s2, 2
    s_add_u32 s29, s29, s28
    s_mul_i32 s30, s28, {KB_CH}
    s_lshl_b32 s31, s29, 12
    s_lshl_b32 s32, s29, 13
    s_add_u32 s32, s32, {WS_R}
    s_lshl_b32 s33, s2, 14
    s_add_u32 s33, s33, {WS_XQ}
    s_lshr_b32 s34, s29, 1
    s_lshl_b32 s34, s34, 2
    v_lshlrev_b32 v3, 4, v2
    s_waitcnt lgkmcnt(0)
    """)
    A.srd_off(8, 4, 5, "s31", 4096)
    A.srd_off(12, 26, 27, "s32", 8192)
    A.srd_off(16, 26, 27, "s33", 16384)
    A.srd_off(20, 26, 27, WS_ST, S * 8)
    e("s_lshr_b32 s33, s2, 1")
    e("s_lshl_b32 s33, s33, 15")
    e(f"s_add_u32 s33, s33, {WS_H}")
    A.srd_off(44, 26, 27, "s33", 32768)
    e(f"""
    s_add_u32 s6, s6, s34
    s_addc_u32 s7, s7, 0
    s_load_dword s35, s[6:7], 0
    """)
    vm = Cnt(A, "vmcnt", 63)
    e(f"""
    v_lshrrev_b32 v4, 4, v2
    v_and_b32 v5, 15, v2
    v_add_u32 v6, v4, v5
    v_add_u32 v6, -15, v6
    v_lshlrev_b32 v6, 2, v6
    buffer_load_dword v7, v6, s[8:11], 0 offen
    """)
    vm.issue("front")
    for p in range(2):
        e(f"s_add_u32 s36, s30, {KB_RO + p * KB_RC}")
        e(f"s_mov_b32 m0, s36")
        e(f"s_movk_i32 s37, {p * 4096}")
        for b in range(4):
            e(f"buffer_load_dwordx4 v3, s[12:15], s37 offen offset:{b*1024} lds")
            vm.issue("R")
    late = []
    def kdma(b, c):
        e(f"s_add_u32 m0, s30, {c * KB_KC + 64}")
        e(f"s_movk_i32 s37, {4 * c + 4}")
        e(f"buffer_load_dwordx4 v3, s[8:11], s37 offen offset:{b*1024} lds")
        vm.issue(f"K{b}")
    for b in range(4):
        for c in range(4):
            if b <= 1: kdma(b, c)
            else: late.append((f"K{b}", lambda b=b, c=c: kdma(b, c)))
    e("v_lshlrev_b32 v18, 4, v0")
    def xsld(r):
        e(f"s_movk_i32 s37, {4096*r}")
        e(f"buffer_load_dwordx4 {v(80+8*r,4)}, v18, s[16:19], s37 offen")
        e(f"buffer_load_dwordx4 {v(84+8*r,4)}, v18, s[20:23], s37 offen")
        vm.issue("xs"); vm.issue("xs")
    for r in range(4): late.append(("xs", lambda r=r: xsld(r)))
    e(f"""
    s_movk_i32 s38, {KB_KC}
    v_mul_lo_u32 v8, v4, s38
    v_lshl_add_u32 v8, v5, 2, v8
    v_add_u32 v8, s30, v8
    v_lshrrev_b32 v9, 5, v2
    s_movk_i32 s38, {KB_RC}
    v_mul_lo_u32 v9, v9, s38
    v_and_b32 v10, 31, v2
    v_lshl_add_u32 v9, v10, 4, v9
    s_add_u32 s39, s30, {KB_RO + 4096}
    v_add_u32 v9, s39, v9
    v_mov_b32 v12, 0
    v_mov_b32 v13, 0
    v_mov_b32 v14, 0
    v_mov_b32 v15, 0
    ds_write_b128 v9, v[12:15]
    """)
    e(f"""
    v_and_b32 v10, 3, v5
    s_movk_i32 s38, {KB_KC}
    v_mul_lo_u32 v10, v10, s38
    v_lshrrev_b32 v11, 2, v5
    v_add_u32 v11, v11, v4
    v_lshl_add_u32 v10, v11, 4, v10
    v_add_u32 v10, s30, v10
    """)
    e(f"""
    v_and_b32 v11, 1, v5
    s_movk_i32 s38, {KB_RC}
    v_mul_lo_u32 v11, v11, s38
    v_lshrrev_b32 v16, 1, v5
    v_lshlrev_b32 v16, 2, v16
    v_sub_u32 v16, v4, v16
    v_add_u32 v16, 28, v16
    v_lshl_add_u32 v11, v16, 4, v11
    s_add_u32 s39, s30, {KB_RO}
    v_add_u32 v11, s39, v11
    """)
    e(f"""
    s_waitcnt lgkmcnt(0)
    s_and_b32 s40, s29, 1
    s_lshl_b32 s40, s40, 4
    s_lshr_b32 s35, s35, s40
    s_and_b32 s35, s35, 0xffff
    v_lshl_add_u32 v16, v4, 2, v5
    v_mov_b32 v17, s35
    """)
    for d in range(4):
        e(f"v_cmp_eq_u32 vcc, {15-d}, v16")
        e("s_nop 1")
        e(f"v_cndmask_b32 v{20+d}, 0, v17, vcc")
    ST.stamp()
    vm.need("front")
    e("ds_write_b32 v8, v7")
    vm.need("K0")
    e("s_waitcnt lgkmcnt(0)")
    ST.stamp()
    ACC = 32
    BR = 64
    NB = 4
    AR = 112
    lg = Cnt(A, "lgkmcnt", 15)
    groups = []
    for ph in range(2):
        for r in range(8):
            groups.append([r + 8 * u for u in range(4 * ph, 4 * ph + 4)])
    mf = []
    for g, il in enumerate(groups):
        for i in il:
            for j in range(7, (i >> 3) - 1, -1):
                mf.append((g, i, j))
    def areg(g, q):
        return AR + 32 * (g & 1) + 4 * ((q + 7) >> 3)
    reads = []
    seen = set()
    bidx = {}
    for x, (g, i, j) in enumerate(mf):
        if ("B", i) not in seen:
            seen.add(("B", i)); bidx[i] = len(bidx); reads.append((("B", i), x))
        t = ("A", g, 8 * j - i)
        if t not in seen:
            seen.add(t); reads.append((t, x))
    last_use = {}
    for x, (g, i, j) in enumerate(mf):
        last_use[("B", i)] = x; last_use[("G", g)] = x
    border = sorted(bidx, key=lambda i: bidx[i])
    rp = 0
    LOOK = 14
    def can_issue(tag, x):
        if tag[0] == "B":
            k = bidx[tag[1]]
            return k < NB or last_use[("B", border[k - NB])] < x
        g = tag[1]
        return g < 2 or last_use[("G", g - 2)] < x
    def issue_read(tag):
        if tag[0] == "B":
            idx = tag[1]
            blk = min(3, max(0, (4 * idx + 6 - 4) // 64))
            while any(t == f"K{blk}" for t, _ in late): late.pop(0)[1]()
            vm.need(f"K{blk}")
            e(f"ds_read_b128 {v(BR + 4 * (bidx[idx] % NB), 4)}, v10 offset:{64 * idx}")
        else:
            e(f"ds_read_b128 {v(areg(tag[1], tag[2]), 4)}, v11 offset:{64 * (56 - tag[2])}")
        lg.issue(tag)
    started = set()
    while rp < 9:
        issue_read(reads[rp][0]); rp += 1
    for x, (g, i, j) in enumerate(mf):
        if j == 7 and i in (2, 4, 32, 36): ST.stamp()
        while rp < len(reads) and reads[rp][1] <= x:
            issue_read(reads[rp][0]); rp += 1
        lg.need(("B", i)); lg.need(("A", g, 8 * j - i))
        c = v(ACC + 4 * j, 4)
        aq = v(areg(g, 8 * j - i), 4)
        if j not in started:
            started.add(j)
            e(f"v_mfma_f32_16x16x32_bf16 {c}, {aq}, v[20:23], 0")
        e(f"v_mfma_f32_16x16x32_bf16 {c}, {aq}, {v(BR+4*(bidx[i]%NB),4)}, {c}")
        if rp < len(reads) and reads[rp][1] <= x + LOOK and len(lg.q) < 14 and can_issue(reads[rp][0], x + 1):
            issue_read(reads[rp][0]); rp += 1
        elif late and x % 4 == 3: late.pop(0)[1]()
    assert rp == len(reads) and not late
    ST.stamp()
    e(f"""
    v_lshlrev_b32 v16, 7, v4
    v_lshl_add_u32 v16, v5, 2, v16
    v_add_u32 v16, s30, v16
    s_nop 7
    """)
    for j in range(8):
        c = ACC + 4 * j
        e(f"v_cvt_pk_bf16_f32 v{c}, v{c}, v{c+1}")
        e(f"v_cvt_pk_bf16_f32 v{c+1}, v{c+2}, v{c+3}")
        e(f"ds_write_b32 v16, v{c} offset:{512*j}")
        e(f"ds_write_b32 v16, v{c+1} offset:{512*j+64}")
    e(f"""
    v_lshlrev_b32 v17, 2, v0
    v_lshlrev_b32 v18, 5, v0
    s_and_b32 s40, s2, 1
    s_lshl_b32 s40, s40, 3
    v_add_u32 v18, s40, v18
    s_mov_b32 s41, 0xffff0000
    v_add_u32 v19, {2*KB_CH}, v17
    s_waitcnt lgkmcnt(0)
    s_barrier
    """)
    ST.stamp()
    for r in range(4):
        for ch in range(4):
            base = "v17" if ch < 2 else "v19"
            e(f"ds_read_b32 v{64+4*r+ch}, {base} offset:{(ch&1)*KB_CH + 1024*r}")
    e("s_waitcnt vmcnt(0)")
    for r in range(4):
        e(f"s_waitcnt lgkmcnt({12-4*r})")
        Y = 64 + 4 * r; X = 80 + 8 * r; M = 84 + 8 * r
        for tq in range(2):
            for d in range(2):
                e(f"v_lshlrev_b32 v{32+2*d}, 16, v{X+2*tq+d}")
                e(f"v_and_b32 v{33+2*d}, s41, v{X+2*tq+d}")
            for ch in range(4):
                if tq == 0: e(f"v_lshlrev_b32 v{36+ch}, 16, v{Y+ch}")
                else: e(f"v_and_b32 v{36+ch}, s41, v{Y+ch}")
            mp = v(M + 2 * tq, 2)
            for p in range(2):
                e(f"v_pk_mul_f32 {v(36+2*p,2)}, {v(36+2*p,2)}, {mp} op_sel:[0,1] op_sel_hi:[1,1]")
                e(f"v_pk_add_f32 {v(40+2*p,2)}, {v(32+2*p,2)}, {mp} op_sel_hi:[1,0] neg_lo:[0,1] neg_hi:[0,1]")
            for p in range(2):
                e(f"v_pk_fma_f32 {v(32+2*p,2)}, {v(40+2*p,2)}, {v(36+2*p,2)}, {v(32+2*p,2)}")
            O = 44 + 4 * (r & 1) + 2 * tq
            e(f"v_cvt_pk_bf16_f32 v{O}, v32, v33")
            e(f"v_cvt_pk_bf16_f32 v{O+1}, v34, v35")
            e(f"s_movk_i32 s37, {8192*r}")
            e(f"buffer_store_dwordx2 {v(O,2)}, v18, s[44:47], s37 offen offset:{16*tq}{SCH}")
    fin()
    e("s_endpgm")
    A.label("kb_side")
    if ST.on: e("s_mov_b32 s58, s2")
    e("s_sub_u32 s2, s2, 144")
    def fin2():
        if ST.on: e("s_mov_b32 s2, s58")
        fin()
    emit_w_packer(A, "kb", 192, 384, fin2)
    A.label("kb_done")
    e("s_endpgm")
    A.kernel_end(name, 176, 102 if ST.on else 52)

def k_ab(A):
    name = "ka_kernel"
    TS = 4 * KB_CH
    A.launch(name, 256, 512, 147456)
    A.kernel_begin(name)
    e = A.e
    ST = Stamps(A, STAMP == "ka")
    ST.stamp(); ST.real(0)
    if ST.on:
        e("v_lshrrev_b32 v1, 6, v0")
        e("s_nop 0")
        e("v_readfirstlane_b32 s101, v1")
        e("s_mov_b32 s3, s2")
    def fin():
        if not ST.on: return
        n0 = ST.n
        ST.n = 12
        ST.stamp()
        e("s_waitcnt vmcnt(0)")
        ST.stamp(); ST.real(1)
        e("s_mov_b64 exec, -1")
        e("s_mov_b32 s2, s3")
        ST.dump(8, "s101")
        ST.n = n0
    e(f"""
    s_cmp_ge_u32 s2, 256
    s_cbranch_scc1 ka_done
    s_load_dwordx2 s[26:27], s[0:1], {KA_WS}
    s_cmp_ge_u32 s2, 208
    s_cbranch_scc1 ka_pack0
    s_load_dwordx2 s[50:51], s[0:1], {KA_DBG}
    s_load_dwordx2 s[38:39], s[0:1], {KA_X}
    s_cmp_ge_u32 s2, 144
    s_cbranch_scc1 ka_stats
    s_load_dwordx4 s[4:7], s[0:1], {KA_K}
    s_load_dwordx2 s[24:25], s[0:1], {KA_SK}
    s_load_dwordx4 s[64:67], s[0:1], {KA_SSMK}
    v_lshrrev_b32 v1, 6, v0
    v_and_b32 v100, 63, v0
    v_and_b32 v101, 255, v0
    v_readfirstlane_b32 s60, v1
    s_lshr_b32 s29, s2, 4
    s_and_b32 s28, s2, 15
    s_lshr_b32 s61, s60, 2
    s_and_b32 s62, s60, 3
    s_lshl_b32 s28, s28, 1
    s_add_u32 s28, s28, s61
    s_lshl_b32 s30, s28, 6
    v_lshrrev_b32 v1, 3, v101
    v_and_b32 v2, 7, v101
    v_lshlrev_b32 v3, 1, v1
    v_add_u32 v3, s30, v3
    s_movk_i32 s31, 1152
    v_mul_lo_u32 v4, v3, s31
    s_lshl_b32 s32, s29, 7
    v_lshlrev_b32 v5, 4, v2
    v_add3_u32 v4, v4, v5, s32
    """)
    KS, VS, SKS = 0, 17408, 34816
    e(f"""
    s_lshl_b32 s63, s2, 2
    s_add_u32 s63, s63, s62
    s_mul_i32 s68, s62, {KB_CH}
    s_lshl_b32 s31, s63, 12
    v_lshlrev_b32 v102, 4, v100
    v_lshrrev_b32 v6, 3, v100
    v_mul_u32_u24 v6, 1152, v6
    v_and_b32 v7, 7, v100
    v_lshl_add_u32 v6, v7, 4, v6
    s_and_b32 s33, s2, 15
    s_mul_i32 s33, s33, {128*1152}
    s_add_u32 s33, s33, s32
    s_mul_i32 s34, s60, {16*1152}
    s_add_u32 s34, s34, s33
    s_add_u32 s35, s34, {8*1152}
    s_lshl_b32 s36, s60, 11
    s_sub_u32 s37, s33, {8*1152}
    s_cmp_lt_u32 s33, {8*1152}
    s_cselect_b32 s37, 0x7ffffff0, s37
    s_waitcnt lgkmcnt(0)
    """)
    A.srd(8, 4, 5, S * D * 2)
    A.srd(12, 6, 7, S * D * 2)
    A.srd(16, 24, 25, D * 8)
    A.srd(40, 38, 39, S * D * 2)
    for base, srd in ((KS, 8), (VS, 12)):
        for i in range(2):
            e(f"s_add_u32 m0, s36, {base + 1024 + 1024*i}")
            e("s_nop 0")
            e(f"buffer_load_dwordx4 v6, s[{srd}:{srd+3}], s{34+i} offen lds")
    e(f"""
    s_cmp_lg_u32 s60, 0
    s_cbranch_scc1 ka_h1
    s_mov_b32 m0, {KS}
    s_nop 0
    buffer_load_dwordx4 v6, s[8:11], s37 offen lds
    """)
    A.label("ka_h1")
    e(f"""
    s_cmp_lg_u32 s60, 1
    s_cbranch_scc1 ka_h2
    s_mov_b32 m0, {VS}
    s_nop 0
    buffer_load_dwordx4 v6, s[12:15], s37 offen lds
    """)
    A.label("ka_h2")
    e(f"""
    s_cmp_lg_u32 s60, 2
    s_cbranch_scc1 ka_h3
    s_mov_b32 m0, {SKS}
    s_lshl_b32 s33, s29, 9
    buffer_load_dwordx4 v102, s[16:19], s33 offen lds
    """)
    A.label("ka_h3")
    e("buffer_load_dwordx4 v[92:95], v4, s[40:43], 0 offen")
    e("buffer_load_dwordx4 v[96:99], v4, s[40:43], 0 offen offset:1152")
    e(f"""
    v_lshrrev_b32 v10, 3, v0
    v_lshlrev_b32 v10, 8, v10
    v_add_u32 v10, v10, v5
    v_lshlrev_b32 v11, 6, v2
    """)
    A.srd_off(8, 64, 65, "s31", 4096)
    e(f"""
    s_lshl_b32 s24, s61, 11
    s_add_u32 s25, s68, s24
    v_lshrrev_b32 v103, 4, v100
    v_and_b32 v104, 15, v100
    v_add_u32 v6, v103, v104
    v_add_u32 v6, -15, v6
    v_lshlrev_b32 v6, 2, v6
    buffer_load_dword v105, v6, s[8:11], 0 offen
    """)
    e("v_lshlrev_b32 v6, 6, v100")
    e("buffer_load_dword v107, v6, s[8:11], 0 offen")
    A.srd_off(56, 26, 27, WS_MB, 144 * 128)
    e("""
    s_lshl_b32 s71, s2, 7
    v_lshlrev_b32 v106, 2, v100
    v_mov_b32 v68, 0
    v_cmp_gt_u32 vcc, 16, v0
    s_and_saveexec_b64 s[34:35], vcc
    s_cbranch_execz ka_nc
    buffer_store_dword v68, v106, s[56:59], s71 offen sc1
    """)
    A.label("ka_nc")
    e("s_mov_b64 exec, s[34:35]")
    A.srd_off(20, 26, 27, WS_R, 576 * 8192)
    A.srd_off(44, 26, 27, WS_XQ, S * D * 2)
    A.srd(52, 50, 51, 256)
    e(f"""
    s_lshr_b32 s34, s63, 1
    s_lshl_b32 s34, s34, 2
    s_add_u32 s66, s66, s34
    s_addc_u32 s67, s67, 0
    s_load_dword s69, s[66:67], 0
    s_lshl_b32 s35, s29, 18
    v_lshlrev_b32 v9, 15, v2
    v_lshl_add_u32 v9, v3, 3, v9
    v_add_u32 v9, s35, v9
    s_movk_i32 s36, 0x4000
    v_sub_u32 v7, 31, v1
    v_lshlrev_b32 v8, 2, v2
    v_xor_b32 v7, v7, v8
    v_lshlrev_b32 v7, 2, v7
    v_lshl_add_u32 v7, v2, 10, v7
    s_lshl_b32 s70, s61, 14
    s_add_u32 s70, s70, {TS}
    v_add_u32 v7, s70, v7
    s_mov_b32 s34, 0xffff0000
    """)
    ST.stamp()
    e("s_waitcnt vmcnt(0)")
    e("s_barrier")
    ST.stamp()
    for r in range(6):
        e(f"ds_read_b128 {v(16+4*r,4)}, v10 offset:{KS + (4+r)*128}")
    for r in range(3):
        e(f"ds_read_b128 {v(40+4*r,4)}, v10 offset:{VS + (7+r)*128}")
    for r in range(4):
        e(f"ds_read_b128 {v(52+4*r,4)}, v11 offset:{SKS + 16*r}")
    e("""
    v_swap_b32 v94, v96
    v_swap_b32 v95, v97
    buffer_store_dwordx4 v[92:95], v9, s[44:47], 0 offen sc1
    buffer_store_dwordx4 v[96:99], v9, s[44:47], s36 offen sc1
    s_waitcnt lgkmcnt(0)
    """)
    for ch in range(8):
        d, hi = ch >> 1, ch & 1
        def unp(dst, src_):
            if hi: e(f"v_and_b32 v{dst}, s34, v{src_}")
            else:  e(f"v_lshlrev_b32 v{dst}, 16, v{src_}")
        for r in range(6): unp(70 + r, 16 + 4 * r + d)
        for r in range(3): unp(76 + r, 40 + 4 * r + d)
        sk = 52 + 2 * ch
        e(f"v_lshlrev_b32 v80, 16, v{sk}")
        e(f"v_and_b32 v81, s34, v{sk}")
        e(f"v_lshlrev_b32 v82, 16, v{sk+1}")
        e(f"v_and_b32 v83, s34, v{sk+1}")
        for r in range(3): e(f"v_mul_f32 v{84+r}, v{70+r}, v83")
        for r in range(3): e(f"v_fmac_f32 v{84+r}, v{71+r}, v82")
        for r in range(3): e(f"v_fmac_f32 v{84+r}, v{72+r}, v81")
        for r in range(3): e(f"v_fmac_f32 v{84+r}, v{73+r}, v80")
        for r in range(3): e(f"v_mul_f32 v{84+r}, v{84+r}, v{76+r}")
        e(f"v_cvt_pk_bf16_f32 v{88+2*(ch&1)}, v85, v84")
        e(f"v_cvt_pk_bf16_f32 v{89+2*(ch&1)}, v86, v85")
        e(f"ds_write_b32 v7, v{88+2*(ch&1)} offset:{ch*128}")
        e(f"ds_write_b32 v7, v{89+2*(ch&1)} offset:{8192+ch*128}")
    e(f"""
    v_lshrrev_b32 v8, 6, v101
    v_xor_b32 v9, v2, v8
    v_lshlrev_b32 v9, 4, v9
    v_lshl_add_u32 v9, v1, 7, v9
    v_xor_b32 v10, 64, v9
    v_add_u32 v9, s70, v9
    v_add_u32 v10, s70, v10
    s_lshl_b32 s35, s29, 19
    s_sub_u32 s36, 1984, s30
    s_lshl_b32 s36, s36, 1
    s_add_u32 s35, s35, s36
    v_lshlrev_b32 v11, 13, v1
    v_add3_u32 v11, v11, v5, s35
    v_add_u32 v12, 0x40000, v11
    s_waitcnt lgkmcnt(0)
    s_barrier
    ds_read_b128 v[16:19], v9
    ds_read_b128 v[20:23], v10 offset:4096
    ds_read_b128 v[24:27], v9 offset:8192
    ds_read_b128 v[28:31], v10 offset:12288
    s_movk_i32 s37, 0x1000
    s_waitcnt lgkmcnt(3)
    buffer_store_dwordx4 v[16:19], v11, s[20:23], 0 offen sc1
    s_waitcnt lgkmcnt(2)
    buffer_store_dwordx4 v[20:23], v12, s[20:23], 0 offen sc1
    s_waitcnt lgkmcnt(1)
    buffer_store_dwordx4 v[24:27], v11, s[20:23], s37 offen sc1
    s_waitcnt lgkmcnt(0)
    buffer_store_dwordx4 v[28:31], v12, s[20:23], s37 offen sc1
    """)
    ST.stamp()
    e(f"""
    v_mov_b32 v2, v100
    v_mov_b32 v4, v103
    v_mov_b32 v5, v104
    s_mov_b32 s30, s68
    s_lshl_b32 s32, s63, 13
    s_add_u32 s32, s32, {WS_R}
    s_lshl_b32 s33, s2, 14
    s_add_u32 s33, s33, {WS_XQ}
    """)
    A.srd_off(12, 26, 27, "s32", 8192)
    A.srd_off(16, 26, 27, "s33", 16384)
    A.srd_off(20, 26, 27, WS_ST, S * 8)
    e("s_lshr_b32 s33, s2, 1")
    e("s_lshl_b32 s33, s33, 15")
    e(f"s_add_u32 s33, s33, {WS_H}")
    A.srd_off(44, 26, 27, "s33", 32768)
    A.srd_off(40, 26, 27, WS_PART + 4 * S * D * 2, 8192 + 1024 + 32768)
    e(f"""
    s_lshl_b32 s36, s2, 11
    v_lshlrev_b32 v8, 2, v0
    v_mov_b32 v12, 0
    v_mov_b32 v13, 0
    v_mov_b32 v14, 0
    v_mov_b32 v15, 0
    buffer_store_dword v12, v8, s[40:43], s36 offen
    s_movk_i32 s38, {KB_KC}
    v_mul_lo_u32 v8, v4, s38
    v_lshl_add_u32 v8, v5, 2, v8
    v_add_u32 v8, s30, v8
    v_lshrrev_b32 v9, 5, v2
    s_movk_i32 s38, {KB_RC}
    v_mul_lo_u32 v9, v9, s38
    v_and_b32 v10, 31, v2
    v_lshl_add_u32 v9, v10, 4, v9
    s_add_u32 s39, s30, {KB_RO + 4096}
    v_add_u32 v9, s39, v9
    ds_write_b128 v9, v[12:15]
    v_and_b32 v10, 3, v5
    s_movk_i32 s38, {KB_KC}
    v_mul_lo_u32 v10, v10, s38
    v_lshrrev_b32 v11, 2, v5
    v_add_u32 v11, v11, v4
    v_lshl_add_u32 v10, v11, 4, v10
    v_add_u32 v10, s30, v10
    v_and_b32 v11, 1, v5
    s_movk_i32 s38, {KB_RC}
    v_mul_lo_u32 v11, v11, s38
    v_lshrrev_b32 v6, 1, v5
    v_lshlrev_b32 v6, 2, v6
    v_sub_u32 v6, v4, v6
    v_add_u32 v6, 28, v6
    v_lshl_add_u32 v11, v6, 4, v11
    s_add_u32 s39, s30, {KB_RO}
    v_add_u32 v11, s39, v11
    s_and_b32 s40, s63, 1
    s_lshl_b32 s40, s40, 4
    s_lshr_b32 s35, s69, s40
    s_and_b32 s35, s35, 0xffff
    v_lshl_add_u32 v6, v4, 2, v5
    v_mov_b32 v7, s35
    """)
    for d in range(4):
        e(f"v_cmp_eq_u32 vcc, {15-d}, v6")
        e("s_nop 1")
        e(f"v_cndmask_b32 v{108+d}, 0, v7, vcc")
    e(f"""
    s_lshl_b32 s34, s29, 4
    v_and_b32 v6, 3, v2
    v_lshlrev_b32 v6, 2, v6
    v_add_u32 v6, s34, v6
    v_and_b32 v7, 15, v2
    v_lshlrev_b32 v12, 2, v7
    v_lshlrev_b32 v7, 7, v7
    s_lshl_b32 s34, s29, 11
    s_and_b32 s35, s2, 15
    s_lshl_b32 s35, s35, 2
    s_add_u32 s34, s34, s35
    v_mov_b32 v13, 1
    v_mov_b32 v14, s2
    s_mul_i32 s36, s61, {KB_RC}
    s_add_u32 s36, s36, s39
    s_lshl_b32 s37, s61, 12
    s_waitcnt vmcnt(0)
    s_barrier
    """)
    ST.stamp()
    e("s_mov_b32 s33, s37")
    for c in range(4):
        e(f"s_add_u32 m0, s25, {c * KB_KC + 64}")
        e(f"s_add_u32 s37, s24, {4 * c + 4}")
        for b in range(2):
            e(f"buffer_load_dwordx4 v102, s[8:11], s37 offen offset:{b*1024} lds")
    e("s_mov_b32 s37, s33")
    e(f"""
    s_cmp_lg_u32 s60, 0
    s_cbranch_scc1 ka_go
    s_mov_b64 exec, 0xffff
    buffer_store_dword v13, v7, s[56:59], s34 offen sc1
    s_mov_b64 exec, 1
    buffer_store_byte v13, v14, s[52:55], 0 offen sc1
    s_mov_b64 exec, -1
    s_mov_b32 s38, 0
    s_mov_b32 s35, 0x01010101
    """)
    A.label("ka_poll")
    e(f"""
    buffer_load_dword v15, v12, s[56:59], s71 offen sc1
    s_add_u32 s38, s38, 1
    s_waitcnt vmcnt(0)
    v_cmp_ne_u32 vcc, 1, v15
    s_and_b32 s34, s38, 15
    s_cbranch_vccz ka_go
    s_cmp_lg_u32 s34, 0
    s_cbranch_scc1 ka_poll
    buffer_load_dword v15, v6, s[52:55], 0 offen sc1
    s_waitcnt vmcnt(0)
    v_cmp_ne_u32 vcc, s35, v15
    s_cmp_ge_u32 s38, 0x8000
    s_cbranch_scc1 ka_go
    s_cbranch_vccnz ka_poll
    """)
    A.label("ka_go")
    e("s_mov_b32 m0, s36")
    e("s_barrier")
    ST.stamp()
    for b in range(4):
        e(f"buffer_load_dwordx4 v102, s[12:15], s37 offen offset:{b*1024} sc1 lds")
    e("""
    s_cmp_lg_u32 s61, 0
    s_cbranch_scc1 ka_epi
    s_waitcnt vmcnt(0)
    ds_write_b32 v8, v105
    s_waitcnt lgkmcnt(0)
    s_barrier
    """)
    ST.stamp()
    ACC, BR, NB, AR = 32, 64, 8, 112
    lg = Cnt(A, "lgkmcnt", 15)
    def rdA(p, slot):
        e(f"ds_read_b128 {v(AR + 32 * (p & 1) + 4 * slot, 4)}, v11 offset:{64 * p + 64 * (56 - 8 * slot)}")
        lg.issue(("A", p, slot))
    def rdB(p, u):
        e(f"ds_read_b128 {v(BR + 4 * (u % NB), 4)}, v10 offset:{64 * (p + 8 * u)}")
        lg.issue(("B", p, u))
    for sl in range(7, -1, -1): rdA(0, sl)
    for u in range(4): rdB(0, u)
    e("s_mov_b32 s38, 0")
    for j in range(7, -1, -1):
        lg.need(("A", 0, j))
        e(f"v_mfma_f32_16x16x32_bf16 {v(ACC+4*j,4)}, {v(AR+4*j,4)}, v[108:111], 0")
        if j >= 5: rdB(0, 11 - j)
    e("s_waitcnt lgkmcnt(0)")
    A.label("ka_cl")
    e("s_waitcnt lgkmcnt(3)")
    lg.q = [("B", 0, 4), ("B", 0, 5), ("B", 0, 6)]
    for p in range(2):
        mfs = [(u, j) for u in range(8) for j in range(7, u - 1, -1)]
        first = {}
        for x, (u, j) in enumerate(mfs): first.setdefault(u, x)
        fill = {}
        fill[0] = [lambda: rdB(p, 7)]
        for u in range(7):
            fill.setdefault(first[u + 1], []).append(lambda u=u: rdB(p + 1, u))
        for n, sl in enumerate(range(7, -1, -1)):
            fill.setdefault(3 + 3 * n if (3 + 3 * n) not in fill else 4 + 3 * n, []).append(lambda sl=sl: rdA(p + 1, sl))
        for x, (u, j) in enumerate(mfs):
            lg.need(("B", p, u)); lg.need(("A", p, j - u))
            c = v(ACC + 4 * j, 4)
            e(f"v_mfma_f32_16x16x32_bf16 {c}, {v(AR+32*p+4*(j-u),4)}, {v(BR+4*(u%NB),4)}, {c}")
            for fn in fill.get(x, []): fn()
    e("""
    v_add_u32 v10, 128, v10
    v_add_u32 v11, 128, v11
    s_add_u32 s38, s38, 1
    s_cmp_lt_u32 s38, 4
    s_cbranch_scc1 ka_cl
    s_waitcnt lgkmcnt(0)
    """)
    ST.stamp()
    e(f"""
    v_lshlrev_b32 v16, 7, v4
    v_lshl_add_u32 v16, v5, 2, v16
    v_add_u32 v16, s30, v16
    s_nop 7
    """)
    for j in range(8):
        c = ACC + 4 * j
        e(f"v_cvt_pk_bf16_f32 v{c}, v{c}, v{c+1}")
        e(f"v_cvt_pk_bf16_f32 v{c+1}, v{c+2}, v{c+3}")
        e(f"ds_write_b32 v16, v{c} offset:{512*j}")
        e(f"ds_write_b32 v16, v{c+1} offset:{512*j+64}")
    e("s_waitcnt lgkmcnt(0)")
    e("s_barrier")
    fin()
    e("s_endpgm")
    A.label("ka_epi")
    e("v_lshlrev_b32 v16, 4, v101")
    e("v_lshlrev_b32 v17, 2, v101")
    e("v_lshlrev_b32 v18, 5, v101")
    e("""
    v_and_b32 v6, 15, v2
    v_lshlrev_b32 v6, 2, v6
    s_mov_b32 s35, 0x01010101
    s_mov_b32 s38, 0
    """)
    for r in range(4):
        e(f"s_movk_i32 s37, {4096*r}")
        e(f"buffer_load_dwordx4 {v(80+8*r,4)}, v16, s[16:19], s37 offen sc1")
    e("""
    s_waitcnt vmcnt(4) lgkmcnt(0)
    s_barrier
    """)
    A.label("ka_poll2")
    e("""
    buffer_load_dword v15, v6, s[52:55], 0 offen offset:144 sc1
    s_add_u32 s38, s38, 1
    s_waitcnt vmcnt(0)
    v_cmp_ne_u32 vcc, s35, v15
    s_cmp_ge_u32 s38, 0x8000
    s_cbranch_scc1 ka_go2
    s_cbranch_vccnz ka_poll2
    """)
    A.label("ka_go2")
    for r in range(4):
        e(f"s_movk_i32 s37, {4096*r}")
        e(f"buffer_load_dwordx4 {v(84+8*r,4)}, v16, s[20:23], s37 offen sc1")
    e(f"""
    s_and_b32 s40, s2, 1
    s_lshl_b32 s40, s40, 3
    v_add_u32 v18, s40, v18
    s_mov_b32 s41, 0xffff0000
    v_add_u32 v19, {2*KB_CH}, v17
    s_waitcnt vmcnt(0)
    """)
    XF, XH = 112, 144
    for r in range(4):
        X = 80 + 8 * r; M = 84 + 8 * r
        for tq in range(2):
            b = 8 * r + 4 * tq
            for d in range(2):
                e(f"v_lshlrev_b32 v{XF+b+2*d}, 16, v{X+2*tq+d}")
                e(f"v_and_b32 v{XF+b+2*d+1}, s41, v{X+2*tq+d}")
            for c_ in range(4):
                e(f"v_sub_f32 v{XH+b+c_}, v{XF+b+c_}, v{M+2*tq}")
            for c_ in range(4):
                e(f"v_mul_f32 v{XH+b+c_}, v{XH+b+c_}, v{M+2*tq+1}")
    e("s_barrier")
    for r in range(4):
        for ch in range(4):
            base = "v17" if ch < 2 else "v19"
            e(f"ds_read_b32 v{64+4*r+ch}, {base} offset:{(ch&1)*KB_CH + 1024*r}")
    for r in range(4):
        e(f"s_waitcnt lgkmcnt({12-4*r})")
        Y = 64 + 4 * r
        e(f"s_movk_i32 s37, {8192*r}")
        for tq in range(2):
            b = 8 * r + 4 * tq
            for ch in range(4):
                if tq == 0: e(f"v_lshlrev_b32 v{36+ch}, 16, v{Y+ch}")
                else: e(f"v_and_b32 v{36+ch}, s41, v{Y+ch}")
            for p in range(2):
                e(f"v_pk_fma_f32 {v(XF+b+2*p,2)}, {v(XH+b+2*p,2)}, {v(36+2*p,2)}, {v(XF+b+2*p,2)}")
            O = 44 + 4 * (r & 1) + 2 * tq
            e(f"v_cvt_pk_bf16_f32 v{O}, v{XF+b}, v{XF+b+1}")
            e(f"v_cvt_pk_bf16_f32 v{O+1}, v{XF+b+2}, v{XF+b+3}")
            e(f"buffer_store_dwordx2 {v(O,2)}, v18, s[44:47], s37 offen offset:{16*tq}{SCH}")
    fin()
    e("s_endpgm")
    A.label("ka_stats")
    e(f"""
    s_sub_u32 s28, s2, 144
    s_lshl_b32 s28, s28, 5
    v_lshrrev_b32 v1, 4, v0
    v_add_u32 v1, s28, v1
    v_and_b32 v2, 15, v0
    s_movk_i32 s29, 1152
    v_mul_lo_u32 v3, v1, s29
    v_lshl_add_u32 v3, v2, 3, v3
    v_lshlrev_b32 v4, 3, v1
    s_waitcnt lgkmcnt(0)
    """)
    A.srd(40, 38, 39, S * D * 2)
    A.srd_off(44, 26, 27, WS_ST, 2 * S * 8)
    A.srd(52, 50, 51, 256)
    XR, XF = 72, 34
    for rd in range(1):
        e(f"s_mov_b32 s33, {rd*32*1152}")
        for i in range(9):
            e(f"buffer_load_dwordx2 {v(XR+18*rd+2*i,2)}, v3, s[40:43], s33 offen offset:{128*i}")
    e("s_mov_b32 s30, 0xffff0000")
    e(f"s_mov_b32 s31, {fbits(1.0/576):#x}")
    e(f"s_mov_b32 s32, {fbits(1e-5):#x}")
    e("v_cmp_eq_u32 s[36:37], 0, v2")
    e(f"s_movk_i32 s33, {S*8}")
    e("v_mov_b32 v14, -1")
    e("v_mov_b32 v15, -1")
    for rd in range(1):
        e("s_waitcnt vmcnt(0)")
        for d in range(18):
            e(f"v_lshlrev_b32 v{XF+2*d}, 16, v{XR+18*rd+d}")
            e(f"v_and_b32 v{XF+2*d+1}, s30, v{XR+18*rd+d}")
        M = 8 + 8 * (rd & 1)
        e(f"v_pk_add_f32 v[{M}:{M+1}], {v(XF,2)}, {v(XF+2,2)}")
        e(f"v_pk_add_f32 v[10:11], {v(XF+4,2)}, {v(XF+6,2)}")
        for i in range(2, 9):
            e(f"v_pk_add_f32 v[{M}:{M+1}], v[{M}:{M+1}], {v(XF+4*i,2)}")
            e(f"v_pk_add_f32 v[10:11], v[10:11], {v(XF+4*i+2,2)}")
        e(f"v_pk_add_f32 v[{M}:{M+1}], v[{M}:{M+1}], v[10:11]")
        e(f"v_add_f32 v{M}, v{M}, v{M+1}")
        dpp_sum16(A, M)
        e(f"v_mul_f32 v{M}, s31, v{M}")
        for i in range(18):
            e(f"v_pk_add_f32 {v(XF+2*i,2)}, {v(XF+2*i,2)}, v[{M}:{M+1}] op_sel_hi:[1,0] neg_lo:[0,1] neg_hi:[0,1]")
        e(f"v_pk_mul_f32 v[10:11], {v(XF,2)}, {v(XF,2)}")
        e(f"v_pk_mul_f32 v[12:13], {v(XF+2,2)}, {v(XF+2,2)}")
        for i in range(1, 9):
            e(f"v_pk_fma_f32 v[10:11], {v(XF+4*i,2)}, {v(XF+4*i,2)}, v[10:11]")
            e(f"v_pk_fma_f32 v[12:13], {v(XF+4*i+2,2)}, {v(XF+4*i+2,2)}, v[12:13]")
        e("v_pk_add_f32 v[10:11], v[10:11], v[12:13]")
        e(f"v_add_f32 v{M+1}, v10, v11")
        dpp_sum16(A, M + 1)
        e(f"""
        v_mov_b32 v10, s32
        v_fmac_f32 v10, s31, v{M+1}
        v_rsq_f32 v{M+1}, v10
        s_mov_b64 exec, s[36:37]
        buffer_store_dwordx2 v[{M}:{M+1}], v4, s[44:47], 0 offen offset:{256*rd} sc1
        buffer_store_dwordx2 v[14:15], v4, s[44:47], s33 offen offset:{256*rd}
        s_mov_b64 exec, -1
        """)
    e(f"""
    v_mov_b32 v13, 1
    v_mov_b32 v12, s2
    s_waitcnt vmcnt(0)
    s_barrier
    v_cmp_eq_u32 vcc, 0, v0
    s_and_saveexec_b64 s[34:35], vcc
    s_cbranch_execz ka_nf
    buffer_store_byte v13, v12, s[52:55], 0 offen sc1
    """)
    A.label("ka_nf")
    e("s_mov_b64 exec, s[34:35]")
    e("s_cmp_ge_u32 s2, 160")
    e("s_cbranch_scc1 ka_pack0")
    fin()
    e("s_endpgm")
    A.label("ka_pack0")
    e("s_sub_u32 s2, s2, 160")
    emit_w_packer(A, "ka0", 0, 288, fin, halves=True, ksplit=True)
    A.label("ka_done")
    e("s_endpgm")
    A.kernel_end(name, 176, 102 if ST.on else 72)

def k_ln(A):
    name = "kl_kernel"
    A.launch(name, 256, 128, 0)
    A.kernel_begin(name)
    e = A.e
    e(f"""
    s_cmp_ge_u32 s2, 256
    s_cbranch_scc1 kl_done
    s_load_dwordx2 s[4:5], s[0:1], {KA_X}
    s_load_dwordx2 s[26:27], s[0:1], {KA_WS}
    v_lshrrev_b32 v1, 4, v0
    v_and_b32 v2, 15, v0
    s_lshl_b32 s28, s2, 3
    v_add_u32 v1, s28, v1
    s_movk_i32 s29, 1152
    v_mul_lo_u32 v3, v1, s29
    v_lshl_add_u32 v3, v2, 3, v3
    v_lshlrev_b32 v4, 14, v2
    v_lshl_add_u32 v4, v1, 3, v4
    v_lshrrev_b32 v5, 1, v2
    v_lshlrev_b32 v5, 15, v5
    v_lshl_add_u32 v5, v1, 4, v5
    v_and_b32 v6, 1, v2
    v_lshl_add_u32 v5, v6, 3, v5
    s_waitcnt lgkmcnt(0)
    """)
    A.srd(8, 4, 5, S * D * 2)
    A.srd_off(12, 26, 27, WS_YQ, S * D * 2)
    A.srd_off(16, 26, 27, WS_XLN, S * D * 2)
    A.srd_off(20, 26, 27, WS_H, S * D * 2)
    XR, YR, XF = 16, 34, 52
    A.srd_off(44, 26, 27, WS_PART + 4 * S * D * 2, 8192)
    e("""
    s_lshl_b32 s43, s2, 9
    v_lshlrev_b32 v7, 2, v0
    v_add_u32 v7, s43, v7
    v_mov_b32 v8, 0
    buffer_store_dword v8, v7, s[44:47], 0 offen
    """)
    for i in range(9):
        e(f"buffer_load_dwordx2 {v(XR+2*i,2)}, v3, s[8:11], 0 offen offset:{128*i}")
    for i in range(9):
        e(f"s_mov_b32 s{30+i}, {i*262144:#x}")
    for i in range(9):
        e(f"buffer_load_dwordx2 {v(YR+2*i,2)}, v4, s[12:15], s{30+i} offen")
    e("s_mov_b32 s40, 0xffff0000")
    e(f"s_mov_b32 s41, {fbits(1.0/576):#x}")
    e(f"s_mov_b32 s42, {fbits(1e-5):#x}")
    e("s_waitcnt vmcnt(9)")
    def unpack(dst, src):
        for d in range(18):
            e(f"v_lshlrev_b32 v{dst+2*d}, 16, v{src+d}")
            e(f"v_and_b32 v{dst+2*d+1}, s40, v{src+d}")
    def stats():
        for k in range(4):
            e(f"v_add_f32 v{8+k}, v{XF+k}, v{XF+4+k}")
        for i in range(2, 9):
            for k in range(4):
                e(f"v_add_f32 v{8+k}, v{8+k}, v{XF+4*i+k}")
        e("v_add_f32 v8, v8, v9")
        e("v_add_f32 v10, v10, v11")
        e("v_add_f32 v8, v8, v10")
        dpp_sum16(A, 8)
        e("v_mul_f32 v8, s41, v8")
        for i in range(36):
            e(f"v_sub_f32 v{XF+i}, v{XF+i}, v8")
        for k in range(4):
            e(f"v_mul_f32 v{9+k}, v{XF+k}, v{XF+k}")
        for i in range(1, 9):
            for k in range(4):
                e(f"v_fmac_f32 v{9+k}, v{XF+4*i+k}, v{XF+4*i+k}")
        e("v_add_f32 v9, v9, v10")
        e("v_add_f32 v11, v11, v12")
        e("v_add_f32 v9, v9, v11")
        dpp_sum16(A, 9)
        e("v_mov_b32 v10, s42")
        e("v_fmac_f32 v10, s41, v9")
        e("v_rsq_f32 v9, v10")
        e("s_nop 0")
    unpack(XF, XR)
    stats()
    e("s_waitcnt vmcnt(0)")
    for d in range(18):
        e(f"v_lshlrev_b32 v10, 16, v{YR+d}")
        e(f"v_and_b32 v11, s40, v{YR+d}")
        e(f"v_fma_f32 v10, v10, v9, 1.0")
        e(f"v_fma_f32 v11, v11, v9, 1.0")
        e(f"v_fma_f32 v10, v{XF+2*d}, v10, v8")
        e(f"v_fma_f32 v11, v{XF+2*d+1}, v11, v8")
        e(f"v_cvt_pk_bf16_f32 v{XR+d}, v10, v11")
    for i in range(9):
        e(f"buffer_store_dwordx2 {v(XR+2*i,2)}, v5, s[20:23], s{30+i} offen")
    unpack(XF, XR)
    stats()
    for d in range(18):
        e(f"v_mul_f32 v10, v{XF+2*d}, v9")
        e(f"v_mul_f32 v11, v{XF+2*d+1}, v9")
        e(f"v_cvt_pk_bf16_f32 v{YR+d}, v10, v11")
    for i in range(9):
        e(f"buffer_store_dwordx2 {v(YR+2*i,2)}, v5, s[16:19], s{30+i} offen")
    A.label("kl_done")
    e("s_endpgm")
    A.kernel_end(name, 88, 48)


def emit_piece_voffsets(A, vdst, n, vP0, row_stride, tmp=(4, 5, 6, 7, 8)):
    e = A.e
    t0, t1, t2, t3, t4 = tmp
    e("s_movk_i32 s34, 3641")
    e(f"s_movk_i32 s35, {row_stride}")
    for i in range(n):
        e(f"v_add_u32 v{t0}, {256*i}, v{vP0}")
        e(f"v_mul_lo_u32 v{t1}, v{t0}, s34")
        e(f"v_lshrrev_b32 v{t1}, 16, v{t1}")
        e(f"v_mul_u32_u24 v{t2}, 18, v{t1}")
        e(f"v_sub_u32 v{t2}, v{t0}, v{t2}")
        e(f"v_and_b32 v{t3}, 0xfffffff3, v{t1}")
        e(f"v_and_b32 v{t4}, 4, v{t1}")
        e(f"v_lshl_or_b32 v{t3}, v{t4}, 1, v{t3}")
        e(f"v_and_b32 v{t4}, 8, v{t1}")
        e(f"v_lshrrev_b32 v{t4}, 1, v{t4}")
        e(f"v_or_b32 v{t3}, v{t3}, v{t4}")
        e(f"v_mul_lo_u32 v{t3}, v{t3}, s35")
        e(f"v_lshl_add_u32 v{vdst+i}, v{t2}, 4, v{t3}")

def emit_tr_base(A, vdst, vlane, stage, nstage):
    e = A.e
    e(f"""
    v_lshrrev_b32 v6, 5, v{vlane}
    v_lshlrev_b32 v6, 4, v6
    v_bfe_u32 v7, v{vlane}, 4, 1
    v_lshl_add_u32 v6, v7, 2, v6
    v_bfe_u32 v7, v{vlane}, 2, 2
    v_add_u32 v6, v6, v7
    v_mul_u32_u24 v6, 288, v6
    v_and_b32 v7, 3, v{vlane}
    v_lshl_add_u32 v{vdst}, v7, 3, v6
    """)
    for sidx in range(1, nstage):
        e(f"v_add_u32 v{vdst+sidx}, {sidx*stage}, v{vdst}")

KC_UP = 18432
KC_STAGE = 36864
SC1 = " sc1" if os.environ.get("SC1", "1") == "1" else ""
SC1C = {"1": " sc1", "0": "", "nt": " nt", "sc0": " sc0", "sc01": " sc0 sc1"}[os.environ.get("SC1C", "1")]

def emit_d_tail(A, ACC, srd, s_tt, s_nt, s_ks, s_r, s_h, base=None):
    e = A.e
    l0, l1 = A.newlabel("kd_h0"), A.newlabel("kd_hj")
    e(f"""
    s_mul_i32 s33, s28, 9216
    v_lshlrev_b32 v3, 4, v2
    v_add_u32 v4, s33, v3
    s_xor_b32 s34, s28, 4
    s_mul_i32 s34, s34, 9216
    v_add_u32 v5, s34, v3
    """)
    if base is None:
        e("s_barrier")
    else:
        e(f"v_add_u32 v4, {base}, v4")
        e(f"v_add_u32 v5, {base}, v5")
    e(f"""
    s_cmp_eq_u32 s{s_h}, 0
    s_cbranch_scc1 {l0}
    """)
    for j in range(9):
        e(f"ds_write_b128 v4, {v(ACC+4*j,4)} offset:{1024*j}")
    for j in range(9):
        for r in range(4):
            e(f"v_mov_b32 v{ACC+4*j+r}, v{ACC+36+4*j+r}")
    e(f"s_branch {l1}")
    A.label(l0)
    for j in range(9):
        e(f"ds_write_b128 v4, {v(ACC+36+4*j,4)} offset:{1024*j}")
    A.label(l1)
    e("s_waitcnt lgkmcnt(0)")
    e("s_barrier")
    for j in range(9):
        e(f"ds_read_b128 {v(40+4*j,4)}, v5 offset:{1024*j}")
    e(f"""
    s_lshl_b32 s42, s{s_tt}, 2
    s_add_u32 s42, s42, s{s_nt}
    s_lshl_b32 s42, s42, 2
    s_add_u32 s43, s42, s{s_r}
    s_lshl_b32 s43, s43, 2
    s_add_u32 s43, s43, s{s_ks}
    s_mul_i32 s44, s43, 9216
    s_lshl_b32 s33, s{s_h}, 8
    s_add_u32 s44, s44, s33
    v_and_b32 v6, 15, v2
    v_lshlrev_b32 v6, 4, v6
    v_bfe_u32 v7, v2, 4, 1
    v_lshl_add_u32 v8, v7, 10, v6
    v_lshrrev_b32 v24, 5, v2
    v_lshl_add_u32 v8, v24, 9, v8
    v_lshl_add_u32 v6, v24, 9, v6
    v_lshl_add_u32 v6, v7, 3, v6
    s_add_u32 s45, s44, 4096
    s_add_u32 s46, s44, 8192
    """)
    for j in range(9):
        e(f"s_waitcnt lgkmcnt({8-j})")
        e(f"v_pk_add_f32 {v(ACC+4*j,2)}, {v(ACC+4*j,2)}, {v(40+4*j,2)}")
        e(f"v_pk_add_f32 {v(ACC+4*j+2,2)}, {v(ACC+4*j+2,2)}, {v(40+4*j+2,2)}")
        O = 80 + 2 * j
        e(f"v_cvt_pk_bf16_f32 v{O}, v{ACC+4*j}, v{ACC+4*j+1}")
        e(f"v_cvt_pk_bf16_f32 v{O+1}, v{ACC+4*j+2}, v{ACC+4*j+3}")
        if j >= 2 and j % 2 == 0:
            jp = j // 2 - 1
            P_ = 80 + 4 * jp
            e(f"v_permlane16_swap_b32 v{P_}, v{P_+2}")
            e(f"v_permlane16_swap_b32 v{P_+1}, v{P_+3}")
            e(f"buffer_store_dwordx4 {v(P_,4)}, v8, s[{srd}:{srd+3}], s{44+jp//2} offen offset:{2048*(jp%2)} sc1")
    e(f"buffer_store_dwordx2 v[96:97], v6, s[{srd}:{srd+3}], s46 offen sc1")

FLAG_OFF = 4 * S * D * 2
def k_c(A):
    name = "kc_kernel"
    CS_L = 4 * KC_STAGE
    A.launch(name, 256, 512, 4 * KC_STAGE + 2048 + 8192)
    A.kernel_begin(name)
    e = A.e
    XR = 112
    ACC = 64
    WR = 40
    NW = 6
    T, O, CS = 24, 24, 32
    K = 16
    PK = int(os.environ.get("KC_PK", "0"))
    ST = Stamps(A, STAMP in ("kc", "kd2"))
    ST.stamp(); ST.real(0)
    ST.mute = STAMP == "kd2"
    e(f"""
    s_cmp_ge_u32 s2, 256
    s_cbranch_scc1 kc_done
    s_load_dwordx2 s[26:27], s[0:1], {KA_WS}
    s_load_dwordx2 s[4:5], s[0:1], {KA_WD}
    v_lshrrev_b32 v1, 6, v0
    v_and_b32 v2, 63, v0
    v_lshlrev_b32 v3, 4, v2
    v_readfirstlane_b32 s28, v1
    s_and_b32 s33, s2, 7
    s_lshr_b32 s34, s2, 3
    s_lshr_b32 s29, s33, 1
    s_lshl_b32 s29, s29, 3
    s_and_b32 s31, s34, 7
    s_add_u32 s29, s29, s31
    s_and_b32 s30, s33, 1
    s_lshl_b32 s30, s30, 2
    s_lshr_b32 s31, s34, 3
    s_add_u32 s30, s30, s31
    s_lshl_b32 s33, s30, 8
    s_lshl_b32 s34, s28, 5
    s_add_u32 s33, s33, s34
    v_and_b32 v4, 15, v2
    v_add_u32 v4, s33, v4
    v_lshrrev_b32 v5, 4, v2
    v_lshlrev_b32 v5, 15, v5
    v_lshl_add_u32 v9, v4, 4, v5
    s_lshl_b32 s36, s28, 12
    s_mul_i32 s37, s29, {324*1024}
    s_lshl_b32 s31, s28, 10
    s_add_u32 s31, s31, 32768
    s_and_b32 s64, s29, {7 if KC_ROT else 0}
    s_mul_i32 s65, s64, {4096*NP1}
    s_add_u32 s66, s65, s36
    s_add_u32 s67, s65, s31
    s_lshl_b32 s65, s64, 12
    s_add_u32 s68, s65, s36
    s_add_u32 s69, s65, s31
    s_sub_u32 s65, s68, {KC_STAGE}
    s_cmp_ge_u32 s68, {KC_STAGE}
    s_cselect_b32 s68, s65, s68
    s_sub_u32 s65, s69, {KC_STAGE}
    s_cmp_ge_u32 s69, {KC_STAGE}
    s_cselect_b32 s69, s65, s69
    s_add_u32 s68, s68, s37
    s_add_u32 s69, s69, s37
    s_lshl_b32 s70, s64, 18
    s_waitcnt lgkmcnt(0)
    """)
    A.srd_off(8, 26, 27, WS_WP, 2 * D * F * 2)
    A.srd_off(12, 26, 27, WS_H, S * D * 2)
    vm = Cnt(A, "vmcnt", 63)
    lg = Cnt(A, "lgkmcnt", 15)
    issued = set()
    done_st = lambda vm_, iss: iss
    def soff(c, sfirst, slater):
        if c >= NP1:
            e(f"s_add_u32 s38, s{slater}, {c*KC_STAGE}")
        else:
            e(f"s_add_u32 s38, s{sfirst}, {c*KC_STAGE}")
            e(f"s_sub_u32 s65, s38, {NP1*KC_STAGE}")
            e(f"s_cmp_ge_u32 s38, {NP1*KC_STAGE}")
            e("s_cselect_b32 s38, s65, s38")
            e("s_add_u32 s38, s38, s37")
    def dma_ops(c):
        st = c % 4
        def opt():
            lab = A.newlabel("kc_skip")
            e("s_cmp_ge_u32 s28, 4")
            e(f"s_cbranch_scc1 {lab}")
            e(f"s_add_u32 m0, s31, {st*KC_STAGE}")
            soff(c, 67, 69)
            e(f"buffer_load_dwordx4 v3, s[8:11], s38 offen lds")
            A.label(lab)
        ops = [opt, lambda: e(f"s_add_u32 m0, s36, {st*KC_STAGE}"), lambda: soff(c, 66, 68)]
        for i in range(4):
            def ld(i=i):
                e(f"buffer_load_dwordx4 v3, s[8:11], s38 offen offset:{1024*i} lds")
                vm.issue(("W", c))
            ops.append(ld)
        return [("W", c, op) for op in ops]
    def x_ops(sx):
        def so():
            e("s_mov_b32 s40, s70")
            e(f"s_add_u32 s70, s70, {4*32768:#x}")
            e(f"s_cmp_ge_u32 s70, {72*32768:#x}")
            e("s_cselect_b32 s70, 0, s70")
        ops = [so]
        for tt in range(2):
            def ld(tt=tt):
                e(f"buffer_load_dwordx4 {v(XR+8*sx+4*tt,4)}, v9, s[12:15], s40 offen offset:{256*tt}")
                vm.issue(("X", sx))
            ops.append(ld)
        return [("X", sx, op) for op in ops]
    def run_ops(ops):
        for op in ops: op[2]()
    PF8 = int(os.environ.get("PF8", "3"))
    NXP = int(os.environ.get("KC_NXP", "4"))
    NX0 = int(os.environ.get("KC_NX0", "2"))
    run_ops(dma_ops(0))
    for sx in range(NX0): run_ops(x_ops(sx))
    A.srd_off(48, 26, 27, WS_ST2, S * 8)
    e(f"""
    s_lshl_b32 s52, s30, 8
    s_lshl_b32 s53, s29, 3
    s_add_u32 s52, s52, s53
    s_add_u32 s52, s52, s28
    s_lshl_b32 s53, s52, 4
    s_add_u32 s54, s53, {36*32768}
    v_lshlrev_b32 v4, 15, v2
    v_mov_b32 v5, 0x7ffffff0
    v_cmp_gt_u32 s[56:57], 36, v2
    s_lshl_b32 s52, s52, 3
    s_nop 0
    v_cndmask_b32 v4, v5, v4, s[56:57]
    buffer_load_dwordx4 v[{T}:{T+3}], v4, s[12:15], s53 offen
    buffer_load_dwordx4 v[{T+4}:{T+7}], v4, s[12:15], s54 offen
    """)
    vm.issue("row"); vm.issue("row")
    A.srd_off(16, 26, 27, WS_HH, S * F * 2)
    A.srd_off(20, 26, 27, WS_CS, 12 * F * 4)
    e(f"""
    v_and_b32 v4, 31, v2
    v_add_u32 v4, s33, v4
    v_lshrrev_b32 v5, 5, v2
    v_lshlrev_b32 v5, 15, v5
    v_lshl_add_u32 v1, v4, 4, v5
    v_add_u32 v6, {KC_STAGE}, v3
    v_add_u32 v7, {2*KC_STAGE}, v3
    v_add_u32 v8, {3*KC_STAGE}, v3
    v_lshrrev_b32 v10, 4, v2
    v_lshlrev_b32 v10, 4, v10
    v_add_u32 v10, {CS_L}, v10
    s_lshr_b32 s32, s28, 2
    s_mul_i32 s33, s32, {F*4}
    s_mul_i32 s34, s29, 576
    s_add_u32 s33, s33, s34
    v_mov_b32 v5, 0x7ffffff0
    v_cmp_gt_u32 vcc, 36, v2
    s_lshl_b32 s32, s32, 10
    s_add_u32 s32, s32, {CS_L}
    v_cndmask_b32 v13, v5, v3, vcc
    v_add_u32 v11, s32, v3
    s_mov_b32 s55, s33
    s_mov_b32 s47, 0xffff0000
    s_mul_i32 s42, s29, {18*32768}
    """)
    e(f"""
    s_mov_b32 s44, {fbits(1.0/576):#x}
    v_and_b32 v12, 0x7fff, v9
    v_lshrrev_b32 v12, 1, v12
    """)
    def pub_ops():
        L = [lambda: vm.need("row")]
        q = lambda s_: L.append(lambda: e(s_))
        def wave_sum(r, t):
            for sh in (8, 4, 2, 1):
                q(f"s_nop 1\nv_add_f32_dpp v{r}, v{r}, v{r} row_ror:{sh} row_mask:0xf bank_mask:0xf")
            for op in ("v_permlane16_swap_b32", "v_permlane32_swap_b32"):
                q(f"v_mov_b32 v{t}, v{r}")
                q(f"s_nop 1\n{op} v{r}, v{t}")
                q(f"v_add_f32 v{r}, v{r}, v{t}")
        for d in range(8):
            q(f"v_lshlrev_b32 v{K+4+(d&1)*2}, 16, v{T+d}")
            q(f"v_and_b32 v{K+5+(d&1)*2}, s47, v{T+d}")
            if d == 0:
                q(f"v_add_f32 v{K}, v{K+4}, v{K+5}")
            else:
                q(f"v_add_f32 v{K}, v{K}, v{K+4+(d&1)*2}")
                q(f"v_add_f32 v{K}, v{K}, v{K+5+(d&1)*2}")
        wave_sum(K, K + 1)
        q(f"v_mul_f32 v{K}, s44, v{K}")
        q(f"v_mov_b32 v{K+2}, 0")
        for d in range(8):
            u = K + 4 + (d & 1) * 2
            q(f"v_lshlrev_b32 v{u}, 16, v{T+d}")
            q(f"v_and_b32 v{u+1}, s47, v{T+d}")
            q(f"v_sub_f32 v{u}, v{u}, v{K}")
            q(f"v_sub_f32 v{u+1}, v{u+1}, v{K}")
            q(f"v_fmac_f32 v{K+2}, v{u}, v{u}")
            q(f"v_fmac_f32 v{K+2}, v{u+1}, v{u+1}")
        q(f"v_cndmask_b32 v{K+2}, 0, v{K+2}, s[56:57]")
        wave_sum(K + 2, K + 3)
        q(f"v_mov_b32 v{K+1}, {fbits(1e-5):#x}")
        q(f"v_fmac_f32 v{K+1}, s44, v{K+2}")
        q("v_mov_b32 v4, 0")
        def st():
            e("s_mov_b64 exec, 1")
            e(f"buffer_store_dwordx2 v[{K}:{K+1}], v4, s[48:51], s52 offen sc1")
            e("s_mov_b64 exec, -1")
            vm.issue("pub", "S")
        L.append(st)
        return L
    RB = [3, 6, 7, 8]
    def finfo(f):
        b = f // 36
        if b < NP1: return (f // (2 * NP1), (f % (2 * NP1)) >> 1, f & 1)
        return ((f % 36) // 2, b, f & 1)
    def wread(f):
        e(f"ds_read_b128 {v(WR+4*(f%NW),4)}, v{RB[(f//36)%4]} offset:{1024*(f%36)}")
        lg.issue(("w", f))
    def stat_ops(sx):
        ops = []
        for tt in range(2):
            for d in range(4):
                r = XR + 8 * sx + 4 * tt + d
                k = K + 4 * tt
                ops.append(lambda r=r: e(f"v_lshlrev_b32 v4, 16, v{r}"))
                ops.append(lambda r=r: e(f"v_and_b32 v5, s47, v{r}"))
                ops.append(lambda k=k: e(f"v_add_f32 v{k}, v{k}, v4"))
                ops.append(lambda k=k: e(f"v_add_f32 v{k+1}, v{k+1}, v5"))
                ops.append(lambda k=k: e(f"v_fmac_f32 v{k+2}, v4, v4"))
                ops.append(lambda k=k: e(f"v_fmac_f32 v{k+3}, v5, v5"))
        return ops
    c0 = -2.0 * math.sqrt(2.0 / math.pi) * math.log2(math.e)
    c1 = c0 * 0.044715
    def statld_ops():
        L = []
        for tt in range(2):
            def ld(tt=tt):
                e(f"buffer_load_dwordx2 v[{K+4*tt}:{K+4*tt+1}], v12, s[48:51], 0 offen offset:{128*tt} sc1")
                vm.issue("stat")
            L.append(ld)
        return L
    def statfin_ops():
        L = []
        q = lambda s_: L.append(lambda: e(s_))
        def chk():
            vm.need("stat")
            e(f"v_cmp_eq_u32 vcc, -1, v{K+1}")
            e(f"v_cmp_eq_u32 s[58:59], -1, v{K+5}")
            e("s_nop 1")
            e("s_or_b64 vcc, vcc, s[58:59]")
            e("s_cbranch_vccnz kc_slowstat" if not os.environ.get("KC_FORCESLOW") else "s_branch kc_slowstat")
            A.label("kc_statok")
        L.append(chk)
        q(f"s_mov_b32 s45, {fbits(c0):#x}")
        q(f"s_mov_b32 s46, {fbits(c1):#x}")
        for tt in range(2):
            k = K + 4 * tt
            q(f"v_rsq_f32 v{k+2}, v{k+1}")
            q(f"v_sub_f32 v{k}, 0, v{k}")
            q(f"v_mul_f32 v{k+3}, v{k+2}, v{k+2}")
            q(f"v_mul_f32 v{k+3}, v{k+3}, v{k+2}")
            q(f"v_mul_f32 v{k+3}, s46, v{k+3}")
            q(f"v_mul_f32 v{k+2}, s45, v{k+2}")
        return L
    def slowstat():
        A.label("kc_slowstat")
        for r in range(8): e(f"v_mov_b32 v{K+r}, 0")
        for sx in range(18):
            for op in stat_ops(sx): op()
        R4 = [K, K + 2, K + 4, K + 6]
        for r in R4: e(f"v_add_f32 v{r}, v{r}, v{r+1}")
        for op in ("v_permlane32_swap_b32", "v_permlane16_swap_b32"):
            for r in R4: e(f"v_mov_b32 v{r+1}, v{r}")
            e("s_nop 1")
            for r in R4: e(f"{op} v{r}, v{r+1}")
            for r in R4: e(f"v_add_f32 v{r}, v{r}, v{r+1}")
        for tt in range(2):
            k = K + 4 * tt
            e(f"v_mul_f32 v{k}, s44, v{k}")
            e(f"v_mul_f32 v{k+1}, s44, v{k+2}")
            e(f"v_fma_f32 v{k+1}, -v{k}, v{k}, v{k+1}")
            e(f"v_max_f32 v{k+1}, 0, v{k+1}")
            e(f"v_add_f32 v{k+1}, {fbits(1e-5):#x}, v{k+1}")
        e("s_branch kc_statok")
    def cs_rd(j):
        if j > 8: return
        e(f"ds_read_b128 {v(CS,4)}, v10 offset:{64*j}"); lg.issue(("cs", j))
        e(f"ds_read_b128 {v(CS+4,4)}, v10 offset:{1024+64*j}"); lg.issue(("cs", j))
    def epi_ops(j):
        L = []
        q = lambda s_: L.append(lambda: e(s_))
        g0 = ACC + 16 * (j % 3)
        L.append(lambda: lg.need(("cs", j)))
        kk = lambda r: K + 4 * (r // 4)
        P = lambda r: v(r, 2)
        stages = [
            (0, lambda r: [f"v_fmac_f32 v{g0+r}, v{CS+(r%4)}, v{kk(r)}", f"v_fmac_f32 v{g0+8+r}, v{CS+4+(r%4)}, v{kk(r)}"]),
            (1, lambda r: [f"v_mul_f32 v{T+r}, v{g0+r}, v{g0+r}"]),
            (2, lambda r: [f"v_fma_f32 v{T+r}, v{T+r}, v{kk(r)+3}, v{kk(r)+2}"]),
            (3, lambda r: [f"v_mul_f32 v{T+r}, v{T+r}, v{g0+r}"]),
            (4, lambda r: [f"v_exp_f32 v{T+r}, v{T+r}", f"v_mul_f32 v{g0+r}, v{g0+r}, v{g0+8+r}"]),
            (5, lambda r: [f"v_fma_f32 v{T+r}, v{T+r}, v{kk(r)+1}, v{kk(r)+1}"]),
            (6, lambda r: [f"v_rcp_f32 v{T+r}, v{T+r}"]),
            (7, lambda r: [f"v_mul_f32 v{g0+r}, v{g0+r}, v{T+r}"]),
        ]
        order = [6, 0, 1, 7, 4, 2, 3, 5]
        for k_ in range(8 + 7):
            for si in order:
                off, fn = stages[si]
                r = k_ - off
                if 0 <= r < 8:
                    for s_ in fn(r): q(s_)
            if k_ == 7: L.append(lambda: cs_rd(j + 1))
            if k_ == 13: q("s_nop 0")
        for d in range(4): q(f"v_cvt_pk_bf16_f32 v{O+d}, v{g0+2*d}, v{g0+2*d+1}")
        q(f"s_add_u32 s43, s42, {2*j*32768}")
        q("s_nop 0")
        q(f"v_permlane16_swap_b32 v{O}, v{O+2}")
        q(f"v_permlane16_swap_b32 v{O+1}, v{O+3}")
        def st_():
            e(f"buffer_store_dwordx4 {v(O,4)}, v1, s[16:19], s43 offen{SC1C}")
            vm.issue(("st", j), "S"); issued.add(("st", j))
        L.append(st_)
        q("s_nop 0")
        return L
    def wd_setup_ops():
        L = []
        q = lambda s_: L.append(lambda: e(s_))
        for s_ in f"""s_mov_b32 s6, {F*D*2:#x}
        s_mov_b32 s7, 0x00020000
        s_add_u32 s60, s26, {WS_WDP:#x}
        s_addc_u32 s61, s27, 0
        s_mov_b32 s62, {F*D*2:#x}
        s_mov_b32 s63, 0x00020000
        s_lshl_b32 s24, s2, 3
        s_add_u32 s24, s24, s28
        s_mul_i32 s25, s24, 7282
        s_lshr_b32 s25, s25, 16
        s_mul_i32 s39, s25, 9
        s_sub_u32 s24, s24, s39
        s_mul_i32 s39, s25, 36864
        s_lshl_b32 s41, s24, 7
        s_add_u32 s39, s39, s41
        s_mul_i32 s41, s25, 1821
        s_lshr_b32 s41, s41, 16
        s_mul_i32 s52, s41, 36
        s_sub_u32 s25, s25, s52
        s_mul_i32 s41, s41, {4*36*9}
        s_mul_i32 s25, s25, 9
        s_add_u32 s41, s41, s25
        s_lshl_b32 s24, s24, 2
        v_lshrrev_b32 v4, 3, v2
        v_mul_u32_u24 v4, 1152, v4
        v_and_b32 v5, 7, v2
        v_lshl_add_u32 v13, v5, 4, v4
        v_lshrrev_b32 v4, 4, v2
        v_lshlrev_b32 v4, 3, v4
        v_bfe_u32 v5, v2, 2, 2
        v_add_u32 v4, v4, v5
        v_lshlrev_b32 v4, 7, v4
        v_and_b32 v5, 3, v2
        v_lshl_add_u32 v14, v5, 3, v4
        v_add_u32 v14, s36, v14""".split("\n"):
            q(s_.strip())
        L[2:4] = [lambda: (e(f"s_add_u32 s60, s26, {WS_WDP:#x}"), e("s_addc_u32 s61, s27, 0"))]
        for q4 in range(4):
            d = 52 + q4
            q(f"s_add_u32 s25, s24, {q4}")
            q(f"s_mul_i32 s{d}, s25, 7282")
            q(f"s_lshr_b32 s{d}, s{d}, 16")
            q(f"s_mul_i32 s{d}, s{d}, {36*9-9}")
            q(f"s_add_u32 s{d}, s{d}, s25")
            q(f"s_add_u32 s{d}, s{d}, s41")
            q(f"s_lshl_b32 s{d}, s{d}, 10")
        return L
    def wd_dma_ops():
        ops = []
        for i in range(4):
            ops.append(lambda i=i: e(f"s_add_u32 m0, s36, {KC_STAGE + 1024*i}"))
            def ld(i=i):
                e(f"buffer_load_dwordx4 v13, s[4:7], s39 offen lds")
                e(f"s_add_u32 s39, s39, {8*1152}")
                vm.issue("wd")
            ops.append(ld)
        return [("P", 99, op) for op in ops]
    def wd_pack_ops():
        L = [lambda: vm.need("wd")]
        for q4 in range(4):
            def rd(q4=q4):
                e(f"ds_read_b64_tr_b16 {v(ACC+4*q4,2)}, v14 offset:{KC_STAGE+32*q4}"); lg.issue(("wdr", q4))
                e(f"ds_read_b64_tr_b16 {v(ACC+4*q4+2,2)}, v14 offset:{KC_STAGE+32*q4+512}"); lg.issue(("wdr", q4))
            L.append(rd)
        L += [lambda: None] * 12
        for q4 in range(4):
            def st(q4=q4):
                lg.need(("wdr", q4))
                e(f"buffer_store_dwordx4 {v(ACC+4*q4,4)}, v3, s[60:63], s{52+q4} offen{SCP}")
                vm.issue("wds", "S")
            L.append(st)
        return L
    DA, DH, DACC, DWR, DNW, DNH = 112, 128, 184, 44, 8, 6
    PK_L = CS_L + 2048
    def d_salu_ops():
        L = []
        q = lambda s_: L.append(lambda: e(s_))
        for s_ in f"""s_mov_b32 s6, {F*D*2:#x}
        s_mov_b32 s7, 0x00020000
        s_mov_b32 s62, {FLAG_OFF+8192+1024+32768:#x}
        s_mov_b32 s63, 0x00020000
        s_mov_b32 s22, {F*D*2:#x}
        s_and_b32 s24, s2, 7
        s_lshr_b32 s25, s2, 3
        s_lshr_b32 s52, s24, 1
        s_and_b32 s24, s24, 1
        s_lshl_b32 s24, s24, 3
        s_lshr_b32 s53, s25, 2
        s_add_u32 s53, s53, s24
        s_and_b32 s54, s25, 3
        s_and_b32 s56, s28, 3
        s_lshr_b32 s57, s28, 2
        s_lshl_b32 s24, s52, 2
        s_add_u32 s24, s24, s54
        s_mul_i32 s39, s24, {324*1024}
        s_lshl_b32 s24, s24, 6
        s_add_u32 s32, s24, {FLAG_OFF+8192}
        s_lshl_b32 s24, s53, 2
        s_add_u32 s33, s32, s24
        s_mul_i32 s41, s52, {144*32768}
        s_mul_i32 s24, s57, {36*32768}
        s_add_u32 s41, s41, s24
        s_lshl_b32 s24, s30, 3
        s_add_u32 s24, s24, s28
        s_lshl_b32 s24, s24, 5
        s_add_u32 s24, s24, s29
        s_lshl_b32 s24, s24, 2
        s_add_u32 s55, s24, {FLAG_OFF}
        s_lshl_b32 s24, s53, 7
        s_lshl_b32 s25, s52, 3
        s_add_u32 s24, s24, s25
        s_lshl_b32 s24, s24, 2
        s_add_u32 s71, s24, {FLAG_OFF}
        s_lshl_b32 s24, s53, 3
        s_add_u32 s24, s24, s28
        s_mul_i32 s35, s24, 3072
        s_add_u32 s35, s35, s39
        s_mul_i32 s25, s24, 171
        s_lshr_b32 s25, s25, 9
        s_mul_i32 s34, s25, 3
        s_sub_u32 s34, s24, s34
        s_mul_i32 s34, s34, 96
        s_mul_i32 s64, s54, 288
        s_add_u32 s34, s34, s64
        s_lshr_b32 s64, s25, 2
        s_and_b32 s25, s25, 3
        s_mul_i32 s25, s25, 288
        s_lshl_b32 s64, s64, 4
        s_add_u32 s25, s25, s64
        s_mul_i32 s64, s52, 1152
        s_add_u32 s25, s25, s64
        s_mul_i32 s25, s25, 1152
        s_add_u32 s34, s34, s25""".split("\n"):
            q(s_.strip())
        L.append(lambda: (e("s_cmp_ge_u32 s24, 108"), e(f"s_cselect_b32 s34, {F*D*2:#x}, s34"), e(f"s_cselect_b32 s35, {F*D*2:#x}, s35")))
        L.append(lambda: (e(f"s_add_u32 s60, s26, {WS_PART:#x}"), e("s_addc_u32 s61, s27, 0")))
        L.append(lambda: (e(f"s_add_u32 s20, s26, {WS_WDP:#x}"), e("s_addc_u32 s21, s27, 0")))
        return L
    def pk_addr_ops():
        L = []
        q = lambda s_: L.append(lambda: e(s_))
        for s_ in f"""v_lshrrev_b32 v4, 5, v2
        v_mul_u32_u24 v4, 144, v4
        v_bfe_u32 v5, v2, 1, 4
        v_add_u32 v4, v4, v5
        v_mul_u32_u24 v4, 1152, v4
        v_and_b32 v5, 1, v2
        v_lshl_add_u32 v9, v5, 4, v4
        v_lshrrev_b32 v4, 4, v2
        v_lshlrev_b32 v4, 3, v4
        v_bfe_u32 v5, v2, 2, 2
        v_add_u32 v4, v4, v5
        v_lshlrev_b32 v4, 5, v4
        v_and_b32 v5, 3, v2
        v_lshl_add_u32 v4, v5, 3, v4
        s_lshl_b32 s64, s28, 10
        s_add_u32 s64, s64, {PK_L}
        v_add_u32 v11, s64, v4""".split("\n"):
            q(s_.strip())
        return L
    def prefill_ops():
        L = []
        q = lambda s_: L.append(lambda: e(s_))
        for r in range(12, 16): q(f"v_mov_b32 v{r}, -1")
        for s_ in f"""s_lshl_b32 s24, s53, 2
        s_add_u32 s24, s24, s54
        s_lshl_b32 s24, s24, 2
        s_add_u32 s24, s24, s56
        s_lshl_b32 s24, s24, 2
        s_add_u32 s24, s24, s52
        s_mul_i32 s24, s24, 9216
        s_lshl_b32 s25, s57, 12
        s_add_u32 s24, s24, s25
        s_add_u32 s25, s24, 4096""".split("\n"):
            q(s_.strip())
        for i in range(5):
            def st(i=i):
                e(f"buffer_store_dwordx4 v[12:15], v3, s[60:63], s{24 if i < 4 else 25} offen offset:{1024*(i%4)} sc1")
                vm.issue("pf", "S")
            L.append(st)
        return L
    def pk_touch_ops():
        L = []
        q = lambda s_: L.append(lambda: e(s_))
        for s_ in f"""v_lshrrev_b32 v4, 5, v2
        v_mul_u32_u24 v4, 144, v4
        v_bfe_u32 v5, v2, 1, 4
        v_add_u32 v4, v4, v5
        v_mul_u32_u24 v4, 1152, v4
        v_and_b32 v5, 1, v2
        v_mul_u32_u24 v5, 92, v5
        v_add_u32 v{T}, v5, v4""".split("\n"):
            q(s_.strip())
        def ld():
            e(f"buffer_load_dword v{T+1}, v{T}, s[4:7], s34 offen")
            vm.issue("pkt")
        L.append(ld)
        return L
    def pk_dma_ops(i):
        def ld():
            e("s_mov_b32 m0, s64")
            e("s_nop 0")
            e(f"buffer_load_dwordx4 v9, s[4:7], s34 offen lds")
            e("s_add_u32 s34, s34, 32")
            vm.issue(("pkd", i))
        return [("P", 99, ld)]
    def pk_rd_ops(i):
        def rd():
            vm.need(("pkd", i))
            e("ds_read_b64_tr_b16 v[12:13], v11"); lg.issue(("pkr", i))
            e("ds_read_b64_tr_b16 v[14:15], v11 offset:128"); lg.issue(("pkr", i))
        def st():
            lg.need(("pkr", i))
            e(f"buffer_store_dwordx4 v[12:15], v3, s[20:23], s35 offen offset:{1024*i} sc1")
            vm.issue(("pks", i), "S"); issued.add(("pks", i))
            if i < 2: mem.extend(pk_dma_ops(i + 1))
        return [rd], [st]
    def publish(level):
        e(f"v_mov_b32 v4, {level}")
        e("v_mov_b32 v5, 0")
        e("s_mov_b64 exec, 1")
        e("buffer_store_dword v4, v5, s[60:63], s55 offen sc1")
        e("s_mov_b64 exec, -1")
        vm.issue("prog", "S")
    def retired_level():
        lv = 0
        while ("st", lv) in issued and ("st", lv) not in vm.q: lv += 1
        return lv
    def d_valu_ops():
        L = []
        q = lambda s_: L.append(lambda: e(s_))
        for s_ in f"""s_lshl_b32 s24, s53, 7
        s_lshl_b32 s25, s56, 5
        s_add_u32 s24, s24, s25
        v_and_b32 v4, 15, v2
        v_add_u32 v4, s24, v4
        v_lshrrev_b32 v5, 5, v2
        v_mul_u32_u24 v5, 18, v5
        v_bfe_u32 v{DA}, v2, 4, 1
        v_add_u32 v5, v5, v{DA}
        v_lshlrev_b32 v5, 15, v5
        v_lshl_add_u32 v{DA+5}, v4, 4, v5
        s_mul_i32 s24, s57, 9216
        v_add_u32 v{DA+6}, s24, v3
        v_add_u32 v{DA+7}, s24, v6
        v_add_u32 v{DA+8}, s24, v7
        v_add_u32 v{DA+9}, s24, v8
        s_add_u32 s68, s39, s36
        s_add_u32 s69, s39, s31""".split("\n"):
            q(s_.strip())
        return L
    def d_dma_ops(c):
        st = (c + 1) % 4
        def opt():
            lab = A.newlabel("kc_skip")
            e("s_cmp_ge_u32 s28, 4")
            e(f"s_cbranch_scc1 {lab}")
            e(f"s_add_u32 m0, s31, {st*KC_STAGE}")
            e(f"s_add_u32 s38, s69, {c*KC_STAGE}")
            e(f"buffer_load_dwordx4 v3, s[20:23], s38 offen sc1 lds")
            A.label(lab)
        ops = [opt, lambda: e(f"s_add_u32 m0, s36, {st*KC_STAGE}"), lambda: e(f"s_add_u32 s38, s68, {c*KC_STAGE}")]
        for i in range(4):
            def ld(i=i):
                e(f"buffer_load_dwordx4 v3, s[20:23], s38 offen offset:{1024*i} sc1 lds")
                vm.issue(("DW", c))
            ops.append(ld)
        return [("DW", c, op) for op in ops]
    def d_h_ops(sx):
        c, hlf = divmod(sx, 2)
        sr = [40, 70, 65, 66][sx % 4]
        ops = [lambda: e(f"s_add_u32 s{sr}, s41, {(72*hlf + 2*c)*32768:#x}")]
        for tt in range(2):
            def ld(tt=tt):
                e(f"buffer_load_dwordx4 {v(DH+8*(sx%DNH)+4*tt,4)}, v{DA+5}, s[16:19], s{sr} offen offset:{256*tt} sc1")
                vm.issue(("H", sx))
            ops.append(ld)
        return [("H", sx, op) for op in ops]
    FV, FX = 12, 13
    def flag_addr_ops():
        L = []
        q = lambda s_: L.append(lambda: e(s_))
        for s_ in f"""v_and_b32 v4, 7, v2
        v_bfe_u32 v5, v2, 3, 2
        v_lshlrev_b32 v5, 5, v5
        v_add_u32 v4, v4, v5
        v_lshlrev_b32 v4, 2, v4
        v_add_u32 v4, s71, v4
        v_and_b32 v5, 15, v2
        v_lshlrev_b32 v5, 2, v5
        v_add_u32 v5, s32, v5
        v_cmp_gt_u32 vcc, 32, v2
        s_nop 1
        v_cndmask_b32 v{FV}, v5, v4, vcc
        s_lshl_b32 s24, s54, 6
        s_lshl_b32 s25, s53, 2
        s_add_u32 s24, s24, s25
        s_add_u32 s24, s24, {FLAG_OFF+8192}
        v_and_b32 v4, 3, v2
        v_lshlrev_b32 v4, 8, v4
        v_add_u32 v4, s24, v4
        v_cmp_gt_u32 vcc, 48, v2
        s_nop 1
        v_cndmask_b32 v{FV}, v4, v{FV}, vcc""".split("\n"):
            q(s_.strip())
        return L
    mark = [0]
    def flag_ld():
        lab = A.newlabel("kc_fl")
        e("s_cmp_lg_u32 s28, 0")
        e(f"s_cbranch_scc1 {lab}")
        e(f"buffer_load_dword v{FX}, v{FV}, s[60:63], 0 offen sc1")
        A.label(lab)
        mark[0] = vm.total
    spins = []
    def flag_chk(level):
        ok, sp = A.newlabel("kc_fok"), A.newlabel("kc_spin")
        e("s_cmp_lg_u32 s28, 0")
        e(f"s_cbranch_scc1 {ok}")
        e(f"s_waitcnt vmcnt({min(vm.total - mark[0], 63)})")
        e(f"v_cmp_gt_u32 vcc, {level}, v{FX}")
        e("s_nop 1")
        e(f"s_cbranch_vccnz {sp}")
        A.label(ok)
        spins.append((ok, sp, level))
    def emit_spins():
        for ok, sp, level in spins:
            A.label(sp)
            e("s_mov_b32 s67, 0")
            lp = A.newlabel("kc_sl")
            A.label(lp)
            e(f"""
            buffer_load_dword v{FX}, v{FV}, s[60:63], 0 offen sc1
            s_add_u32 s67, s67, 1
            s_waitcnt vmcnt(0)
            v_cmp_gt_u32 vcc, {level}, v{FX}
            s_cmp_ge_u32 s67, 0x8000
            s_cbranch_scc1 {ok}
            s_cbranch_vccnz {lp}
            s_branch {ok}
            """)
    def cs_ld_ops(grp):
        L = []
        dst = [CS, CS + 4, T] if grp == 0 else [CS + 4, T, T + 4]
        for i in range(3):
            def ld(i=i):
                e(f"buffer_load_dwordx4 {v(dst[i],4)}, v13, s[20:23], s55 offen")
                e(f"s_add_u32 s55, s55, {2*F*4}")
                vm.issue(("cs", grp))
            L.append(ld)
        return L
    def cs_add_ops(grp):
        L = [lambda: vm.need(("cs", grp))]
        for sr in ([CS + 4, T] if grp == 0 else [CS + 4, T, T + 4]):
            for r in range(4): L.append(lambda r=r, sr=sr: e(f"v_add_f32 v{CS+r}, v{CS+r}, v{sr+r}"))
        if grp == 1:
            def w():
                e(f"ds_write_b128 v11, {v(CS,4)}"); lg.issue("csw"); issued.add("csw")
            L.append(w)
        return L
    ST.stamp()
    if int(os.environ.get("KC_PRIO", "0")):
        lab = A.newlabel("kc_prio")
        e("s_cmp_lt_u32 s28, 4")
        e(f"s_cbranch_scc1 {lab}")
        e("s_setprio 1")
        A.label(lab)
    vm.need(("W", 0))
    e("s_barrier")
    ST.stamp()
    NF = 324
    AHEAD = NW - 1
    KC_D1 = int(os.environ.get("KC_D1", "1"))
    mem = dma_ops(1) + ([] if KC_D1 else dma_ops(2))
    val = [lambda: None] * 16 + pub_ops()
    nr = 0
    F1 = 36 * NP1
    def flush(kind, idx):
        while any(p[0] == kind and p[1] <= idx for p in mem):
            mem.pop(0)[2]()
    def next_read():
        nonlocal nr, mem
        if nr >= NF: return
        if nr % 36 == 0 and nr > 0:
            c = nr // 36
            lg.drain()
            flush("W", c)
            vm.need(("W", c))
            if FUSE and c == 6:
                assert ("pks", 2) in issued
                vm.need(("pks", 2))
            if FUSE and c >= 6: vm.need(("st", c - 3))
            if FUSE and c == 8: flag_chk(4)
            e("s_barrier")
            ST.stamp()
            if c == NP1 - 1: assert "csw" in issued
            if KC_D1 and c <= NP1: mem += dma_ops(c + 1)
            if c + 2 < 9 and (not KC_D1 or c >= NP1): mem += dma_ops(c + 2)
            if not FUSE:
                if c == 7: mem += wd_dma_ops()
            else:
                if c >= 6: publish(retired_level())
                if c == 6:
                    lab = A.newlabel("kc_pkf")
                    e("s_cmp_lg_u32 s28, 0")
                    e(f"s_cbranch_scc1 {lab}")
                    e("v_mov_b32 v4, 15")
                    e("s_mov_b64 exec, 1")
                    e("buffer_store_dword v4, v5, s[60:63], s33 offen sc1")
                    e("s_mov_b64 exec, -1")
                    A.label(lab)
        wread(nr); nr += 1
    for _ in range(AHEAD): next_read()
    xq = []
    for sx in range(NX0, NXP): xq += x_ops(sx)
    for f in range(NF):
        s_, j, m = finfo(f)
        if f < F1 and f % (2 * NP1) == 0:
            while any(p[1] <= s_ for p in xq): xq.pop(0)[2]()
            vm.need(("X", s_))
            if s_ + NXP < 18: xq += x_ops(s_ + NXP)
            if s_ == 1: val += cs_ld_ops(0)
            if s_ == 7: val += cs_add_ops(0) + cs_ld_ops(1)
            if s_ == 10: val += cs_add_ops(1)
            if s_ == 11: val += (d_salu_ops() + pk_touch_ops()) if FUSE else wd_setup_ops()
            if s_ == 14: val += statld_ops()
            if s_ == 17: val += [lambda: cs_rd(0)] + statfin_ops()
        if f == F1:
            if NP1 == 3:
                while val: val.pop(0)()
                e("s_nop 3")
                for op in epi_ops(0): op()
                val += epi_ops(1) + epi_ops(2)
            else:
                val += [lambda: None] * 4 + epi_ops(0) + epi_ops(1)
        if f > F1 and f % 36 == 2 and f // 36 > NP1:
            ep = epi_ops(f // 36 - 1)
            if f // 36 == 8 and not FUSE:
                wp = wd_pack_ops()
                ep = ep[:60] + wp[:5] + ep[60:] + wp[17:]
            val += ep
        if FUSE and f in (F1 + 30, F1 + 56, F1 + 82):
            rd_, st_2 = pk_rd_ops((f - F1 - 30) // 26)
            val = rd_ + val[:8] + st_2 + val[8:]
        if FUSE and f == 216 + 4: val = flag_addr_ops() + val
        if FUSE and f == 252 + 8: val = [flag_ld] + val
        if FUSE and f == F1 + 2:
            val = pk_addr_ops() + [lambda: mem.extend(pk_dma_ops(0))] + (prefill_ops() if SENT else []) + val
        if f >= 108 and f % 36 == 0:
            need = ("st", f // 36 - 3)
            while need not in issued:
                val.pop(0)()
        if FUSE and f == 288 + 4:
            dv = d_valu_ops()
            val = dv + [lambda: xq.extend(d_dma_ops(0) + (d_dma_ops(1) if PF8 >= 2 else []))] + val
        if FUSE and f == 288 + 17:
            for sx in range(2 * PF8): xq.extend(d_h_ops(sx))
        if f % 2 == 0: lg.need(("w", f + 1))
        for tt in range(2):
            c_ = v(ACC + 16 * (j % 3) + 8 * m + 4 * tt, 4)
            src_c = "0" if s_ == 0 else c_
            e(f"v_mfma_f32_16x16x32_bf16 {c_}, {v(WR+4*(f%NW),4)}, {v(XR+8*s_+4*tt,4)}, {src_c}")
            if tt == 0: next_read()
            if tt == 1 or f < 12 or (FUSE and f >= 288):
                if xq: xq.pop(0)[2]()
                elif mem: mem.pop(0)[2]()
            if f < F1: nv = 2
            else:
                rem = (36 - f % 36) * 2 - tt
                nv = min(-(-len(val) // max(rem - 6, 1)), 3 if f < F1 + 72 else 99)
                if f < F1 + 72: nv = min(nv, 2)
                if FUSE and 288 + 4 <= f < 288 + 9: nv = 3
            for _ in range(nv):
                if val: val.pop(0)()
    ST.mute = False
    ST.stamp()
    while val: val.pop(0)()
    if not FUSE:
        e("s_nop 7")
        for op in epi_ops(8): op()
        assert not mem
        ST.stamp()
        if ST.on: e("s_waitcnt vmcnt(0)")
        ST.stamp(); ST.real(1)
        ST.dump(8)
        A.label("kc_done")
        e("s_endpgm")
        slowstat()
        A.kernel_end(name, 256, 102 if ST.on else 72)
        return
    while xq: xq.pop(0)[2]()
    while mem: mem.pop(0)[2]()
    flag_ld()
    for op in epi_ops(8): op()
    val = []
    pend = []
    for c_ in range(PF8, 3):
        if c_ >= 2 or c_ >= PF8: pend += d_dma_ops(c_)
        pend += d_h_ops(2 * c_) + d_h_ops(2 * c_ + 1)
    if PF8 == 3: pend = d_dma_ops(2)
    DNF = 18 * 9
    DHOLD = int(os.environ.get("DHOLD", "10"))
    DAH = 6
    nh = 0
    def dflush(kind, idx):
        while any(p[0] == kind and p[1] <= idx for p in pend):
            pend.pop(0)[2]()
    def d_read(h):
        f, hf = divmod(h, 2)
        st_, j = divmod(f, 9)
        c, ks = divmod(st_, 2)
        r = DWR + 4 * (f % DNW)
        if hf: return
        e(f"ds_read_b128 {v(r,4)}, v{DA+6+(c+1)%4} offset:{18432*ks + 1024*j}")
        lg.issue(("dw", f))
    def d_next_read():
        nonlocal nh, pend
        if nh >= 2 * DNF: return
        if nh % 36 == 0:
            c = nh // 36
            lg.drain()
            dflush("DW", c)
            vm.need(("DW", c))
            if c in (1, 4): flag_chk({1: 6, 4: 9}[c])
            e("s_barrier")
            if c == 4: pend = defer + pend
            if STAMP == "kd2": ST2.stamp()
            if c + 3 < 9: pend += d_dma_ops(c + 3)

        d_read(nh); nh += 1
    defer = []
    ST2 = ST
    for _ in range(2 * DAH): d_next_read()
    for f in range(DNF):
        st_, j = divmod(f, 9)
        if j == 0:
            dflush("H", st_)
            vm.need(("H", st_))
        if f == 44: flag_ld()
        if f % 2 == 0:
            lg.need(("dw", min(f + 1, DNF - 1)))
        for tt in range(2):
            c_ = v(DACC + 36 * tt + 4 * j, 4)
            src_c = "0" if st_ == 0 else c_
            e(f"v_mfma_f32_16x16x32_bf16 {c_}, {v(DWR+4*(f%DNW),4)}, {v(DH+8*(st_%DNH)+4*tt,4)}, {src_c}")
            d_next_read()
            if f == DHOLD and tt == 0:
                vm.drain()
                publish(9)
            if pend and f >= DHOLD and (tt == 1 or f < 40): pend.pop(0)[2]()
            if f >= 2:
                for _ in range(3):
                    if val: val.pop(0)()
        if j == 8 and st_ + DNH < 18:
            nx = st_ + DNH
            if nx == 12:
                defer.extend(d_h_ops(nx)); continue

            pend = d_h_ops(nx) + pend
    assert not pend and not val
    ST.n = 12
    ST.stamp()
    emit_d_tail(A, DACC, 60, 53, 54, 52, 56, 57, base=2 * KC_STAGE)
    if FUSE_E and SENT:
        e(f"""
        s_cmp_ge_u32 s28, 5
        s_cbranch_scc1 kc_fin
        s_load_dwordx2 s[4:5], s[0:1], {KA_OUT}
        v_lshlrev_b32 v20, 4, v0
        v_lshrrev_b32 v4, 5, v0
        v_and_b32 v5, 31, v0
        s_lshl_b32 s33, s53, 7
        s_lshl_b32 s34, s52, 5
        s_add_u32 s33, s33, s34
        v_add_u32 v5, s33, v5
        s_mul_i32 s34, s54, 18
        v_add_u32 v4, s34, v4
        v_lshlrev_b32 v21, 15, v4
        v_lshl_add_u32 v21, v5, 4, v21
        s_movk_i32 s35, 1152
        v_mul_lo_u32 v22, v5, s35
        v_lshl_add_u32 v22, v4, 4, v22
        v_cmp_gt_u32 vcc, 288, v0
        s_and_saveexec_b64 s[58:59], vcc
        s_mov_b32 s34, {9*32768}
        buffer_load_dwordx4 v[28:31], v21, s[12:15], 0 offen
        buffer_load_dwordx4 v[32:35], v21, s[12:15], s34 offen
        s_add_u32 s47, s42, s52
        s_mul_i32 s47, s47, {4*9216}
        s_mov_b32 s6, {S*D*2:#x}
        s_mov_b32 s40, 0xffff0000
        s_mov_b32 s67, 0
        s_waitcnt vmcnt({SENTW})
        """)
        A.label("kc_poll")
        e("s_mov_b32 s46, s47")
        for sr in range(4):
            e(f"buffer_load_dwordx4 {v(40+8*sr,4)}, v20, s[60:63], s46 offen sc1")
            e(f"s_add_u32 s34, s46, {288*16}")
            e(f"buffer_load_dwordx4 {v(44+8*sr,4)}, v20, s[60:63], s34 offen sc1")
            e(f"s_add_u32 s46, s46, 9216")
        e("s_add_u32 s67, s67, 1")
        for k_ in range(8):
            e(f"s_waitcnt vmcnt({7-k_})")
            b = 40 + 4 * k_
            if k_ == 0:
                e(f"v_max_u32 v26, v{b}, v{b+1}")
                e(f"v_max3_u32 v26, v26, v{b+2}, v{b+3}")
            else:
                e(f"v_max3_u32 v26, v26, v{b}, v{b+1}")
                e(f"v_max3_u32 v26, v26, v{b+2}, v{b+3}")
        e("""
        v_cmp_eq_u32 vcc, -1, v26
        s_cmp_ge_u32 s67, 0x4000
        s_cbranch_scc1 kc_go
        s_cbranch_vccnz kc_poll
        """)
        A.label("kc_go")
        for it in range(2):
            for d in range(4):
                e(f"v_lshlrev_b32 v{104+8*it+2*d}, 16, v{28+4*it+d}")
                e(f"v_and_b32 v{105+8*it+2*d}, s40, v{28+4*it+d}")
        for sr in range(4):
            for it in range(2):
                for d in range(4):
                    r = 40 + 8 * sr + 4 * it + d
                    e(f"v_lshlrev_b32 v120, 16, v{r}")
                    e(f"v_and_b32 v121, s40, v{r}")
                    e(f"v_pk_add_f32 {v(104+8*it+2*d,2)}, {v(104+8*it+2*d,2)}, v[120:121]")
        for it in range(2):
            for d in range(4):
                e(f"v_cvt_pk_bf16_f32 v{28+4*it+d}, v{104+8*it+2*d}, v{105+8*it+2*d}")
        e("s_waitcnt lgkmcnt(0)")
        e("buffer_store_dwordx4 v[28:31], v22, s[4:7], 0 offen")
        e("buffer_store_dwordx4 v[32:35], v22, s[4:7], 0 offen offset:144")
        e("s_mov_b64 exec, s[58:59]")
        A.label("kc_fin")
    elif FUSE_E:
        F2 = FLAG_OFF + 8192 + 1024
        e(f"""
        s_load_dwordx2 s[4:5], s[0:1], {KA_OUT}
        v_lshlrev_b32 v20, 4, v0
        v_lshrrev_b32 v4, 5, v0
        v_and_b32 v5, 31, v0
        s_lshl_b32 s33, s53, 7
        s_lshl_b32 s34, s52, 5
        s_add_u32 s33, s33, s34
        v_add_u32 v5, s33, v5
        s_mul_i32 s34, s54, 18
        v_add_u32 v4, s34, v4
        v_lshlrev_b32 v21, 15, v4
        v_lshl_add_u32 v21, v5, 4, v21
        s_movk_i32 s35, 1152
        v_mul_lo_u32 v22, v5, s35
        v_lshl_add_u32 v22, v4, 4, v22
        s_add_u32 s45, s42, s56
        s_lshl_b32 s45, s45, 7
        s_lshl_b32 s33, s52, 3
        s_add_u32 s45, s45, s33
        s_lshl_b32 s33, s57, 2
        s_add_u32 s45, s45, s33
        s_add_u32 s45, s45, {F2}
        v_mov_b32 v23, 1
        v_mov_b32 v24, 0
        s_add_u32 s46, s42, s52
        s_lshl_b32 s47, s46, 7
        s_add_u32 s47, s47, {F2}
        s_mul_i32 s46, s46, {4*9216}
        v_and_b32 v25, 7, v2
        v_lshlrev_b32 v25, 2, v25
        s_mov_b32 s34, {9*32768}
        s_waitcnt vmcnt(0) lgkmcnt(0)
        s_mov_b64 exec, 1
        buffer_store_dword v23, v24, s[60:63], s45 offen sc1
        s_mov_b64 exec, -1
        s_mov_b32 s6, {S*D*2:#x}
        s_cmp_ge_u32 s28, 5
        s_cbranch_scc1 kc_fin
        buffer_load_dwordx4 v[28:31], v21, s[12:15], 0 offen
        buffer_load_dwordx4 v[32:35], v21, s[12:15], s34 offen
        s_cmp_lg_u32 s28, 0
        s_cbranch_scc1 kc_go
        s_mov_b32 s67, 0
        """)
        A.label("kc_poll")
        e(f"""
        buffer_load_dword v26, v25, s[60:63], s47 offen sc1
        s_add_u32 s67, s67, 1
        s_waitcnt vmcnt(0)
        v_cmp_ne_u32 vcc, 1, v26
        s_cmp_ge_u32 s67, 0x8000
        s_cbranch_scc1 kc_go
        s_cbranch_vccnz kc_poll
        """)
        A.label("kc_go")
        e("""
        s_barrier
        v_cmp_gt_u32 vcc, 288, v0
        s_and_saveexec_b64 s[58:59], vcc
        """)
        for sr in range(4):
            e(f"buffer_load_dwordx4 {v(40+8*sr,4)}, v20, s[60:63], s46 offen sc1")
            e(f"s_add_u32 s34, s46, {288*16}")
            e(f"buffer_load_dwordx4 {v(44+8*sr,4)}, v20, s[60:63], s34 offen sc1")
            e(f"s_add_u32 s46, s46, 9216")
        e("s_mov_b32 s40, 0xffff0000")
        e("s_waitcnt vmcnt(8)")
        for it in range(2):
            for d in range(4):
                e(f"v_lshlrev_b32 v{104+8*it+2*d}, 16, v{28+4*it+d}")
                e(f"v_and_b32 v{105+8*it+2*d}, s40, v{28+4*it+d}")
        for sr in range(4):
            e(f"s_waitcnt vmcnt({6-2*sr})")
            for it in range(2):
                for d in range(4):
                    r = 40 + 8 * sr + 4 * it + d
                    e(f"v_lshlrev_b32 v120, 16, v{r}")
                    e(f"v_and_b32 v121, s40, v{r}")
                    e(f"v_pk_add_f32 {v(104+8*it+2*d,2)}, {v(104+8*it+2*d,2)}, v[120:121]")
        for it in range(2):
            for d in range(4):
                e(f"v_cvt_pk_bf16_f32 v{28+4*it+d}, v{104+8*it+2*d}, v{105+8*it+2*d}")
        e("buffer_store_dwordx4 v[28:31], v22, s[4:7], 0 offen")
        e("buffer_store_dwordx4 v[32:35], v22, s[4:7], 0 offen offset:144")
        e("s_mov_b64 exec, s[58:59]")
        A.label("kc_fin")
    if ST.on: e("s_waitcnt vmcnt(0)")
    ST.stamp(); ST.real(1)
    ST.dump(8)
    A.label("kc_done")
    e("s_endpgm")
    slowstat()
    emit_spins()
    A.kernel_end(name, 256, 102 if ST.on else 72)

KD_STAGE = 36864
FLAG_OFF = 4 * S * D * 2
def k_d(A):
    name = "kd_kernel"
    A.launch(name, 256, 512, 4 * KD_STAGE)
    A.kernel_begin(name)
    e = A.e
    ACC = 184
    WR = 136
    NW = 12
    HR = 40
    NH = int(os.environ.get("KD_NH", "6"))
    DW = int(os.environ.get("KD_DW", "3"))
    XP = os.environ.get("XP", "")
    ST = Stamps(A, STAMP == "kd")
    ST.stamp(); ST.real(0)
    e(f"""
    s_cmp_ge_u32 s2, 256
    s_cbranch_scc1 kd_done
    s_load_dwordx4 s[4:7], s[0:1], {KA_WD}
    s_load_dwordx2 s[26:27], s[0:1], {KA_WS}
    v_lshrrev_b32 v1, 6, v0
    v_and_b32 v2, 63, v0
    s_nop 0
    v_readfirstlane_b32 s28, v1
    s_nop 3
    s_and_b32 s29, s2, 7
    s_lshr_b32 s30, s2, 3
    s_lshr_b32 s31, s29, 1
    s_and_b32 s29, s29, 1
    s_lshl_b32 s29, s29, 3
    s_lshr_b32 s32, s30, 2
    s_add_u32 s29, s29, s32
    s_and_b32 s30, s30, 3
    s_and_b32 s56, s28, 3
    s_lshr_b32 s57, s28, 2
    """)
    e(f"""
    s_lshl_b32 s33, s29, 7
    s_lshl_b32 s34, s56, 5
    s_add_u32 s33, s33, s34
    v_and_b32 v4, 15, v2
    v_add_u32 v4, s33, v4
    v_lshrrev_b32 v5, 4, v2
    v_lshlrev_b32 v5, 15, v5
    v_lshl_add_u32 v9, v4, 4, v5
    """)
    e(f"""
    v_lshlrev_b32 v3, 4, v2
    s_mul_i32 s33, s57, 9216
    v_add_u32 v16, s33, v3
    v_add_u32 v17, {KD_STAGE}, v16
    v_add_u32 v18, {2*KD_STAGE}, v16
    v_add_u32 v19, {3*KD_STAGE}, v16
    """)
    e("s_waitcnt lgkmcnt(0)")
    A.srd_off(8, 26, 27, WS_WDP, F * D * 2)
    A.srd_off(12, 26, 27, WS_HH, S * F * 2)
    A.srd_off(16, 26, 27, WS_PART, FLAG_OFF + 8192)
    A.srd_off(20, 26, 27, WS_H, S * D * 2)
    A.srd(48, 6, 7, S * D * 2)
    e(f"""
    s_lshl_b32 s36, s28, 12
    s_lshl_b32 s33, s31, 2
    s_add_u32 s33, s33, s30
    s_mul_i32 s33, s33, {36*9216}
    s_add_u32 s37, s33, s36
    s_lshl_b32 s25, s28, 10
    s_add_u32 s25, s25, 32768
    s_add_u32 s35, s33, s25
    s_mul_i32 s41, s31, {144*32768}
    s_lshl_b32 s33, s57, 17
    s_add_u32 s41, s41, s33
    """)
    vm = Cnt(A, "vmcnt", 63)
    lg = Cnt(A, "lgkmcnt", 15)
    def dma_ops(c):
        st = c % 4
        def opt():
            lab = A.newlabel("kd_skip")
            e("s_cmp_ge_u32 s28, 4")
            e(f"s_cbranch_scc1 {lab}")
            e(f"s_add_u32 m0, s25, {st*KD_STAGE}")
            e(f"s_add_u32 s38, s35, {c*KD_STAGE}")
            e(f"buffer_load_dwordx4 v3, s[8:11], s38 offen lds")
            A.label(lab)
        ops = [opt, lambda: e(f"s_add_u32 m0, s36, {st*KD_STAGE}"), lambda: e(f"s_add_u32 s38, s37, {c*KD_STAGE}")]
        for i in range(4):
            def ld(i=i):
                e(f"buffer_load_dwordx4 v3, s[8:11], s38 offen offset:{1024*i} lds")
                vm.issue(("W", c))
            ops.append(ld)
        return [("W", c, op) for op in ops]
    def h_ops(sx):
        sr = [40, 58, 59, 24][sx % 4]
        ops = [lambda: e(f"s_add_u32 s{sr}, s41, {sx*8*32768:#x}")]
        for tt in range(2):
            def ld(tt=tt):
                e(f"buffer_load_dwordx4 {v(HR+8*(sx%NH)+4*tt,4)}, v9, s[12:15], s{sr} offen offset:{256*tt}")
                vm.issue(("H", sx))
            ops.append(ld)
        return [("H", sx, op) for op in ops]
    def run_ops(ops):
        for op in ops:
            op[2]()
    def wread_half(h):
        f, hf = divmod(h, 2)
        st_, j = divmod(f, 9)
        c, ks = divmod(st_, 2)
        base = 16 + c % 4
        r = WR + 4 * (f % NW)
        if hf: return
        e(f"ds_read_b128 {v(r,4)}, v{base} offset:{18432*ks + 1024*j}")
        lg.issue(("w", f))
    PRO = KD_PRO
    for c in range(PRO):
        run_ops(dma_ops(c))
        for sx in range(2 * c, min(2 * c + 2, NH)): run_ops(h_ops(sx))
    ST.stamp()
    vm.need(("W", 0))
    e("s_barrier")
    ST.stamp()
    NF = 18 * 9
    AHEAD = 6
    GRP = int(os.environ.get("GRP", "2"))
    pend = []
    for c in range(PRO, max(DW + 1, (NH + 1) // 2)):
        if c <= DW and c < 4: pend += dma_ops(c)
        for sx in range(2 * c, min(2 * c + 2, NH)): pend += h_ops(sx)
    nh = 0
    def flush(kind, idx):
        while any(p[0] == kind and p[1] <= idx for p in pend):
            run_ops([pend.pop(0)])
    def next_read():
        nonlocal nh, pend
        if nh >= 2 * NF: return
        if nh % 36 == 0 and nh > 0:
            c = nh // 36
            lg.drain()
            flush("W", c)
            vm.need(("W", c))
            e("s_barrier")
            ST.stamp()
            if c + DW < 9:
                pend += dma_ops(c + DW)
        wread_half(nh); nh += 1
    for _ in range(2 * AHEAD): next_read()
    for f in range(NF):
        st_, j = divmod(f, 9)
        if j == 0:
            flush("H", st_)
            vm.need(("H", st_))
        if f % GRP == 0:
            lg.need(("w", min(f + GRP - 1, NF - 1)))
        for tt in range(2):
            c_ = v(ACC + 36 * tt + 4 * j, 4)
            src_c = "0" if st_ == 0 else c_
            e(f"v_mfma_f32_16x16x32_bf16 {c_}, {v(WR+4*(f%NW),4)}, {v(HR+8*(st_%NH)+4*tt,4)}, {src_c}")
            next_read()
            if pend and tt == 1:
                pend.pop(0)[2]()
        if j == 8 and st_ + NH < 18:
            pend = h_ops(st_ + NH) + pend
    assert not pend
    ST.stamp()
    e(f"""
    s_mul_i32 s33, s28, 9216
    v_lshlrev_b32 v3, 4, v2
    v_add_u32 v4, s33, v3
    s_xor_b32 s34, s28, 4
    s_mul_i32 s34, s34, 9216
    v_add_u32 v5, s34, v3
    s_barrier
    s_cmp_eq_u32 s57, 0
    s_cbranch_scc1 kd_h0
    """)
    for j in range(9):
        e(f"ds_write_b128 v4, {v(ACC+4*j,4)} offset:{1024*j}")
    for j in range(9):
        for r in range(4):
            e(f"v_mov_b32 v{ACC+4*j+r}, v{ACC+36+4*j+r}")
    e("s_branch kd_hj")
    A.label("kd_h0")
    for j in range(9):
        e(f"ds_write_b128 v4, {v(ACC+36+4*j,4)} offset:{1024*j}")
    A.label("kd_hj")
    e("s_waitcnt lgkmcnt(0)")
    e("s_barrier")
    for j in range(9):
        e(f"ds_read_b128 {v(40+4*j,4)}, v5 offset:{1024*j}")
    e(f"""
    s_lshl_b32 s42, s29, 2
    s_add_u32 s42, s42, s30
    s_lshl_b32 s42, s42, 2
    s_add_u32 s43, s42, s56
    s_lshl_b32 s43, s43, 2
    s_add_u32 s43, s43, s31
    s_mul_i32 s44, s43, 9216
    s_lshl_b32 s33, s57, 8
    s_add_u32 s44, s44, s33
    v_and_b32 v6, 15, v2
    v_lshlrev_b32 v6, 4, v6
    v_bfe_u32 v7, v2, 4, 1
    v_lshl_add_u32 v8, v7, 10, v6
    v_lshrrev_b32 v24, 5, v2
    v_lshl_add_u32 v8, v24, 9, v8
    v_lshl_add_u32 v6, v24, 9, v6
    v_lshl_add_u32 v6, v7, 3, v6
    s_add_u32 s45, s44, 4096
    s_add_u32 s46, s44, 8192
    """)
    for j in range(9):
        e(f"s_waitcnt lgkmcnt({8-j})")
        e(f"v_pk_add_f32 {v(ACC+4*j,2)}, {v(ACC+4*j,2)}, {v(40+4*j,2)}")
        e(f"v_pk_add_f32 {v(ACC+4*j+2,2)}, {v(ACC+4*j+2,2)}, {v(40+4*j+2,2)}")
        O = 80 + 2 * j
        e(f"v_cvt_pk_bf16_f32 v{O}, v{ACC+4*j}, v{ACC+4*j+1}")
        e(f"v_cvt_pk_bf16_f32 v{O+1}, v{ACC+4*j+2}, v{ACC+4*j+3}")
        if j >= 2 and j % 2 == 0:
            jp = j // 2 - 1
            P_ = 80 + 4 * jp
            e(f"v_permlane16_swap_b32 v{P_}, v{P_+2}")
            e(f"v_permlane16_swap_b32 v{P_+1}, v{P_+3}")
            e(f"buffer_store_dwordx4 {v(P_,4)}, v8, s[16:19], s{44+jp//2} offen offset:{2048*(jp%2)} sc1")
    e(f"buffer_store_dwordx2 v[96:97], v6, s[16:19], s46 offen sc1")
    if KD_SEP:
        ST.stamp()
        if ST.on: e("s_waitcnt vmcnt(0)")
        ST.stamp(); ST.real(1)
        ST.dump(8)
        A.label("kd_done")
        e("s_endpgm")
        A.kernel_end(name, 256, 102 if ST.on else 60)
        return
    e(f"""
    v_lshlrev_b32 v20, 4, v0
    v_lshrrev_b32 v4, 5, v0
    v_and_b32 v5, 31, v0
    s_lshl_b32 s33, s29, 7
    s_lshl_b32 s34, s31, 5
    s_add_u32 s33, s33, s34
    v_add_u32 v5, s33, v5
    s_mul_i32 s34, s30, 18
    v_add_u32 v4, s34, v4
    v_lshlrev_b32 v21, 15, v4
    v_lshl_add_u32 v21, v5, 4, v21
    s_movk_i32 s35, 1152
    v_mul_lo_u32 v22, v5, s35
    v_lshl_add_u32 v22, v4, 4, v22
    s_lshl_b32 s45, s43, 1
    s_add_u32 s45, s45, s57
    s_lshl_b32 s45, s45, 2
    s_add_u32 s45, s45, {FLAG_OFF}
    v_mov_b32 v23, 1
    v_mov_b32 v24, 0
    s_add_u32 s46, s42, s31
    s_lshl_b32 s47, s46, 5
    s_add_u32 s47, s47, {FLAG_OFF}
    s_mul_i32 s46, s46, {4*9216}
    v_and_b32 v25, 7, v2
    v_lshlrev_b32 v25, 2, v25
    s_waitcnt vmcnt(0)
    v_cmp_eq_u32 vcc, 0, v2
    s_and_saveexec_b64 s[52:53], vcc
    buffer_store_dword v23, v24, s[16:19], s45 offen sc1
    s_mov_b64 exec, s[52:53]
    """)
    ST.stamp()
    e(f"""
    s_cmp_ge_u32 s28, 5
    s_cbranch_scc1 kd_fin
    v_cmp_gt_u32 vcc, 288, v0
    s_and_saveexec_b64 s[52:53], vcc
    s_mov_b32 s54, {9*32768}
    buffer_load_dwordx4 v[28:31], v21, s[20:23], 0 offen
    buffer_load_dwordx4 v[32:35], v21, s[20:23], s54 offen
    s_mov_b32 s55, 0
    """)
    A.label("kd_poll")
    e(f"""
    buffer_load_dword v26, v25, s[16:19], s47 offen sc1
    s_add_u32 s55, s55, 1
    s_waitcnt vmcnt(0)
    v_cmp_ne_u32 vcc, 1, v26
    s_cmp_ge_u32 s55, 0x40000
    s_cbranch_scc1 kd_go
    s_cbranch_vccnz kd_poll
    """)
    A.label("kd_go")
    for sr in range(4):
        e(f"buffer_load_dwordx4 {v(40+8*sr,4)}, v20, s[16:19], s46 offen sc1")
        e(f"s_add_u32 s54, s46, {288*16}")
        e(f"buffer_load_dwordx4 {v(44+8*sr,4)}, v20, s[16:19], s54 offen sc1")
        e(f"s_add_u32 s46, s46, 9216")
    e("s_mov_b32 s40, 0xffff0000")
    for it in range(2):
        for d in range(4):
            e(f"v_lshlrev_b32 v{104+8*it+2*d}, 16, v{28+4*it+d}")
            e(f"v_and_b32 v{105+8*it+2*d}, s40, v{28+4*it+d}")
    for sr in range(4):
        e(f"s_waitcnt vmcnt({6-2*sr})")
        for it in range(2):
            for d in range(4):
                r = 40 + 8 * sr + 4 * it + d
                e(f"v_lshlrev_b32 v120, 16, v{r}")
                e(f"v_and_b32 v121, s40, v{r}")
                e(f"v_pk_add_f32 {v(104+8*it+2*d,2)}, {v(104+8*it+2*d,2)}, v[120:121]")
    for it in range(2):
        for d in range(4):
            e(f"v_cvt_pk_bf16_f32 v{28+4*it+d}, v{104+8*it+2*d}, v{105+8*it+2*d}")
    e("buffer_store_dwordx4 v[28:31], v22, s[48:51], 0 offen")
    e("buffer_store_dwordx4 v[32:35], v22, s[48:51], 0 offen offset:144")
    e("s_mov_b64 exec, s[52:53]")
    A.label("kd_fin")
    if ST.on: e("s_waitcnt vmcnt(0)")
    ST.stamp(); ST.real(1)
    ST.dump(8)
    A.label("kd_done")
    e("s_endpgm")
    A.kernel_end(name, 256, 102 if ST.on else 60)


def k_e(A):
    name = "ke_kernel"
    A.launch(name, 256, 576, 0)
    A.kernel_begin(name)
    e = A.e
    e(f"""
    s_cmp_ge_u32 s2, 256
    s_cbranch_scc1 ke_done
    s_load_dwordx2 s[6:7], s[0:1], {KA_OUT}
    s_load_dwordx2 s[26:27], s[0:1], {KA_WS}
    s_lshr_b32 s29, s2, 4
    s_bfe_u32 s30, s2, 0x20002
    s_and_b32 s31, s2, 3
    v_lshlrev_b32 v20, 4, v0
    v_lshrrev_b32 v4, 5, v0
    v_and_b32 v5, 31, v0
    s_lshl_b32 s33, s29, 7
    s_lshl_b32 s34, s31, 5
    s_add_u32 s33, s33, s34
    v_add_u32 v5, s33, v5
    s_mul_i32 s34, s30, 18
    v_add_u32 v4, s34, v4
    v_lshlrev_b32 v21, 15, v4
    v_lshl_add_u32 v21, v5, 4, v21
    s_movk_i32 s35, 1152
    v_mul_lo_u32 v22, v5, s35
    v_lshl_add_u32 v22, v4, 4, v22
    s_mul_i32 s46, s2, {4*9216}
    s_waitcnt lgkmcnt(0)
    """)
    A.srd_off(16, 26, 27, WS_PART, FLAG_OFF)
    A.srd_off(20, 26, 27, WS_H, S * D * 2)
    A.srd(8, 6, 7, S * D * 2)
    e("buffer_load_dwordx4 v[28:31], v21, s[20:23], 0 offen")
    for sr in range(4):
        e(f"buffer_load_dwordx4 {v(32+4*sr,4)}, v20, s[16:19], s46 offen")
        e(f"s_add_u32 s46, s46, 9216")
    e("s_mov_b32 s40, 0xffff0000")
    e("s_waitcnt vmcnt(4)")
    for d in range(4):
        e(f"v_lshlrev_b32 v{8+2*d}, 16, v{28+d}")
        e(f"v_and_b32 v{9+2*d}, s40, v{28+d}")
    for sr in range(4):
        e(f"s_waitcnt vmcnt({3-sr})")
        for d in range(4):
            r = 32 + 4 * sr + d
            e(f"v_lshlrev_b32 v16, 16, v{r}")
            e(f"v_and_b32 v17, s40, v{r}")
            e(f"v_pk_add_f32 {v(8+2*d,2)}, {v(8+2*d,2)}, v[16:17]")
    for d in range(4):
        e(f"v_cvt_pk_bf16_f32 v{28+d}, v{8+2*d}, v{9+2*d}")
    e("buffer_store_dwordx4 v[28:31], v22, s[8:11], 0 offen")
    A.label("ke_done")
    e("s_endpgm")
    A.kernel_end(name, 48, 48)

HEADER = open("sequential_preLN__ssm_conv_h3__glu_gated_geglu__prompt.s.ref").read().split("; Override launch")[0]

def main():
    A = Asm()
    if FUSE_AB: k_ab(A)
    else:
        k_a(A)
        k_b(A)
    k_c(A)
    if not FUSE: k_d(A)
    if KD_SEP and not (FUSE and FUSE_E): k_e(A)
    A.label("code_end")
    A.e("s_endpgm")
    out = sys.argv[1] if len(sys.argv) > 1 else "k.s"
    open(out, "w").write(A.text(HEADER))

if __name__ == "__main__":
    main()
```

```python
import sys
from asmlib import Asm, v, a, s

S, D, F = 2048, 576, 4608
KA_X, KA_K, KA_V, KA_SK, KA_SSMK, KA_SSMD, KA_BX, KA_WG, KA_WU, KA_WD, KA_OUT, KA_DBG, KA_WS = [8 * i for i in range(13)]
import os
WS_R    = int(os.environ.get("WS_BASE_MB", "0")) << 20
WS_YQ   = WS_R + 576 * 8192
WS_XLN  = WS_YQ + S * D * 2
WS_H    = WS_XLN + S * D * 2
WS_HH   = WS_H + S * D * 2
WS_PART = WS_HH + S * F * 2
WS_XQ   = WS_XLN
WS_ST   = WS_PART + 4 * S * D * 4
WS_ST2  = WS_ST + S * 8
WS_CS   = WS_ST2 + S * 8
WS_WP   = (WS_CS + 12 * F * 4 + 4095) // 4096 * 4096
WS_WDP  = WS_WP + 2 * D * F * 2
WS_MB   = WS_WDP + D * F * 2
WS_END  = WS_MB + 144 * 128

import os
STAMP = os.environ.get("STAMP", "")
SCH = {"1": " sc1", "0": "", "nt": " nt"}[os.environ.get("SCH", "0")]
CODEPF = int(os.environ.get("CODEPF", "1"))
KC_ROT = int(os.environ.get("KC_ROT", "0"))
FUSE = int(os.environ.get("FUSE", "1"))
FUSE_E = int(os.environ.get("FUSE_E", "1"))
SENT = int(os.environ.get("SENT", "0"))
SENTW = int(os.environ.get("SENTW", "2"))
FUSE_AB = int(os.environ.get("FUSE_AB", "1"))
NP1 = int(os.environ.get("NP1", "3"))
SCP = {"1": " sc1", "0": "", "nt": " nt"}[os.environ.get("SCP", "1")]
KC_MAP = int(os.environ.get("KC_MAP", "1"))
KD_ROT = int(os.environ.get("KD_ROT", "0"))
KD_PRO = int(os.environ.get("KD_PRO", "2"))
KD_SEP = int(os.environ.get("KD_SEP", "1"))
KD_TOUCH = int(os.environ.get("KD_TOUCH", "0"))
KD_TDIST = int(os.environ.get("KD_TDIST", "5"))
WS_STAMP = WS_END + 4096
class Stamps:
    def __init__(self, A, on):
        self.A, self.on, self.n = A, on, 0
    def stamp(self):
        if not self.on or getattr(self, "mute", False): return
        assert self.n < 14
        op = "s_memrealtime" if os.environ.get("RT") else "s_memtime"
        self.A.e(f"{op} s[{72+2*self.n}:{73+2*self.n}]")
        self.n += 1
    def real(self, idx):
        if not self.on: return
        pass
    def dump(self, nwaves, wave_sgpr="s28"):
        if not self.on: return
        e = self.A.e
        e("s_waitcnt vmcnt(0) lgkmcnt(0)")
        self.A.srd_off(60, 26, 27, WS_STAMP, 1 << 20)
        e(f"s_mul_i32 s100, s2, {nwaves}")
        e(f"s_add_u32 s100, s100, {wave_sgpr}")
        e("s_lshl_b32 s100, s100, 7")
        e("v_mov_b32 v1, 0")
        for i in range(16):
            src_ = 72 + 2 * i if i < 14 else (72 if i == 14 else 98)
            e(f"v_mov_b32 v2, s{src_}")
            e(f"buffer_store_dword v2, v1, s[60:63], s100 offen offset:{4*i}")
        e("s_waitcnt vmcnt(0)")

class Cnt:
    def __init__(self, A, name, maxv):
        self.A, self.name, self.maxv = A, name, maxv
        self.q = []
        self.kind = {}
        self.total = 0
    def issue(self, tag, kind="L"):
        self.q.append(tag)
        self.kind[tag] = kind
        if kind == "L": self.total += 1
    def need(self, tag):
        if tag not in self.q:
            return
        idx = len(self.q) - 1 - self.q[::-1].index(tag)
        kd = self.kind.get(tag, "L")
        n = sum(1 for t in self.q[idx + 1:] if kd == "L" or self.kind.get(t, "L") == kd)
        assert n <= self.maxv, (self.name, n)
        self.A.e(f"s_waitcnt {self.name}({n})")
        if n == 0: self.q = []
        else: self.q = [t for i, t in enumerate(self.q) if i > idx or self.kind.get(t, "L") != kd]
    def drain(self):
        if self.q:
            self.A.e(f"s_waitcnt {self.name}(0)")
            self.q = []

import struct, math
def fbits(x):
    return struct.unpack("<I", struct.pack("<f", x))[0]

def dpp_sum16(A, r):
    for sh in (8, 4, 2, 1):
        A.e("s_nop 1")
        A.e(f"v_add_f32_dpp v{r}, v{r}, v{r} row_ror:{sh} row_mask:0xf bank_mask:0xf")


def emit_w_packer(A, pfx, row0, nrows, fin, halves=False, ksplit=False):
    e = A.e
    nph = nrows // 96
    e(f"""
    s_load_dwordx4 s[4:7], s[0:1], {KA_WG}
    v_lshrrev_b32 v1, 6, v0
    v_and_b32 v2, 63, v0
    v_lshlrev_b32 v3, 4, v2
    v_readfirstlane_b32 s28, v1
    """)
    if halves:
        e(f"""
        v_and_b32 v0, 255, v0
        s_lshr_b32 s29, s28, 2
        s_and_b32 s28, s28, 3
        s_mul_i32 s48, s29, {nph*18432}
        """)
        if ksplit:
            e(f"s_mul_i32 s49, s29, {nph}")
        else:
            e("s_lshl_b32 s2, s2, 1")
            e("s_add_u32 s2, s2, s29")
            e("s_mov_b32 s49, 0")
    else:
        e("s_mov_b32 s48, 0")
        e("s_mov_b32 s49, 0")
    e(f"""
    s_cmp_ge_u32 s2, 48
    s_cselect_b32 s30, 1, 0
    s_mul_i32 s31, s30, 48
    s_sub_u32 s31, s2, s31
    s_movk_i32 s34, 5462
    s_movk_i32 s35, 9216
    """)
    for i in range(5):
        e(f"v_add_u32 v4, {256*i}, v0")
        e(f"v_mul_lo_u32 v5, v4, s34")
        e(f"v_lshrrev_b32 v5, 16, v5")
        e(f"v_mul_u32_u24 v6, 12, v5")
        e(f"v_sub_u32 v6, v4, v6")
        e(f"v_mul_lo_u32 v5, v5, s35")
        e(f"v_lshl_add_u32 v{10+i}, v6, 4, v5")
    e(f"""
    s_mul_i32 s32, s31, 192
    s_add_u32 s32, s32, {row0*9216}
    s_mul_i32 s33, s49, {96*9216}
    s_add_u32 s32, s32, s33
    s_lshl_b32 s33, s28, 10
    s_add_u32 s33, s33, s48
    s_waitcnt lgkmcnt(0)
    s_cmp_eq_u32 s30, 0
    s_cselect_b32 s8, s4, s6
    s_cselect_b32 s9, s5, s7
    s_mov_b32 s10, {D*F*2:#x}
    s_mov_b32 s11, 0x00020000
    """)
    A.srd_off(12, 26, 27, WS_CS, 12 * F * 4)
    A.srd_off(16, 26, 27, WS_WP, 2 * D * F * 2)
    for ph in range(nph):
        lab = A.newlabel(pfx + "_sk")
        e("s_cmp_ge_u32 s28, 2")
        e(f"s_cbranch_scc1 {lab}")
        e(f"s_add_u32 m0, s33, {18432*ph + 4096*4}")
        e("s_nop 0")
        e(f"buffer_load_dwordx4 v14, s[8:11], s32 offen lds")
        A.label(lab)
        for i in range(4):
            e(f"s_add_u32 m0, s33, {18432*ph + 4096*i}")
            e("s_nop 0")
            e(f"buffer_load_dwordx4 v{10+i}, s[8:11], s32 offen lds")
        e(f"s_add_u32 s32, s32, {96*9216}")
    e(f"""
    v_lshrrev_b32 v4, 4, v2
    v_lshlrev_b32 v4, 3, v4
    v_bfe_u32 v5, v2, 2, 2
    v_add_u32 v4, v4, v5
    v_mul_u32_u24 v4, 192, v4
    v_and_b32 v5, 3, v2
    v_lshl_add_u32 v4, v5, 3, v4
    v_add_u32 v4, s48, v4
    v_mov_b32 v7, 0x3f803f80
    v_lshlrev_b32 v9, 2, v2
    v_cmp_gt_u32 s[46:47], 16, v2
    s_mov_b32 s36, s28
    s_mov_b32 s45, 0
    """)
    for half in range((nph + 1) // 2):
        later = 4 * max(nph - 2, 0)
        e(f"s_waitcnt vmcnt({later})" if half == 0 else "s_waitcnt vmcnt(12)")
        e("s_barrier")
        lab = f"{pfx}_su{half}"
        A.label(lab)
        e(f"""
        s_mul_i32 s38, s36, 43
        s_lshr_b32 s38, s38, 8
        s_mul_i32 s37, s38, 6
        s_sub_u32 s37, s36, s37
        s_lshl_b32 s40, s37, 5
        s_mul_i32 s44, s38, 18432
        s_add_u32 s40, s40, s44
        v_add_u32 v5, s40, v4
        s_mul_i32 s39, s31, 6
        s_add_u32 s39, s39, s37
        """)
        for s_ in range(3):
            e(f"ds_read_b64_tr_b16 {v(16+4*s_,2)}, v5 offset:{32*192*s_}")
            e(f"ds_read_b64_tr_b16 {v(18+4*s_,2)}, v5 offset:{32*192*s_+4*192}")
        e(f"""
        s_mul_i32 s40, s39, 7282
        s_lshr_b32 s40, s40, 16
        s_mul_i32 s41, s40, 9
        s_sub_u32 s41, s39, s41
        s_cmp_lt_u32 s41, {NP1}
        s_cselect_b32 s42, 2, 36
        s_cselect_b32 s43, {2*NP1}, 2
        s_lshl_b32 s43, s43, 10
        s_mul_i32 s42, s42, s41
        s_mul_i32 s40, s40, 324
        s_add_u32 s42, s42, s40
        s_add_u32 s42, s42, s30
        s_lshl_b32 s42, s42, 10
        s_add_u32 s44, s38, {row0//96}
        s_add_u32 s44, s44, s49
        s_mul_i32 s40, s44, 3
        s_mul_i32 s40, s40, s43
        s_add_u32 s42, s42, s40
        s_lshl_b32 s44, s44, 1
        s_add_u32 s44, s44, s30
        s_mul_i32 s44, s44, {F*4}
        s_lshl_b32 s40, s39, 6
        s_add_u32 s44, s44, s40
        v_mov_b32 v6, 0
        """)
        for s_ in range(3):
            e(f"s_waitcnt lgkmcnt({2*(2-s_)})")
            if os.environ.get("PACKST", "1") == "1": e(f"buffer_store_dwordx4 {v(16+4*s_,4)}, v3, s[16:19], s42 offen{SCP}")
            e("s_add_u32 s42, s42, s43")
            for d in range(4):
                e(f"v_dot2_f32_bf16 v6, v{16+4*s_+d}, v7, v6")
        e("s_nop 2")
        for op in ("v_permlane32_swap_b32", "v_permlane16_swap_b32"):
            e("v_mov_b32 v8, v6")
            e("s_nop 1")
            e(f"{op} v6, v8")
            e("v_add_f32 v6, v6, v8")
        e(f"""
        s_mov_b64 exec, s[46:47]
        buffer_store_dword v6, v9, s[12:15], s44 offen
        s_mov_b64 exec, -1
        s_add_u32 s36, s36, 4
        s_cmp_lt_u32 s36, {min(12*(half+1), 6*nph)}
        s_cbranch_scc1 {lab}
        """)
    fin()

def k_a(A):
    name = "ka_kernel"
    A.launch(name, 288 + 128 + 96, 256, 36864)
    A.kernel_begin(name)
    e = A.e
    ST = Stamps(A, STAMP == "ka")
    ST.stamp(); ST.real(0)
    if ST.on:
        e("v_lshrrev_b32 v1, 6, v0")
        e("s_nop 0")
        e("v_readfirstlane_b32 s59, v1")
    def fin():
        if not ST.on: return
        n0 = ST.n
        ST.n = 12
        ST.stamp()
        e("s_waitcnt vmcnt(0)")
        ST.stamp(); ST.real(1)
        e("s_mov_b64 exec, -1")
        ST.dump(4, "s59")
        ST.n = n0
    e(f"""
    s_cmp_ge_u32 s2, {288+128+96}
    s_cbranch_scc1 ka_done
    s_cmp_ge_u32 s2, {288+128}
    s_cbranch_scc1 ka_pack
    s_load_dwordx4 s[4:7], s[0:1], {KA_K}
    s_load_dwordx2 s[24:25], s[0:1], {KA_SK}
    s_load_dwordx2 s[26:27], s[0:1], {KA_WS}
    s_load_dwordx2 s[38:39], s[0:1], {KA_X}
    s_cmp_ge_u32 s2, 288
    s_cbranch_scc1 ka_stats
    s_and_b32 s28, s2, 31
    s_lshr_b32 s29, s2, 5
    s_lshl_b32 s30, s28, 6
    v_lshrrev_b32 v1, 3, v0
    v_and_b32 v2, 7, v0
    v_lshlrev_b32 v3, 1, v1
    v_add_u32 v3, s30, v3
    s_movk_i32 s31, 1152
    v_mul_lo_u32 v4, v3, s31
    s_lshl_b32 s32, s29, 7
    v_lshlrev_b32 v5, 4, v2
    v_add3_u32 v4, v4, v5, s32
    """)
    for r in range(6):
        e(f"v_add_u32 v{10+r}, {(r-4)*1152 & 0xffffffff:#x}, v4")
    e(f"""
    s_lshl_b32 s33, s29, 9
    v_lshlrev_b32 v6, 6, v2
    v_add_u32 v6, s33, v6
    s_waitcnt lgkmcnt(0)
    """)
    A.srd(8, 4, 5, S * D * 2)
    A.srd(12, 6, 7, S * D * 2)
    A.srd(16, 24, 25, D * 8)
    A.srd_off(20, 26, 27, WS_R, 576 * 8192)
    A.srd_off(40, 26, 27, WS_PART + 4 * S * D * 2, 8192 + 1024 + 32768)
    e("""
    s_lshl_b32 s36, s2, 10
    v_lshlrev_b32 v8, 2, v0
    v_mov_b32 v9, 0
    buffer_store_dword v9, v8, s[40:43], s36 offen
    """)
    for r in range(6):
        e(f"buffer_load_dwordx4 {v(16+4*r,4)}, v{10+r}, s[8:11], 0 offen")
    for r in range(3):
        e(f"buffer_load_dwordx4 {v(40+4*r,4)}, v{13+r}, s[12:15], 0 offen")
    for r in range(4):
        e(f"buffer_load_dwordx4 {v(52+4*r,4)}, v6, s[16:19], 0 offen offset:{16*r}")
    e(f"""
    v_sub_u32 v7, 31, v1
    v_lshlrev_b32 v8, 2, v2
    v_xor_b32 v7, v7, v8
    v_lshlrev_b32 v7, 2, v7
    v_lshl_add_u32 v7, v2, 10, v7
    s_mov_b32 s34, 0xffff0000
    """)
    ST.stamp()
    e("s_waitcnt vmcnt(0)")
    ST.stamp()
    e(f"""
    """)
    for ch in range(8):
        d, hi = ch >> 1, ch & 1
        def unp(dst, src):
            if hi: e(f"v_and_b32 v{dst}, s34, v{src}")
            else:  e(f"v_lshlrev_b32 v{dst}, 16, v{src}")
        for r in range(6): unp(70 + r, 16 + 4 * r + d)
        for r in range(3): unp(76 + r, 40 + 4 * r + d)
        sk = 52 + 2 * ch
        e(f"v_lshlrev_b32 v80, 16, v{sk}")
        e(f"v_and_b32 v81, s34, v{sk}")
        e(f"v_lshlrev_b32 v82, 16, v{sk+1}")
        e(f"v_and_b32 v83, s34, v{sk+1}")
        for r in range(3):
            e(f"v_mul_f32 v{84+r}, v{70+r}, v83")
        for r in range(3):
            e(f"v_fmac_f32 v{84+r}, v{71+r}, v82")
        for r in range(3):
            e(f"v_fmac_f32 v{84+r}, v{72+r}, v81")
        for r in range(3):
            e(f"v_fmac_f32 v{84+r}, v{73+r}, v80")
        for r in range(3):
            e(f"v_mul_f32 v{84+r}, v{84+r}, v{76+r}")
        e(f"v_cvt_pk_bf16_f32 v{88+2*(ch&1)}, v85, v84")
        e(f"v_cvt_pk_bf16_f32 v{89+2*(ch&1)}, v86, v85")
        e(f"ds_write_b32 v7, v{88+2*(ch&1)} offset:{ch*128}")
        e(f"ds_write_b32 v7, v{89+2*(ch&1)} offset:{8192+ch*128}")
    ST.stamp()
    e(f"""
    v_lshrrev_b32 v8, 6, v0
    v_xor_b32 v9, v2, v8
    v_lshlrev_b32 v9, 4, v9
    v_lshl_add_u32 v9, v1, 7, v9
    v_xor_b32 v10, 64, v9
    s_lshl_b32 s35, s29, 19
    s_sub_u32 s36, 1984, s30
    s_lshl_b32 s36, s36, 1
    s_add_u32 s35, s35, s36
    v_lshlrev_b32 v11, 13, v1
    v_add3_u32 v11, v11, v5, s35
    v_add_u32 v12, 0x40000, v11
    s_waitcnt lgkmcnt(0)
    s_barrier
    ds_read_b128 v[16:19], v9
    ds_read_b128 v[20:23], v10 offset:4096
    ds_read_b128 v[24:27], v9 offset:8192
    ds_read_b128 v[28:31], v10 offset:12288
    s_movk_i32 s37, 0x1000
    s_waitcnt lgkmcnt(3)
    buffer_store_dwordx4 v[16:19], v11, s[20:23], 0 offen{SCP}
    s_waitcnt lgkmcnt(2)
    buffer_store_dwordx4 v[20:23], v12, s[20:23], 0 offen{SCP}
    s_waitcnt lgkmcnt(1)
    buffer_store_dwordx4 v[24:27], v11, s[20:23], s37 offen{SCP}
    s_waitcnt lgkmcnt(0)
    buffer_store_dwordx4 v[28:31], v12, s[20:23], s37 offen{SCP}
    """)
    fin()
    e("s_endpgm")
    A.label("ka_stats")
    if CODEPF:
        e("s_getpc_b64 s[12:13]")
        A.label("ka_pc")
        e("""
        s_sub_u32 s12, s12, ka_pc-ka_kernel
        s_subb_u32 s13, s13, 0
        s_mov_b32 s14, code_end-ka_kernel
        s_mov_b32 s15, 0x00020000
        s_sub_u32 s28, s2, 288
        s_lshl_b32 s28, s28, 10
        v_lshlrev_b32 v6, 2, v0
        buffer_load_dword v7, v6, s[12:15], s28 offen
        """)
    e(f"""
    s_sub_u32 s28, s2, 288
    s_lshl_b32 s28, s28, 4
    v_lshrrev_b32 v1, 4, v0
    v_add_u32 v1, s28, v1
    v_and_b32 v2, 15, v0
    s_movk_i32 s29, 1152
    v_mul_lo_u32 v3, v1, s29
    v_lshl_add_u32 v3, v2, 3, v3
    v_lshlrev_b32 v4, 3, v1
    s_waitcnt lgkmcnt(0)
    """)
    A.srd(40, 38, 39, S * D * 2)
    A.srd_off(44, 26, 27, WS_ST, 2 * S * 8)
    XR, XF = 16, 34
    for i in range(9):
        e(f"buffer_load_dwordx2 {v(XR+2*i,2)}, v3, s[40:43], 0 offen offset:{128*i}")
    A.srd_off(8, 26, 27, WS_XQ, S * D * 2)
    e("v_lshl_add_u32 v5, v2, 14, v4")
    e("s_mov_b32 s30, 0xffff0000")
    e(f"s_mov_b32 s31, {fbits(1.0/576):#x}")
    e(f"s_mov_b32 s32, {fbits(1e-5):#x}")
    e("s_mov_b32 s33, 0")
    e("s_waitcnt vmcnt(0)")
    for i in range(9):
        e(f"buffer_store_dwordx2 {v(XR+2*i,2)}, v5, s[8:11], s33 offen")
        e(f"s_add_u32 s33, s33, {16*16384}")
    for d in range(18):
        e(f"v_lshlrev_b32 v{XF+2*d}, 16, v{XR+d}")
        e(f"v_and_b32 v{XF+2*d+1}, s30, v{XR+d}")
    e(f"v_pk_add_f32 v[8:9], {v(XF,2)}, {v(XF+2,2)}")
    e(f"v_pk_add_f32 v[10:11], {v(XF+4,2)}, {v(XF+6,2)}")
    for i in range(2, 9):
        e(f"v_pk_add_f32 v[8:9], v[8:9], {v(XF+4*i,2)}")
        e(f"v_pk_add_f32 v[10:11], v[10:11], {v(XF+4*i+2,2)}")
    e("v_pk_add_f32 v[8:9], v[8:9], v[10:11]")
    e("v_add_f32 v8, v8, v9")
    dpp_sum16(A, 8)
    e("v_mul_f32 v8, s31, v8")
    for i in range(18):
        e(f"v_pk_add_f32 {v(XF+2*i,2)}, {v(XF+2*i,2)}, v[8:9] op_sel_hi:[1,0] neg_lo:[0,1] neg_hi:[0,1]")
    e(f"v_pk_mul_f32 v[10:11], {v(XF,2)}, {v(XF,2)}")
    e(f"v_pk_mul_f32 v[12:13], {v(XF+2,2)}, {v(XF+2,2)}")
    for i in range(1, 9):
        e(f"v_pk_fma_f32 v[10:11], {v(XF+4*i,2)}, {v(XF+4*i,2)}, v[10:11]")
        e(f"v_pk_fma_f32 v[12:13], {v(XF+4*i+2,2)}, {v(XF+4*i+2,2)}, v[12:13]")
    e("v_pk_add_f32 v[10:11], v[10:11], v[12:13]")
    e("v_add_f32 v9, v10, v11")
    dpp_sum16(A, 9)
    e("v_mov_b32 v10, s32")
    e("v_fmac_f32 v10, s31, v9")
    e("v_rsq_f32 v9, v10")
    e("v_cmp_eq_u32 vcc, 0, v2")
    e("s_and_saveexec_b64 s[34:35], vcc")
    e("buffer_store_dwordx2 v[8:9], v4, s[44:47], 0 offen")
    e("v_mov_b32 v10, -1")
    e("v_mov_b32 v11, -1")
    e(f"s_movk_i32 s33, {S*8}")
    e("buffer_store_dwordx2 v[10:11], v4, s[44:47], s33 offen")
    fin()
    e("s_endpgm")
    A.label("ka_pack")
    e(f"s_load_dwordx2 s[26:27], s[0:1], {KA_WS}")
    if ST.on: e("s_mov_b32 s58, s2")
    e(f"s_sub_u32 s2, s2, {288+128}")
    def fin2():
        if ST.on: e("s_mov_b32 s2, s58")
        fin()
    emit_w_packer(A, "ka", 0, 192, fin2)
    A.label("ka_done")
    e("s_endpgm")
    A.kernel_end(name, 100, 102 if ST.on else 52)

KB_CH = 25920
KB_KC = 4160
KB_RO = 16640
KB_RC = 4640
def k_b(A):
    name = "kb_kernel"
    A.launch(name, 240, 256, 4 * KB_CH)
    A.kernel_begin(name)
    e = A.e
    ST = Stamps(A, STAMP == "kb")
    ST.stamp(); ST.real(0)
    if ST.on:
        e("v_lshrrev_b32 v1, 6, v0")
        e("s_nop 0")
        e("v_readfirstlane_b32 s59, v1")
    def fin():
        if not ST.on: return
        n0 = ST.n
        ST.n = 12
        ST.stamp()
        e("s_waitcnt vmcnt(0)")
        ST.stamp(); ST.real(1)
        e("s_mov_b64 exec, -1")
        ST.dump(4, "s59")
        ST.n = n0
    e(f"""
    s_cmp_ge_u32 s2, 240
    s_cbranch_scc1 kb_done
    s_load_dwordx2 s[26:27], s[0:1], {KA_WS}
    s_cmp_ge_u32 s2, 144
    s_cbranch_scc1 kb_side
    s_load_dwordx4 s[4:7], s[0:1], {KA_SSMK}
    v_lshrrev_b32 v1, 6, v0
    v_and_b32 v2, 63, v0
    s_nop 0
    v_readfirstlane_b32 s28, v1
    s_nop 3
    s_lshl_b32 s29, s2, 2
    s_add_u32 s29, s29, s28
    s_mul_i32 s30, s28, {KB_CH}
    s_lshl_b32 s31, s29, 12
    s_lshl_b32 s32, s29, 13
    s_add_u32 s32, s32, {WS_R}
    s_lshl_b32 s33, s2, 14
    s_add_u32 s33, s33, {WS_XQ}
    s_lshr_b32 s34, s29, 1
    s_lshl_b32 s34, s34, 2
    v_lshlrev_b32 v3, 4, v2
    s_waitcnt lgkmcnt(0)
    """)
    A.srd_off(8, 4, 5, "s31", 4096)
    A.srd_off(12, 26, 27, "s32", 8192)
    A.srd_off(16, 26, 27, "s33", 16384)
    A.srd_off(20, 26, 27, WS_ST, S * 8)
    e("s_lshr_b32 s33, s2, 1")
    e("s_lshl_b32 s33, s33, 15")
    e(f"s_add_u32 s33, s33, {WS_H}")
    A.srd_off(44, 26, 27, "s33", 32768)
    e(f"""
    s_add_u32 s6, s6, s34
    s_addc_u32 s7, s7, 0
    s_load_dword s35, s[6:7], 0
    """)
    vm = Cnt(A, "vmcnt", 63)
    e(f"""
    v_lshrrev_b32 v4, 4, v2
    v_and_b32 v5, 15, v2
    v_add_u32 v6, v4, v5
    v_add_u32 v6, -15, v6
    v_lshlrev_b32 v6, 2, v6
    buffer_load_dword v7, v6, s[8:11], 0 offen
    """)
    vm.issue("front")
    for p in range(2):
        e(f"s_add_u32 s36, s30, {KB_RO + p * KB_RC}")
        e(f"s_mov_b32 m0, s36")
        e(f"s_movk_i32 s37, {p * 4096}")
        for b in range(4):
            e(f"buffer_load_dwordx4 v3, s[12:15], s37 offen offset:{b*1024} lds")
            vm.issue("R")
    late = []
    def kdma(b, c):
        e(f"s_add_u32 m0, s30, {c * KB_KC + 64}")
        e(f"s_movk_i32 s37, {4 * c + 4}")
        e(f"buffer_load_dwordx4 v3, s[8:11], s37 offen offset:{b*1024} lds")
        vm.issue(f"K{b}")
    for b in range(4):
        for c in range(4):
            if b <= 1: kdma(b, c)
            else: late.append((f"K{b}", lambda b=b, c=c: kdma(b, c)))
    e("v_lshlrev_b32 v18, 4, v0")
    def xsld(r):
        e(f"s_movk_i32 s37, {4096*r}")
        e(f"buffer_load_dwordx4 {v(80+8*r,4)}, v18, s[16:19], s37 offen")
        e(f"buffer_load_dwordx4 {v(84+8*r,4)}, v18, s[20:23], s37 offen")
        vm.issue("xs"); vm.issue("xs")
    for r in range(4): late.append(("xs", lambda r=r: xsld(r)))
    e(f"""
    s_movk_i32 s38, {KB_KC}
    v_mul_lo_u32 v8, v4, s38
    v_lshl_add_u32 v8, v5, 2, v8
    v_add_u32 v8, s30, v8
    v_lshrrev_b32 v9, 5, v2
    s_movk_i32 s38, {KB_RC}
    v_mul_lo_u32 v9, v9, s38
    v_and_b32 v10, 31, v2
    v_lshl_add_u32 v9, v10, 4, v9
    s_add_u32 s39, s30, {KB_RO + 4096}
    v_add_u32 v9, s39, v9
    v_mov_b32 v12, 0
    v_mov_b32 v13, 0
    v_mov_b32 v14, 0
    v_mov_b32 v15, 0
    ds_write_b128 v9, v[12:15]
    """)
    e(f"""
    v_and_b32 v10, 3, v5
    s_movk_i32 s38, {KB_KC}
    v_mul_lo_u32 v10, v10, s38
    v_lshrrev_b32 v11, 2, v5
    v_add_u32 v11, v11, v4
    v_lshl_add_u32 v10, v11, 4, v10
    v_add_u32 v10, s30, v10
    """)
    e(f"""
    v_and_b32 v11, 1, v5
    s_movk_i32 s38, {KB_RC}
    v_mul_lo_u32 v11, v11, s38
    v_lshrrev_b32 v16, 1, v5
    v_lshlrev_b32 v16, 2, v16
    v_sub_u32 v16, v4, v16
    v_add_u32 v16, 28, v16
    v_lshl_add_u32 v11, v16, 4, v11
    s_add_u32 s39, s30, {KB_RO}
    v_add_u32 v11, s39, v11
    """)
    e(f"""
    s_waitcnt lgkmcnt(0)
    s_and_b32 s40, s29, 1
    s_lshl_b32 s40, s40, 4
    s_lshr_b32 s35, s35, s40
    s_and_b32 s35, s35, 0xffff
    v_lshl_add_u32 v16, v4, 2, v5
    v_mov_b32 v17, s35
    """)
    for d in range(4):
        e(f"v_cmp_eq_u32 vcc, {15-d}, v16")
        e("s_nop 1")
        e(f"v_cndmask_b32 v{20+d}, 0, v17, vcc")
    ST.stamp()
    vm.need("front")
    e("ds_write_b32 v8, v7")
    vm.need("K0")
    e("s_waitcnt lgkmcnt(0)")
    ST.stamp()
    ACC = 32
    BR = 64
    NB = 4
    AR = 112
    lg = Cnt(A, "lgkmcnt", 15)
    groups = []
    for ph in range(2):
        for r in range(8):
            groups.append([r + 8 * u for u in range(4 * ph, 4 * ph + 4)])
    mf = []
    for g, il in enumerate(groups):
        for i in il:
            for j in range(7, (i >> 3) - 1, -1):
                mf.append((g, i, j))
    def areg(g, q):
        return AR + 32 * (g & 1) + 4 * ((q + 7) >> 3)
    reads = []
    seen = set()
    bidx = {}
    for x, (g, i, j) in enumerate(mf):
        if ("B", i) not in seen:
            seen.add(("B", i)); bidx[i] = len(bidx); reads.append((("B", i), x))
        t = ("A", g, 8 * j - i)
        if t not in seen:
            seen.add(t); reads.append((t, x))
    last_use = {}
    for x, (g, i, j) in enumerate(mf):
        last_use[("B", i)] = x; last_use[("G", g)] = x
    border = sorted(bidx, key=lambda i: bidx[i])
    rp = 0
    LOOK = 14
    def can_issue(tag, x):
        if tag[0] == "B":
            k = bidx[tag[1]]
            return k < NB or last_use[("B", border[k - NB])] < x
        g = tag[1]
        return g < 2 or last_use[("G", g - 2)] < x
    def issue_read(tag):
        if tag[0] == "B":
            idx = tag[1]
            blk = min(3, max(0, (4 * idx + 6 - 4) // 64))
            while any(t == f"K{blk}" for t, _ in late): late.pop(0)[1]()
            vm.need(f"K{blk}")
            e(f"ds_read_b128 {v(BR + 4 * (bidx[idx] % NB), 4)}, v10 offset:{64 * idx}")
        else:
            e(f"ds_read_b128 {v(areg(tag[1], tag[2]), 4)}, v11 offset:{64 * (56 - tag[2])}")
        lg.issue(tag)
    started = set()
    while rp < 9:
        issue_read(reads[rp][0]); rp += 1
    for x, (g, i, j) in enumerate(mf):
        if j == 7 and i in (2, 4, 32, 36): ST.stamp()
        while rp < len(reads) and reads[rp][1] <= x:
            issue_read(reads[rp][0]); rp += 1
        lg.need(("B", i)); lg.need(("A", g, 8 * j - i))
        c = v(ACC + 4 * j, 4)
        aq = v(areg(g, 8 * j - i), 4)
        if j not in started:
            started.add(j)
            e(f"v_mfma_f32_16x16x32_bf16 {c}, {aq}, v[20:23], 0")
        e(f"v_mfma_f32_16x16x32_bf16 {c}, {aq}, {v(BR+4*(bidx[i]%NB),4)}, {c}")
        if rp < len(reads) and reads[rp][1] <= x + LOOK and len(lg.q) < 14 and can_issue(reads[rp][0], x + 1):
            issue_read(reads[rp][0]); rp += 1
        elif late and x % 4 == 3: late.pop(0)[1]()
    assert rp == len(reads) and not late
    ST.stamp()
    e(f"""
    v_lshlrev_b32 v16, 7, v4
    v_lshl_add_u32 v16, v5, 2, v16
    v_add_u32 v16, s30, v16
    s_nop 7
    """)
    for j in range(8):
        c = ACC + 4 * j
        e(f"v_cvt_pk_bf16_f32 v{c}, v{c}, v{c+1}")
        e(f"v_cvt_pk_bf16_f32 v{c+1}, v{c+2}, v{c+3}")
        e(f"ds_write_b32 v16, v{c} offset:{512*j}")
        e(f"ds_write_b32 v16, v{c+1} offset:{512*j+64}")
    e(f"""
    v_lshlrev_b32 v17, 2, v0
    v_lshlrev_b32 v18, 5, v0
    s_and_b32 s40, s2, 1
    s_lshl_b32 s40, s40, 3
    v_add_u32 v18, s40, v18
    s_mov_b32 s41, 0xffff0000
    v_add_u32 v19, {2*KB_CH}, v17
    s_waitcnt lgkmcnt(0)
    s_barrier
    """)
    ST.stamp()
    for r in range(4):
        for ch in range(4):
            base = "v17" if ch < 2 else "v19"
            e(f"ds_read_b32 v{64+4*r+ch}, {base} offset:{(ch&1)*KB_CH + 1024*r}")
    e("s_waitcnt vmcnt(0)")
    for r in range(4):
        e(f"s_waitcnt lgkmcnt({12-4*r})")
        Y = 64 + 4 * r; X = 80 + 8 * r; M = 84 + 8 * r
        for tq in range(2):
            for d in range(2):
                e(f"v_lshlrev_b32 v{32+2*d}, 16, v{X+2*tq+d}")
                e(f"v_and_b32 v{33+2*d}, s41, v{X+2*tq+d}")
            for ch in range(4):
                if tq == 0: e(f"v_lshlrev_b32 v{36+ch}, 16, v{Y+ch}")
                else: e(f"v_and_b32 v{36+ch}, s41, v{Y+ch}")
            mp = v(M + 2 * tq, 2)
            for p in range(2):
                e(f"v_pk_mul_f32 {v(36+2*p,2)}, {v(36+2*p,2)}, {mp} op_sel:[0,1] op_sel_hi:[1,1]")
                e(f"v_pk_add_f32 {v(40+2*p,2)}, {v(32+2*p,2)}, {mp} op_sel_hi:[1,0] neg_lo:[0,1] neg_hi:[0,1]")
            for p in range(2):
                e(f"v_pk_fma_f32 {v(32+2*p,2)}, {v(40+2*p,2)}, {v(36+2*p,2)}, {v(32+2*p,2)}")
            O = 44 + 4 * (r & 1) + 2 * tq
            e(f"v_cvt_pk_bf16_f32 v{O}, v32, v33")
            e(f"v_cvt_pk_bf16_f32 v{O+1}, v34, v35")
            e(f"s_movk_i32 s37, {8192*r}")
            e(f"buffer_store_dwordx2 {v(O,2)}, v18, s[44:47], s37 offen offset:{16*tq}{SCH}")
    fin()
    e("s_endpgm")
    A.label("kb_side")
    if ST.on: e("s_mov_b32 s58, s2")
    e("s_sub_u32 s2, s2, 144")
    def fin2():
        if ST.on: e("s_mov_b32 s2, s58")
        fin()
    emit_w_packer(A, "kb", 192, 384, fin2)
    A.label("kb_done")
    e("s_endpgm")
    A.kernel_end(name, 176, 102 if ST.on else 52)

def k_ab(A):
    name = "ka_kernel"
    TS = 4 * KB_CH
    A.launch(name, 256, 512, 147456)
    A.kernel_begin(name)
    e = A.e
    ST = Stamps(A, STAMP == "ka")
    ST.stamp(); ST.real(0)
    if ST.on:
        e("v_lshrrev_b32 v1, 6, v0")
        e("s_nop 0")
        e("v_readfirstlane_b32 s101, v1")
        e("s_mov_b32 s3, s2")
    def fin():
        if not ST.on: return
        n0 = ST.n
        ST.n = 12
        ST.stamp()
        e("s_waitcnt vmcnt(0)")
        ST.stamp(); ST.real(1)
        e("s_mov_b64 exec, -1")
        e("s_mov_b32 s2, s3")
        ST.dump(8, "s101")
        ST.n = n0
    e(f"""
    s_cmp_ge_u32 s2, 256
    s_cbranch_scc1 ka_done
    s_load_dwordx2 s[26:27], s[0:1], {KA_WS}
    s_load_dwordx2 s[50:51], s[0:1], {KA_DBG}
    s_load_dwordx2 s[38:39], s[0:1], {KA_X}
    s_cmp_ge_u32 s2, 144
    s_cbranch_scc1 ka_stats
    s_load_dwordx4 s[4:7], s[0:1], {KA_K}
    s_load_dwordx2 s[24:25], s[0:1], {KA_SK}
    s_load_dwordx4 s[64:67], s[0:1], {KA_SSMK}
    v_lshrrev_b32 v1, 6, v0
    v_and_b32 v100, 63, v0
    v_and_b32 v101, 255, v0
    v_readfirstlane_b32 s60, v1
    s_lshr_b32 s29, s2, 4
    s_and_b32 s28, s2, 15
    s_lshr_b32 s61, s60, 2
    s_and_b32 s62, s60, 3
    s_lshl_b32 s28, s28, 1
    s_add_u32 s28, s28, s61
    s_lshl_b32 s30, s28, 6
    v_lshrrev_b32 v1, 3, v101
    v_and_b32 v2, 7, v101
    v_lshlrev_b32 v3, 1, v1
    v_add_u32 v3, s30, v3
    s_movk_i32 s31, 1152
    v_mul_lo_u32 v4, v3, s31
    s_lshl_b32 s32, s29, 7
    v_lshlrev_b32 v5, 4, v2
    v_add3_u32 v4, v4, v5, s32
    """)
    KS, VS, SKS = 0, 17408, 34816
    e(f"""
    s_lshl_b32 s63, s2, 2
    s_add_u32 s63, s63, s62
    s_mul_i32 s68, s62, {KB_CH}
    s_lshl_b32 s31, s63, 12
    v_lshlrev_b32 v102, 4, v100
    v_lshrrev_b32 v6, 3, v100
    v_mul_u32_u24 v6, 1152, v6
    v_and_b32 v7, 7, v100
    v_lshl_add_u32 v6, v7, 4, v6
    s_and_b32 s33, s2, 15
    s_mul_i32 s33, s33, {128*1152}
    s_add_u32 s33, s33, s32
    s_mul_i32 s34, s60, {16*1152}
    s_add_u32 s34, s34, s33
    s_add_u32 s35, s34, {8*1152}
    s_lshl_b32 s36, s60, 11
    s_sub_u32 s37, s33, {8*1152}
    s_cmp_lt_u32 s33, {8*1152}
    s_cselect_b32 s37, 0x7ffffff0, s37
    s_waitcnt lgkmcnt(0)
    """)
    A.srd(8, 4, 5, S * D * 2)
    A.srd(12, 6, 7, S * D * 2)
    A.srd(16, 24, 25, D * 8)
    A.srd(40, 38, 39, S * D * 2)
    for base, srd in ((KS, 8), (VS, 12)):
        for i in range(2):
            e(f"s_add_u32 m0, s36, {base + 1024 + 1024*i}")
            e("s_nop 0")
            e(f"buffer_load_dwordx4 v6, s[{srd}:{srd+3}], s{34+i} offen lds")
    e(f"""
    s_cmp_lg_u32 s60, 0
    s_cbranch_scc1 ka_h1
    s_mov_b32 m0, {KS}
    s_nop 0
    buffer_load_dwordx4 v6, s[8:11], s37 offen lds
    """)
    A.label("ka_h1")
    e(f"""
    s_cmp_lg_u32 s60, 1
    s_cbranch_scc1 ka_h2
    s_mov_b32 m0, {VS}
    s_nop 0
    buffer_load_dwordx4 v6, s[12:15], s37 offen lds
    """)
    A.label("ka_h2")
    e(f"""
    s_cmp_lg_u32 s60, 2
    s_cbranch_scc1 ka_h3
    s_mov_b32 m0, {SKS}
    s_lshl_b32 s33, s29, 9
    buffer_load_dwordx4 v102, s[16:19], s33 offen lds
    """)
    A.label("ka_h3")
    e("buffer_load_dwordx4 v[92:95], v4, s[40:43], 0 offen")
    e("buffer_load_dwordx4 v[96:99], v4, s[40:43], 0 offen offset:1152")
    e(f"""
    v_lshrrev_b32 v10, 3, v0
    v_lshlrev_b32 v10, 8, v10
    v_add_u32 v10, v10, v5
    v_lshlrev_b32 v11, 6, v2
    """)
    A.srd_off(8, 64, 65, "s31", 4096)
    e(f"""
    s_lshl_b32 s24, s61, 11
    s_add_u32 s25, s68, s24
    v_lshrrev_b32 v103, 4, v100
    v_and_b32 v104, 15, v100
    v_add_u32 v6, v103, v104
    v_add_u32 v6, -15, v6
    v_lshlrev_b32 v6, 2, v6
    buffer_load_dword v105, v6, s[8:11], 0 offen
    """)
    e("v_lshlrev_b32 v6, 6, v100")
    e("buffer_load_dword v107, v6, s[8:11], 0 offen")
    A.srd_off(56, 26, 27, WS_MB, 144 * 128)
    e("""
    s_lshl_b32 s71, s2, 7
    v_lshlrev_b32 v106, 2, v100
    v_mov_b32 v68, 0
    v_cmp_gt_u32 vcc, 16, v0
    s_and_saveexec_b64 s[34:35], vcc
    s_cbranch_execz ka_nc
    buffer_store_dword v68, v106, s[56:59], s71 offen sc1
    """)
    A.label("ka_nc")
    e("s_mov_b64 exec, s[34:35]")
    A.srd_off(20, 26, 27, WS_R, 576 * 8192)
    A.srd_off(44, 26, 27, WS_XQ, S * D * 2)
    A.srd(52, 50, 51, 256)
    e(f"""
    s_lshr_b32 s34, s63, 1
    s_lshl_b32 s34, s34, 2
    s_add_u32 s66, s66, s34
    s_addc_u32 s67, s67, 0
    s_load_dword s69, s[66:67], 0
    s_lshl_b32 s35, s29, 18
    v_lshlrev_b32 v9, 15, v2
    v_lshl_add_u32 v9, v3, 3, v9
    v_add_u32 v9, s35, v9
    s_movk_i32 s36, 0x4000
    v_sub_u32 v7, 31, v1
    v_lshlrev_b32 v8, 2, v2
    v_xor_b32 v7, v7, v8
    v_lshlrev_b32 v7, 2, v7
    v_lshl_add_u32 v7, v2, 10, v7
    s_lshl_b32 s70, s61, 14
    s_add_u32 s70, s70, {TS}
    v_add_u32 v7, s70, v7
    s_mov_b32 s34, 0xffff0000
    """)
    ST.stamp()
    e("s_waitcnt vmcnt(0)")
    e("s_barrier")
    ST.stamp()
    for r in range(6):
        e(f"ds_read_b128 {v(16+4*r,4)}, v10 offset:{KS + (4+r)*128}")
    for r in range(3):
        e(f"ds_read_b128 {v(40+4*r,4)}, v10 offset:{VS + (7+r)*128}")
    for r in range(4):
        e(f"ds_read_b128 {v(52+4*r,4)}, v11 offset:{SKS + 16*r}")
    e("""
    v_swap_b32 v94, v96
    v_swap_b32 v95, v97
    buffer_store_dwordx4 v[92:95], v9, s[44:47], 0 offen sc1
    buffer_store_dwordx4 v[96:99], v9, s[44:47], s36 offen sc1
    s_waitcnt lgkmcnt(0)
    """)
    for ch in range(8):
        d, hi = ch >> 1, ch & 1
        def unp(dst, src_):
            if hi: e(f"v_and_b32 v{dst}, s34, v{src_}")
            else:  e(f"v_lshlrev_b32 v{dst}, 16, v{src_}")
        for r in range(6): unp(70 + r, 16 + 4 * r + d)
        for r in range(3): unp(76 + r, 40 + 4 * r + d)
        sk = 52 + 2 * ch
        e(f"v_lshlrev_b32 v80, 16, v{sk}")
        e(f"v_and_b32 v81, s34, v{sk}")
        e(f"v_lshlrev_b32 v82, 16, v{sk+1}")
        e(f"v_and_b32 v83, s34, v{sk+1}")
        for r in range(3): e(f"v_mul_f32 v{84+r}, v{70+r}, v83")
        for r in range(3): e(f"v_fmac_f32 v{84+r}, v{71+r}, v82")
        for r in range(3): e(f"v_fmac_f32 v{84+r}, v{72+r}, v81")
        for r in range(3): e(f"v_fmac_f32 v{84+r}, v{73+r}, v80")
        for r in range(3): e(f"v_mul_f32 v{84+r}, v{84+r}, v{76+r}")
        e(f"v_cvt_pk_bf16_f32 v{88+2*(ch&1)}, v85, v84")
        e(f"v_cvt_pk_bf16_f32 v{89+2*(ch&1)}, v86, v85")
        e(f"ds_write_b32 v7, v{88+2*(ch&1)} offset:{ch*128}")
        e(f"ds_write_b32 v7, v{89+2*(ch&1)} offset:{8192+ch*128}")
    e(f"""
    v_lshrrev_b32 v8, 6, v101
    v_xor_b32 v9, v2, v8
    v_lshlrev_b32 v9, 4, v9
    v_lshl_add_u32 v9, v1, 7, v9
    v_xor_b32 v10, 64, v9
    v_add_u32 v9, s70, v9
    v_add_u32 v10, s70, v10
    s_lshl_b32 s35, s29, 19
    s_sub_u32 s36, 1984, s30
    s_lshl_b32 s36, s36, 1
    s_add_u32 s35, s35, s36
    v_lshlrev_b32 v11, 13, v1
    v_add3_u32 v11, v11, v5, s35
    v_add_u32 v12, 0x40000, v11
    s_waitcnt lgkmcnt(0)
    s_barrier
    ds_read_b128 v[16:19], v9
    ds_read_b128 v[20:23], v10 offset:4096
    ds_read_b128 v[24:27], v9 offset:8192
    ds_read_b128 v[28:31], v10 offset:12288
    s_movk_i32 s37, 0x1000
    s_waitcnt lgkmcnt(3)
    buffer_store_dwordx4 v[16:19], v11, s[20:23], 0 offen sc1
    s_waitcnt lgkmcnt(2)
    buffer_store_dwordx4 v[20:23], v12, s[20:23], 0 offen sc1
    s_waitcnt lgkmcnt(1)
    buffer_store_dwordx4 v[24:27], v11, s[20:23], s37 offen sc1
    s_waitcnt lgkmcnt(0)
    buffer_store_dwordx4 v[28:31], v12, s[20:23], s37 offen sc1
    """)
    ST.stamp()
    e(f"""
    v_mov_b32 v2, v100
    v_mov_b32 v4, v103
    v_mov_b32 v5, v104
    s_mov_b32 s30, s68
    s_lshl_b32 s32, s63, 13
    s_add_u32 s32, s32, {WS_R}
    s_lshl_b32 s33, s2, 14
    s_add_u32 s33, s33, {WS_XQ}
    """)
    A.srd_off(12, 26, 27, "s32", 8192)
    A.srd_off(16, 26, 27, "s33", 16384)
    A.srd_off(20, 26, 27, WS_ST, S * 8)
    e("s_lshr_b32 s33, s2, 1")
    e("s_lshl_b32 s33, s33, 15")
    e(f"s_add_u32 s33, s33, {WS_H}")
    A.srd_off(44, 26, 27, "s33", 32768)
    A.srd_off(40, 26, 27, WS_PART + 4 * S * D * 2, 8192 + 1024 + 32768)
    e(f"""
    s_lshl_b32 s36, s2, 11
    v_lshlrev_b32 v8, 2, v0
    v_mov_b32 v12, 0
    v_mov_b32 v13, 0
    v_mov_b32 v14, 0
    v_mov_b32 v15, 0
    buffer_store_dword v12, v8, s[40:43], s36 offen
    s_movk_i32 s38, {KB_KC}
    v_mul_lo_u32 v8, v4, s38
    v_lshl_add_u32 v8, v5, 2, v8
    v_add_u32 v8, s30, v8
    v_lshrrev_b32 v9, 5, v2
    s_movk_i32 s38, {KB_RC}
    v_mul_lo_u32 v9, v9, s38
    v_and_b32 v10, 31, v2
    v_lshl_add_u32 v9, v10, 4, v9
    s_add_u32 s39, s30, {KB_RO + 4096}
    v_add_u32 v9, s39, v9
    ds_write_b128 v9, v[12:15]
    v_and_b32 v10, 3, v5
    s_movk_i32 s38, {KB_KC}
    v_mul_lo_u32 v10, v10, s38
    v_lshrrev_b32 v11, 2, v5
    v_add_u32 v11, v11, v4
    v_lshl_add_u32 v10, v11, 4, v10
    v_add_u32 v10, s30, v10
    v_and_b32 v11, 1, v5
    s_movk_i32 s38, {KB_RC}
    v_mul_lo_u32 v11, v11, s38
    v_lshrrev_b32 v6, 1, v5
    v_lshlrev_b32 v6, 2, v6
    v_sub_u32 v6, v4, v6
    v_add_u32 v6, 28, v6
    v_lshl_add_u32 v11, v6, 4, v11
    s_add_u32 s39, s30, {KB_RO}
    v_add_u32 v11, s39, v11
    s_and_b32 s40, s63, 1
    s_lshl_b32 s40, s40, 4
    s_lshr_b32 s35, s69, s40
    s_and_b32 s35, s35, 0xffff
    v_lshl_add_u32 v6, v4, 2, v5
    v_mov_b32 v7, s35
    """)
    for d in range(4):
        e(f"v_cmp_eq_u32 vcc, {15-d}, v6")
        e("s_nop 1")
        e(f"v_cndmask_b32 v{108+d}, 0, v7, vcc")
    e(f"""
    s_lshl_b32 s34, s29, 4
    v_and_b32 v6, 3, v2
    v_lshlrev_b32 v6, 2, v6
    v_add_u32 v6, s34, v6
    v_and_b32 v7, 15, v2
    v_lshlrev_b32 v12, 2, v7
    v_lshlrev_b32 v7, 7, v7
    s_lshl_b32 s34, s29, 11
    s_and_b32 s35, s2, 15
    s_lshl_b32 s35, s35, 2
    s_add_u32 s34, s34, s35
    v_mov_b32 v13, 1
    v_mov_b32 v14, s2
    s_mul_i32 s36, s61, {KB_RC}
    s_add_u32 s36, s36, s39
    s_lshl_b32 s37, s61, 12
    s_waitcnt vmcnt(0)
    s_barrier
    """)
    ST.stamp()
    e(f"""
    s_mov_b32 s33, s37
    s_cmp_lg_u32 s60, 7
    s_cbranch_scc1 ka_nb
    s_mov_b64 exec, 1
    buffer_store_byte v13, v14, s[52:55], 0 offen sc1
    s_mov_b64 exec, -1
    """)
    A.label("ka_nb")
    e(f"""
    s_cmp_lg_u32 s60, 0
    s_cbranch_scc1 ka_go
    s_mov_b64 exec, 0xffff
    buffer_store_dword v13, v7, s[56:59], s34 offen sc1
    s_mov_b64 exec, -1
    s_mov_b32 s38, 0
    s_mov_b32 s35, 0x01010101
    """)
    A.label("ka_poll")
    e(f"""
    buffer_load_dword v15, v12, s[56:59], s71 offen sc1
    s_add_u32 s38, s38, 1
    s_waitcnt vmcnt(0)
    v_cmp_ne_u32 vcc, 1, v15
    s_and_b32 s34, s38, 15
    s_cbranch_vccz ka_go
    s_cmp_lg_u32 s34, 0
    s_cbranch_scc1 ka_poll
    buffer_load_dword v15, v6, s[52:55], 0 offen sc1
    s_waitcnt vmcnt(0)
    v_cmp_ne_u32 vcc, s35, v15
    s_cmp_ge_u32 s38, 0x8000
    s_cbranch_scc1 ka_go
    s_cbranch_vccnz ka_poll
    """)
    A.label("ka_go")
    def kcopies():
        for c in range(4):
            e(f"s_add_u32 m0, s25, {c * KB_KC + 64}")
            e(f"s_add_u32 s37, s24, {4 * c + 4}")
            for b in range(2):
                e(f"buffer_load_dwordx4 v102, s[8:11], s37 offen offset:{b*1024} lds")
    e("s_cmp_eq_u32 s60, 0")
    e("s_cbranch_scc1 ka_k0")
    kcopies()
    A.label("ka_k0")
    e("s_mov_b32 s37, s33")
    e("s_mov_b32 m0, s36")
    e("s_barrier")
    ST.stamp()
    for b in range(4):
        e(f"buffer_load_dwordx4 v102, s[12:15], s37 offen offset:{b*1024} sc1 lds")
    e("s_cmp_lg_u32 s60, 0")
    e("s_cbranch_scc1 ka_k1")
    kcopies()
    A.label("ka_k1")
    e("""
    s_cmp_lg_u32 s61, 0
    s_cbranch_scc1 ka_epi
    s_waitcnt vmcnt(0)
    ds_write_b32 v8, v105
    s_waitcnt lgkmcnt(0)
    s_barrier
    """)
    ST.stamp()
    ACC, BR, NB, AR = 32, 64, 8, 112
    lg = Cnt(A, "lgkmcnt", 15)
    def rdA(p, slot):
        e(f"ds_read_b128 {v(AR + 32 * (p & 1) + 4 * slot, 4)}, v11 offset:{64 * p + 64 * (56 - 8 * slot)}")
        lg.issue(("A", p, slot))
    def rdB(p, u):
        e(f"ds_read_b128 {v(BR + 4 * (u % NB), 4)}, v10 offset:{64 * (p + 8 * u)}")
        lg.issue(("B", p, u))
    for sl in range(7, -1, -1): rdA(0, sl)
    for u in range(4): rdB(0, u)
    e("s_mov_b32 s38, 0")
    for j in range(7, -1, -1):
        lg.need(("A", 0, j))
        e(f"v_mfma_f32_16x16x32_bf16 {v(ACC+4*j,4)}, {v(AR+4*j,4)}, v[108:111], 0")
        if j >= 5: rdB(0, 11 - j)
    e("s_waitcnt lgkmcnt(0)")
    A.label("ka_cl")
    e("s_waitcnt lgkmcnt(3)")
    lg.q = [("B", 0, 4), ("B", 0, 5), ("B", 0, 6)]
    for p in range(2):
        mfs = [(u, j) for u in range(8) for j in range(7, u - 1, -1)]
        first = {}
        for x, (u, j) in enumerate(mfs): first.setdefault(u, x)
        fill = {}
        fill[0] = [lambda: rdB(p, 7)]
        for u in range(7):
            fill.setdefault(first[u + 1], []).append(lambda u=u: rdB(p + 1, u))
        for n, sl in enumerate(range(7, -1, -1)):
            fill.setdefault(3 + 3 * n if (3 + 3 * n) not in fill else 4 + 3 * n, []).append(lambda sl=sl: rdA(p + 1, sl))
        for x, (u, j) in enumerate(mfs):
            lg.need(("B", p, u)); lg.need(("A", p, j - u))
            c = v(ACC + 4 * j, 4)
            e(f"v_mfma_f32_16x16x32_bf16 {c}, {v(AR+32*p+4*(j-u),4)}, {v(BR+4*(u%NB),4)}, {c}")
            for fn in fill.get(x, []): fn()
    e("""
    v_add_u32 v10, 128, v10
    v_add_u32 v11, 128, v11
    s_add_u32 s38, s38, 1
    s_cmp_lt_u32 s38, 4
    s_cbranch_scc1 ka_cl
    s_waitcnt lgkmcnt(0)
    """)
    ST.stamp()
    e(f"""
    v_lshlrev_b32 v16, 7, v4
    v_lshl_add_u32 v16, v5, 2, v16
    v_add_u32 v16, s30, v16
    s_nop 7
    """)
    for j in range(8):
        c = ACC + 4 * j
        e(f"v_cvt_pk_bf16_f32 v{c}, v{c}, v{c+1}")
        e(f"v_cvt_pk_bf16_f32 v{c+1}, v{c+2}, v{c+3}")
        e(f"ds_write_b32 v16, v{c} offset:{512*j}")
        e(f"ds_write_b32 v16, v{c+1} offset:{512*j+64}")
    e("s_waitcnt lgkmcnt(0)")
    e("s_barrier")
    fin()
    e("s_endpgm")
    A.label("ka_epi")
    e("v_lshlrev_b32 v16, 4, v101")
    e("v_lshlrev_b32 v17, 2, v101")
    e("v_lshlrev_b32 v18, 5, v101")
    e("""
    v_min_u32 v6, 27, v2
    v_lshlrev_b32 v6, 2, v6
    s_mov_b32 s35, 0x01010101
    s_mov_b32 s38, 0
    """)
    for r in range(4):
        e(f"s_movk_i32 s37, {4096*r}")
        e(f"buffer_load_dwordx4 {v(80+8*r,4)}, v16, s[16:19], s37 offen sc1")
    e("""
    s_waitcnt vmcnt(4) lgkmcnt(0)
    s_barrier
    """)
    A.label("ka_poll2")
    e("""
    buffer_load_dword v15, v6, s[52:55], 0 offen offset:144 sc1
    s_add_u32 s38, s38, 1
    s_waitcnt vmcnt(0)
    v_cmp_ne_u32 vcc, s35, v15
    s_cmp_ge_u32 s38, 0x8000
    s_cbranch_scc1 ka_go2
    s_cbranch_vccnz ka_poll2
    """)
    A.label("ka_go2")
    for r in range(4):
        e(f"s_movk_i32 s37, {4096*r}")
        e(f"buffer_load_dwordx4 {v(84+8*r,4)}, v16, s[20:23], s37 offen sc1")
    e(f"""
    s_and_b32 s40, s2, 1
    s_lshl_b32 s40, s40, 3
    v_add_u32 v18, s40, v18
    s_mov_b32 s41, 0xffff0000
    v_add_u32 v19, {2*KB_CH}, v17
    s_waitcnt vmcnt(0)
    """)
    XF, XH = 112, 144
    for r in range(4):
        X = 80 + 8 * r; M = 84 + 8 * r
        for tq in range(2):
            b = 8 * r + 4 * tq
            for d in range(2):
                e(f"v_lshlrev_b32 v{XF+b+2*d}, 16, v{X+2*tq+d}")
                e(f"v_and_b32 v{XF+b+2*d+1}, s41, v{X+2*tq+d}")
            for c_ in range(4):
                e(f"v_sub_f32 v{XH+b+c_}, v{XF+b+c_}, v{M+2*tq}")
            for c_ in range(4):
                e(f"v_mul_f32 v{XH+b+c_}, v{XH+b+c_}, v{M+2*tq+1}")
    e("s_barrier")
    for r in range(4):
        for ch in range(4):
            base = "v17" if ch < 2 else "v19"
            e(f"ds_read_b32 v{64+4*r+ch}, {base} offset:{(ch&1)*KB_CH + 1024*r}")
    for r in range(4):
        e(f"s_waitcnt lgkmcnt({12-4*r})")
        Y = 64 + 4 * r
        e(f"s_movk_i32 s37, {8192*r}")
        for tq in range(2):
            b = 8 * r + 4 * tq
            for ch in range(4):
                if tq == 0: e(f"v_lshlrev_b32 v{36+ch}, 16, v{Y+ch}")
                else: e(f"v_and_b32 v{36+ch}, s41, v{Y+ch}")
            for p in range(2):
                e(f"v_pk_fma_f32 {v(XF+b+2*p,2)}, {v(XH+b+2*p,2)}, {v(36+2*p,2)}, {v(XF+b+2*p,2)}")
            O = 44 + 4 * (r & 1) + 2 * tq
            e(f"v_cvt_pk_bf16_f32 v{O}, v{XF+b}, v{XF+b+1}")
            e(f"v_cvt_pk_bf16_f32 v{O+1}, v{XF+b+2}, v{XF+b+3}")
            e(f"buffer_store_dwordx2 {v(O,2)}, v18, s[44:47], s37 offen offset:{16*tq}{SCH}")
    fin()
    e("s_endpgm")
    A.label("ka_stats")
    e(f"""
    s_sub_u32 s28, s2, 144
    s_lshl_b32 s29, s28, 5
    s_lshl_b32 s28, s28, 4
    s_add_u32 s28, s28, 256
    s_cmp_lt_u32 s2, 160
    s_cselect_b32 s28, s29, s28
    s_cselect_b32 s29, 32, 16
    v_lshrrev_b32 v1, 4, v0
    v_cmp_gt_u32 vcc, s29, v1
    v_add_u32 v1, s28, v1
    v_mov_b32 v2, 0x100000
    v_cndmask_b32 v1, v2, v1, vcc
    v_and_b32 v2, 15, v0
    s_movk_i32 s29, 1152
    v_mul_lo_u32 v3, v1, s29
    v_lshl_add_u32 v3, v2, 3, v3
    v_lshlrev_b32 v4, 3, v1
    s_waitcnt lgkmcnt(0)
    """)
    A.srd(40, 38, 39, S * D * 2)
    A.srd_off(44, 26, 27, WS_ST, 2 * S * 8)
    A.srd(52, 50, 51, 256)
    XR, XF = 72, 34
    for rd in range(1):
        e(f"s_mov_b32 s33, {rd*32*1152}")
        for i in range(9):
            e(f"buffer_load_dwordx2 {v(XR+18*rd+2*i,2)}, v3, s[40:43], s33 offen offset:{128*i}")
    e("s_mov_b32 s30, 0xffff0000")
    e(f"s_mov_b32 s31, {fbits(1.0/576):#x}")
    e(f"s_mov_b32 s32, {fbits(1e-5):#x}")
    e("v_cmp_eq_u32 s[36:37], 0, v2")
    e(f"s_movk_i32 s33, {S*8}")
    e("v_mov_b32 v14, -1")
    e("v_mov_b32 v15, -1")
    for rd in range(1):
        e("s_waitcnt vmcnt(0)")
        for d in range(18):
            e(f"v_lshlrev_b32 v{XF+2*d}, 16, v{XR+18*rd+d}")
            e(f"v_and_b32 v{XF+2*d+1}, s30, v{XR+18*rd+d}")
        M = 8 + 8 * (rd & 1)
        e(f"v_pk_add_f32 v[{M}:{M+1}], {v(XF,2)}, {v(XF+2,2)}")
        e(f"v_pk_add_f32 v[10:11], {v(XF+4,2)}, {v(XF+6,2)}")
        for i in range(2, 9):
            e(f"v_pk_add_f32 v[{M}:{M+1}], v[{M}:{M+1}], {v(XF+4*i,2)}")
            e(f"v_pk_add_f32 v[10:11], v[10:11], {v(XF+4*i+2,2)}")
        e(f"v_pk_add_f32 v[{M}:{M+1}], v[{M}:{M+1}], v[10:11]")
        e(f"v_add_f32 v{M}, v{M}, v{M+1}")
        dpp_sum16(A, M)
        e(f"v_mul_f32 v{M}, s31, v{M}")
        for i in range(18):
            e(f"v_pk_add_f32 {v(XF+2*i,2)}, {v(XF+2*i,2)}, v[{M}:{M+1}] op_sel_hi:[1,0] neg_lo:[0,1] neg_hi:[0,1]")
        e(f"v_pk_mul_f32 v[10:11], {v(XF,2)}, {v(XF,2)}")
        e(f"v_pk_mul_f32 v[12:13], {v(XF+2,2)}, {v(XF+2,2)}")
        for i in range(1, 9):
            e(f"v_pk_fma_f32 v[10:11], {v(XF+4*i,2)}, {v(XF+4*i,2)}, v[10:11]")
            e(f"v_pk_fma_f32 v[12:13], {v(XF+4*i+2,2)}, {v(XF+4*i+2,2)}, v[12:13]")
        e("v_pk_add_f32 v[10:11], v[10:11], v[12:13]")
        e(f"v_add_f32 v{M+1}, v10, v11")
        dpp_sum16(A, M + 1)
        e(f"""
        v_mov_b32 v10, s32
        v_fmac_f32 v10, s31, v{M+1}
        v_rsq_f32 v{M+1}, v10
        s_mov_b64 exec, s[36:37]
        buffer_store_dwordx2 v[{M}:{M+1}], v4, s[44:47], 0 offen offset:{256*rd} sc1
        buffer_store_dwordx2 v[14:15], v4, s[44:47], s33 offen offset:{256*rd}
        s_mov_b64 exec, -1
        """)
    e(f"""
    v_mov_b32 v13, 1
    v_mov_b32 v12, s2
    s_waitcnt vmcnt(0)
    s_barrier
    v_cmp_eq_u32 vcc, 0, v0
    s_and_saveexec_b64 s[34:35], vcc
    s_cbranch_execz ka_nf
    buffer_store_byte v13, v12, s[52:55], 0 offen sc1
    """)
    A.label("ka_nf")
    e("s_mov_b64 exec, s[34:35]")
    e("s_cmp_ge_u32 s2, 160")
    e("s_cbranch_scc1 ka_pack0")
    fin()
    e("s_endpgm")
    A.label("ka_pack0")
    e("s_sub_u32 s2, s2, 160")
    emit_w_packer(A, "ka0", 0, 288, fin, halves=True, ksplit=True)
    A.label("ka_done")
    e("s_endpgm")
    A.kernel_end(name, 176, 102 if ST.on else 72)

def k_ln(A):
    name = "kl_kernel"
    A.launch(name, 256, 128, 0)
    A.kernel_begin(name)
    e = A.e
    e(f"""
    s_cmp_ge_u32 s2, 256
    s_cbranch_scc1 kl_done
    s_load_dwordx2 s[4:5], s[0:1], {KA_X}
    s_load_dwordx2 s[26:27], s[0:1], {KA_WS}
    v_lshrrev_b32 v1, 4, v0
    v_and_b32 v2, 15, v0
    s_lshl_b32 s28, s2, 3
    v_add_u32 v1, s28, v1
    s_movk_i32 s29, 1152
    v_mul_lo_u32 v3, v1, s29
    v_lshl_add_u32 v3, v2, 3, v3
    v_lshlrev_b32 v4, 14, v2
    v_lshl_add_u32 v4, v1, 3, v4
    v_lshrrev_b32 v5, 1, v2
    v_lshlrev_b32 v5, 15, v5
    v_lshl_add_u32 v5, v1, 4, v5
    v_and_b32 v6, 1, v2
    v_lshl_add_u32 v5, v6, 3, v5
    s_waitcnt lgkmcnt(0)
    """)
    A.srd(8, 4, 5, S * D * 2)
    A.srd_off(12, 26, 27, WS_YQ, S * D * 2)
    A.srd_off(16, 26, 27, WS_XLN, S * D * 2)
    A.srd_off(20, 26, 27, WS_H, S * D * 2)
    XR, YR, XF = 16, 34, 52
    A.srd_off(44, 26, 27, WS_PART + 4 * S * D * 2, 8192)
    e("""
    s_lshl_b32 s43, s2, 9
    v_lshlrev_b32 v7, 2, v0
    v_add_u32 v7, s43, v7
    v_mov_b32 v8, 0
    buffer_store_dword v8, v7, s[44:47], 0 offen
    """)
    for i in range(9):
        e(f"buffer_load_dwordx2 {v(XR+2*i,2)}, v3, s[8:11], 0 offen offset:{128*i}")
    for i in range(9):
        e(f"s_mov_b32 s{30+i}, {i*262144:#x}")
    for i in range(9):
        e(f"buffer_load_dwordx2 {v(YR+2*i,2)}, v4, s[12:15], s{30+i} offen")
    e("s_mov_b32 s40, 0xffff0000")
    e(f"s_mov_b32 s41, {fbits(1.0/576):#x}")
    e(f"s_mov_b32 s42, {fbits(1e-5):#x}")
    e("s_waitcnt vmcnt(9)")
    def unpack(dst, src):
        for d in range(18):
            e(f"v_lshlrev_b32 v{dst+2*d}, 16, v{src+d}")
            e(f"v_and_b32 v{dst+2*d+1}, s40, v{src+d}")
    def stats():
        for k in range(4):
            e(f"v_add_f32 v{8+k}, v{XF+k}, v{XF+4+k}")
        for i in range(2, 9):
            for k in range(4):
                e(f"v_add_f32 v{8+k}, v{8+k}, v{XF+4*i+k}")
        e("v_add_f32 v8, v8, v9")
        e("v_add_f32 v10, v10, v11")
        e("v_add_f32 v8, v8, v10")
        dpp_sum16(A, 8)
        e("v_mul_f32 v8, s41, v8")
        for i in range(36):
            e(f"v_sub_f32 v{XF+i}, v{XF+i}, v8")
        for k in range(4):
            e(f"v_mul_f32 v{9+k}, v{XF+k}, v{XF+k}")
        for i in range(1, 9):
            for k in range(4):
                e(f"v_fmac_f32 v{9+k}, v{XF+4*i+k}, v{XF+4*i+k}")
        e("v_add_f32 v9, v9, v10")
        e("v_add_f32 v11, v11, v12")
        e("v_add_f32 v9, v9, v11")
        dpp_sum16(A, 9)
        e("v_mov_b32 v10, s42")
        e("v_fmac_f32 v10, s41, v9")
        e("v_rsq_f32 v9, v10")
        e("s_nop 0")
    unpack(XF, XR)
    stats()
    e("s_waitcnt vmcnt(0)")
    for d in range(18):
        e(f"v_lshlrev_b32 v10, 16, v{YR+d}")
        e(f"v_and_b32 v11, s40, v{YR+d}")
        e(f"v_fma_f32 v10, v10, v9, 1.0")
        e(f"v_fma_f32 v11, v11, v9, 1.0")
        e(f"v_fma_f32 v10, v{XF+2*d}, v10, v8")
        e(f"v_fma_f32 v11, v{XF+2*d+1}, v11, v8")
        e(f"v_cvt_pk_bf16_f32 v{XR+d}, v10, v11")
    for i in range(9):
        e(f"buffer_store_dwordx2 {v(XR+2*i,2)}, v5, s[20:23], s{30+i} offen")
    unpack(XF, XR)
    stats()
    for d in range(18):
        e(f"v_mul_f32 v10, v{XF+2*d}, v9")
        e(f"v_mul_f32 v11, v{XF+2*d+1}, v9")
        e(f"v_cvt_pk_bf16_f32 v{YR+d}, v10, v11")
    for i in range(9):
        e(f"buffer_store_dwordx2 {v(YR+2*i,2)}, v5, s[16:19], s{30+i} offen")
    A.label("kl_done")
    e("s_endpgm")
    A.kernel_end(name, 88, 48)


def emit_piece_voffsets(A, vdst, n, vP0, row_stride, tmp=(4, 5, 6, 7, 8)):
    e = A.e
    t0, t1, t2, t3, t4 = tmp
    e("s_movk_i32 s34, 3641")
    e(f"s_movk_i32 s35, {row_stride}")
    for i in range(n):
        e(f"v_add_u32 v{t0}, {256*i}, v{vP0}")
        e(f"v_mul_lo_u32 v{t1}, v{t0}, s34")
        e(f"v_lshrrev_b32 v{t1}, 16, v{t1}")
        e(f"v_mul_u32_u24 v{t2}, 18, v{t1}")
        e(f"v_sub_u32 v{t2}, v{t0}, v{t2}")
        e(f"v_and_b32 v{t3}, 0xfffffff3, v{t1}")
        e(f"v_and_b32 v{t4}, 4, v{t1}")
        e(f"v_lshl_or_b32 v{t3}, v{t4}, 1, v{t3}")
        e(f"v_and_b32 v{t4}, 8, v{t1}")
        e(f"v_lshrrev_b32 v{t4}, 1, v{t4}")
        e(f"v_or_b32 v{t3}, v{t3}, v{t4}")
        e(f"v_mul_lo_u32 v{t3}, v{t3}, s35")
        e(f"v_lshl_add_u32 v{vdst+i}, v{t2}, 4, v{t3}")

def emit_tr_base(A, vdst, vlane, stage, nstage):
    e = A.e
    e(f"""
    v_lshrrev_b32 v6, 5, v{vlane}
    v_lshlrev_b32 v6, 4, v6
    v_bfe_u32 v7, v{vlane}, 4, 1
    v_lshl_add_u32 v6, v7, 2, v6
    v_bfe_u32 v7, v{vlane}, 2, 2
    v_add_u32 v6, v6, v7
    v_mul_u32_u24 v6, 288, v6
    v_and_b32 v7, 3, v{vlane}
    v_lshl_add_u32 v{vdst}, v7, 3, v6
    """)
    for sidx in range(1, nstage):
        e(f"v_add_u32 v{vdst+sidx}, {sidx*stage}, v{vdst}")

KC_UP = 18432
KC_STAGE = 36864
SC1 = " sc1" if os.environ.get("SC1", "1") == "1" else ""
SC1C = {"1": " sc1", "0": "", "nt": " nt", "sc0": " sc0", "sc01": " sc0 sc1"}[os.environ.get("SC1C", "1")]

def emit_d_tail(A, ACC, srd, s_tt, s_nt, s_ks, s_r, s_h, base=None):
    e = A.e
    l0, l1 = A.newlabel("kd_h0"), A.newlabel("kd_hj")
    e(f"""
    s_mul_i32 s33, s28, 9216
    v_lshlrev_b32 v3, 4, v2
    v_add_u32 v4, s33, v3
    s_xor_b32 s34, s28, 4
    s_mul_i32 s34, s34, 9216
    v_add_u32 v5, s34, v3
    """)
    if base is None:
        e("s_barrier")
    else:
        e(f"v_add_u32 v4, {base}, v4")
        e(f"v_add_u32 v5, {base}, v5")
    e(f"""
    s_cmp_eq_u32 s{s_h}, 0
    s_cbranch_scc1 {l0}
    """)
    for j in range(9):
        e(f"ds_write_b128 v4, {v(ACC+4*j,4)} offset:{1024*j}")
    for j in range(9):
        for r in range(4):
            e(f"v_mov_b32 v{ACC+4*j+r}, v{ACC+36+4*j+r}")
    e(f"s_branch {l1}")
    A.label(l0)
    for j in range(9):
        e(f"ds_write_b128 v4, {v(ACC+36+4*j,4)} offset:{1024*j}")
    A.label(l1)
    e("s_waitcnt lgkmcnt(0)")
    e("s_barrier")
    for j in range(9):
        e(f"ds_read_b128 {v(40+4*j,4)}, v5 offset:{1024*j}")
    e(f"""
    s_lshl_b32 s42, s{s_tt}, 2
    s_add_u32 s42, s42, s{s_nt}
    s_lshl_b32 s42, s42, 2
    s_add_u32 s43, s42, s{s_r}
    s_lshl_b32 s43, s43, 2
    s_add_u32 s43, s43, s{s_ks}
    s_mul_i32 s44, s43, 9216
    s_lshl_b32 s33, s{s_h}, 8
    s_add_u32 s44, s44, s33
    v_and_b32 v6, 15, v2
    v_lshlrev_b32 v6, 4, v6
    v_bfe_u32 v7, v2, 4, 1
    v_lshl_add_u32 v8, v7, 10, v6
    v_lshrrev_b32 v24, 5, v2
    v_lshl_add_u32 v8, v24, 9, v8
    v_lshl_add_u32 v6, v24, 9, v6
    v_lshl_add_u32 v6, v7, 3, v6
    s_add_u32 s45, s44, 4096
    s_add_u32 s46, s44, 8192
    """)
    for j in range(9):
        e(f"s_waitcnt lgkmcnt({8-j})")
        e(f"v_pk_add_f32 {v(ACC+4*j,2)}, {v(ACC+4*j,2)}, {v(40+4*j,2)}")
        e(f"v_pk_add_f32 {v(ACC+4*j+2,2)}, {v(ACC+4*j+2,2)}, {v(40+4*j+2,2)}")
        O = 80 + 2 * j
        e(f"v_cvt_pk_bf16_f32 v{O}, v{ACC+4*j}, v{ACC+4*j+1}")
        e(f"v_cvt_pk_bf16_f32 v{O+1}, v{ACC+4*j+2}, v{ACC+4*j+3}")
        if j >= 2 and j % 2 == 0:
            jp = j // 2 - 1
            P_ = 80 + 4 * jp
            e(f"v_permlane16_swap_b32 v{P_}, v{P_+2}")
            e(f"v_permlane16_swap_b32 v{P_+1}, v{P_+3}")
            e(f"buffer_store_dwordx4 {v(P_,4)}, v8, s[{srd}:{srd+3}], s{44+jp//2} offen offset:{2048*(jp%2)} sc1")
    e(f"buffer_store_dwordx2 v[96:97], v6, s[{srd}:{srd+3}], s46 offen sc1")

FLAG_OFF = 4 * S * D * 2
def k_c(A):
    name = "kc_kernel"
    CS_L = 4 * KC_STAGE
    A.launch(name, 256, 512, 4 * KC_STAGE + 2048 + 8192)
    A.kernel_begin(name)
    e = A.e
    XR = 112
    ACC = 64
    WR = 40
    NW = 6
    T, O, CS = 24, 24, 32
    K = 16
    PK = int(os.environ.get("KC_PK", "0"))
    ST = Stamps(A, STAMP in ("kc", "kd2"))
    ST.stamp(); ST.real(0)
    ST.mute = STAMP == "kd2"
    e(f"""
    s_cmp_ge_u32 s2, 256
    s_cbranch_scc1 kc_done
    s_load_dwordx2 s[26:27], s[0:1], {KA_WS}
    s_load_dwordx2 s[4:5], s[0:1], {KA_WD}
    v_lshrrev_b32 v1, 6, v0
    v_and_b32 v2, 63, v0
    v_lshlrev_b32 v3, 4, v2
    v_readfirstlane_b32 s28, v1
    s_and_b32 s33, s2, 7
    s_lshr_b32 s34, s2, 3
    s_lshr_b32 s29, s33, 1
    s_lshl_b32 s29, s29, 3
    s_and_b32 s31, s34, 7
    s_add_u32 s29, s29, s31
    s_and_b32 s30, s33, 1
    s_lshl_b32 s30, s30, 2
    s_lshr_b32 s31, s34, 3
    s_add_u32 s30, s30, s31
    s_lshl_b32 s33, s30, 8
    s_lshl_b32 s34, s28, 5
    s_add_u32 s33, s33, s34
    v_and_b32 v4, 15, v2
    v_add_u32 v4, s33, v4
    v_lshrrev_b32 v5, 4, v2
    v_lshlrev_b32 v5, 15, v5
    v_lshl_add_u32 v9, v4, 4, v5
    s_lshl_b32 s36, s28, 12
    s_mul_i32 s37, s29, {324*1024}
    s_lshl_b32 s31, s28, 10
    s_add_u32 s31, s31, 32768
    s_and_b32 s64, s29, {7 if KC_ROT else 0}
    s_mul_i32 s65, s64, {4096*NP1}
    s_add_u32 s66, s65, s36
    s_add_u32 s67, s65, s31
    s_lshl_b32 s65, s64, 12
    s_add_u32 s68, s65, s36
    s_add_u32 s69, s65, s31
    s_sub_u32 s65, s68, {KC_STAGE}
    s_cmp_ge_u32 s68, {KC_STAGE}
    s_cselect_b32 s68, s65, s68
    s_sub_u32 s65, s69, {KC_STAGE}
    s_cmp_ge_u32 s69, {KC_STAGE}
    s_cselect_b32 s69, s65, s69
    s_add_u32 s68, s68, s37
    s_add_u32 s69, s69, s37
    s_lshl_b32 s70, s64, 18
    s_waitcnt lgkmcnt(0)
    """)
    A.srd_off(8, 26, 27, WS_WP, 2 * D * F * 2)
    A.srd_off(12, 26, 27, WS_H, S * D * 2)
    vm = Cnt(A, "vmcnt", 63)
    lg = Cnt(A, "lgkmcnt", 15)
    issued = set()
    done_st = lambda vm_, iss: iss
    def soff(c, sfirst, slater):
        if c >= NP1:
            e(f"s_add_u32 s38, s{slater}, {c*KC_STAGE}")
        else:
            e(f"s_add_u32 s38, s{sfirst}, {c*KC_STAGE}")
            e(f"s_sub_u32 s65, s38, {NP1*KC_STAGE}")
            e(f"s_cmp_ge_u32 s38, {NP1*KC_STAGE}")
            e("s_cselect_b32 s38, s65, s38")
            e("s_add_u32 s38, s38, s37")
    def dma_ops(c):
        st = c % 4
        def opt():
            lab = A.newlabel("kc_skip")
            e("s_cmp_ge_u32 s28, 4")
            e(f"s_cbranch_scc1 {lab}")
            e(f"s_add_u32 m0, s31, {st*KC_STAGE}")
            soff(c, 67, 69)
            e(f"buffer_load_dwordx4 v3, s[8:11], s38 offen lds")
            A.label(lab)
        ops = [opt, lambda: e(f"s_add_u32 m0, s36, {st*KC_STAGE}"), lambda: soff(c, 66, 68)]
        for i in range(4):
            def ld(i=i):
                e(f"buffer_load_dwordx4 v3, s[8:11], s38 offen offset:{1024*i} lds")
                vm.issue(("W", c))
            ops.append(ld)
        return [("W", c, op) for op in ops]
    def x_ops(sx):
        def so():
            e("s_mov_b32 s40, s70")
            e(f"s_add_u32 s70, s70, {4*32768:#x}")
            e(f"s_cmp_ge_u32 s70, {72*32768:#x}")
            e("s_cselect_b32 s70, 0, s70")
        ops = [so]
        for tt in range(2):
            def ld(tt=tt):
                e(f"buffer_load_dwordx4 {v(XR+8*sx+4*tt,4)}, v9, s[12:15], s40 offen offset:{256*tt}")
                vm.issue(("X", sx))
            ops.append(ld)
        return [("X", sx, op) for op in ops]
    def run_ops(ops):
        for op in ops: op[2]()
    PF8 = int(os.environ.get("PF8", "3"))
    NXP = int(os.environ.get("KC_NXP", "4"))
    NX0 = int(os.environ.get("KC_NX0", "2"))
    run_ops(dma_ops(0))
    for sx in range(NX0): run_ops(x_ops(sx))
    A.srd_off(48, 26, 27, WS_ST2, S * 8)
    e(f"""
    s_lshl_b32 s52, s30, 8
    s_lshl_b32 s53, s29, 3
    s_add_u32 s52, s52, s53
    s_add_u32 s52, s52, s28
    s_lshl_b32 s53, s52, 4
    s_add_u32 s54, s53, {36*32768}
    v_lshlrev_b32 v4, 15, v2
    v_mov_b32 v5, 0x7ffffff0
    v_cmp_gt_u32 s[56:57], 36, v2
    s_lshl_b32 s52, s52, 3
    s_nop 0
    v_cndmask_b32 v4, v5, v4, s[56:57]
    buffer_load_dwordx4 v[{T}:{T+3}], v4, s[12:15], s53 offen
    buffer_load_dwordx4 v[{T+4}:{T+7}], v4, s[12:15], s54 offen
    """)
    vm.issue("row"); vm.issue("row")
    A.srd_off(16, 26, 27, WS_HH, S * F * 2)
    A.srd_off(20, 26, 27, WS_CS, 12 * F * 4)
    e(f"""
    v_and_b32 v4, 31, v2
    v_add_u32 v4, s33, v4
    v_lshrrev_b32 v5, 5, v2
    v_lshlrev_b32 v5, 15, v5
    v_lshl_add_u32 v1, v4, 4, v5
    v_add_u32 v6, {KC_STAGE}, v3
    v_add_u32 v7, {2*KC_STAGE}, v3
    v_add_u32 v8, {3*KC_STAGE}, v3
    v_lshrrev_b32 v10, 4, v2
    v_lshlrev_b32 v10, 4, v10
    v_add_u32 v10, {CS_L}, v10
    s_lshr_b32 s32, s28, 2
    s_mul_i32 s33, s32, {F*4}
    s_mul_i32 s34, s29, 576
    s_add_u32 s33, s33, s34
    v_mov_b32 v5, 0x7ffffff0
    v_cmp_gt_u32 vcc, 36, v2
    s_lshl_b32 s32, s32, 10
    s_add_u32 s32, s32, {CS_L}
    v_cndmask_b32 v13, v5, v3, vcc
    v_add_u32 v11, s32, v3
    s_mov_b32 s55, s33
    s_mov_b32 s47, 0xffff0000
    s_mul_i32 s42, s29, {18*32768}
    """)
    e(f"""
    s_mov_b32 s44, {fbits(1.0/576):#x}
    v_and_b32 v12, 0x7fff, v9
    v_lshrrev_b32 v12, 1, v12
    """)
    def pub_ops():
        L = [lambda: vm.need("row")]
        q = lambda s_: L.append(lambda: e(s_))
        def wave_sum(r, t):
            for sh in (8, 4, 2, 1):
                q(f"s_nop 1\nv_add_f32_dpp v{r}, v{r}, v{r} row_ror:{sh} row_mask:0xf bank_mask:0xf")
            for op in ("v_permlane16_swap_b32", "v_permlane32_swap_b32"):
                q(f"v_mov_b32 v{t}, v{r}")
                q(f"s_nop 1\n{op} v{r}, v{t}")
                q(f"v_add_f32 v{r}, v{r}, v{t}")
        for d in range(8):
            q(f"v_lshlrev_b32 v{K+4+(d&1)*2}, 16, v{T+d}")
            q(f"v_and_b32 v{K+5+(d&1)*2}, s47, v{T+d}")
            if d == 0:
                q(f"v_add_f32 v{K}, v{K+4}, v{K+5}")
            else:
                q(f"v_add_f32 v{K}, v{K}, v{K+4+(d&1)*2}")
                q(f"v_add_f32 v{K}, v{K}, v{K+5+(d&1)*2}")
        wave_sum(K, K + 1)
        q(f"v_mul_f32 v{K}, s44, v{K}")
        q(f"v_mov_b32 v{K+2}, 0")
        for d in range(8):
            u = K + 4 + (d & 1) * 2
            q(f"v_lshlrev_b32 v{u}, 16, v{T+d}")
            q(f"v_and_b32 v{u+1}, s47, v{T+d}")
            q(f"v_sub_f32 v{u}, v{u}, v{K}")
            q(f"v_sub_f32 v{u+1}, v{u+1}, v{K}")
            q(f"v_fmac_f32 v{K+2}, v{u}, v{u}")
            q(f"v_fmac_f32 v{K+2}, v{u+1}, v{u+1}")
        q(f"v_cndmask_b32 v{K+2}, 0, v{K+2}, s[56:57]")
        wave_sum(K + 2, K + 3)
        q(f"v_mov_b32 v{K+1}, {fbits(1e-5):#x}")
        q(f"v_fmac_f32 v{K+1}, s44, v{K+2}")
        q("v_mov_b32 v4, 0")
        def st():
            e("s_mov_b64 exec, 1")
            e(f"buffer_store_dwordx2 v[{K}:{K+1}], v4, s[48:51], s52 offen sc1")
            e("s_mov_b64 exec, -1")
            vm.issue("pub", "S")
        L.append(st)
        return L
    RB = [3, 6, 7, 8]
    def finfo(f):
        b = f // 36
        if b < NP1: return (f // (2 * NP1), (f % (2 * NP1)) >> 1, f & 1)
        return ((f % 36) // 2, b, f & 1)
    def wread(f):
        e(f"ds_read_b128 {v(WR+4*(f%NW),4)}, v{RB[(f//36)%4]} offset:{1024*(f%36)}")
        lg.issue(("w", f))
    def stat_ops(sx):
        ops = []
        for tt in range(2):
            for d in range(4):
                r = XR + 8 * sx + 4 * tt + d
                k = K + 4 * tt
                ops.append(lambda r=r: e(f"v_lshlrev_b32 v4, 16, v{r}"))
                ops.append(lambda r=r: e(f"v_and_b32 v5, s47, v{r}"))
                ops.append(lambda k=k: e(f"v_add_f32 v{k}, v{k}, v4"))
                ops.append(lambda k=k: e(f"v_add_f32 v{k+1}, v{k+1}, v5"))
                ops.append(lambda k=k: e(f"v_fmac_f32 v{k+2}, v4, v4"))
                ops.append(lambda k=k: e(f"v_fmac_f32 v{k+3}, v5, v5"))
        return ops
    c0 = -2.0 * math.sqrt(2.0 / math.pi) * math.log2(math.e)
    c1 = c0 * 0.044715
    def statld_ops():
        L = []
        for tt in range(2):
            def ld(tt=tt):
                e(f"buffer_load_dwordx2 v[{K+4*tt}:{K+4*tt+1}], v12, s[48:51], 0 offen offset:{128*tt} sc1")
                vm.issue("stat")
            L.append(ld)
        return L
    def statfin_ops():
        L = []
        q = lambda s_: L.append(lambda: e(s_))
        def chk():
            vm.need("stat")
            e(f"v_cmp_eq_u32 vcc, -1, v{K+1}")
            e(f"v_cmp_eq_u32 s[58:59], -1, v{K+5}")
            e("s_nop 1")
            e("s_or_b64 vcc, vcc, s[58:59]")
            e("s_cbranch_vccnz kc_slowstat" if not os.environ.get("KC_FORCESLOW") else "s_branch kc_slowstat")
            A.label("kc_statok")
        L.append(chk)
        q(f"s_mov_b32 s45, {fbits(c0):#x}")
        q(f"s_mov_b32 s46, {fbits(c1):#x}")
        for tt in range(2):
            k = K + 4 * tt
            q(f"v_rsq_f32 v{k+2}, v{k+1}")
            q(f"v_sub_f32 v{k}, 0, v{k}")
            q(f"v_mul_f32 v{k+3}, v{k+2}, v{k+2}")
            q(f"v_mul_f32 v{k+3}, v{k+3}, v{k+2}")
            q(f"v_mul_f32 v{k+3}, s46, v{k+3}")
            q(f"v_mul_f32 v{k+2}, s45, v{k+2}")
        return L
    def slowstat():
        A.label("kc_slowstat")
        for r in range(8): e(f"v_mov_b32 v{K+r}, 0")
        for sx in range(18):
            for op in stat_ops(sx): op()
        R4 = [K, K + 2, K + 4, K + 6]
        for r in R4: e(f"v_add_f32 v{r}, v{r}, v{r+1}")
        for op in ("v_permlane32_swap_b32", "v_permlane16_swap_b32"):
            for r in R4: e(f"v_mov_b32 v{r+1}, v{r}")
            e("s_nop 1")
            for r in R4: e(f"{op} v{r}, v{r+1}")
            for r in R4: e(f"v_add_f32 v{r}, v{r}, v{r+1}")
        for tt in range(2):
            k = K + 4 * tt
            e(f"v_mul_f32 v{k}, s44, v{k}")
            e(f"v_mul_f32 v{k+1}, s44, v{k+2}")
            e(f"v_fma_f32 v{k+1}, -v{k}, v{k}, v{k+1}")
            e(f"v_max_f32 v{k+1}, 0, v{k+1}")
            e(f"v_add_f32 v{k+1}, {fbits(1e-5):#x}, v{k+1}")
        e("s_branch kc_statok")
    def cs_rd(j):
        if j > 8: return
        e(f"ds_read_b128 {v(CS,4)}, v10 offset:{64*j}"); lg.issue(("cs", j))
        e(f"ds_read_b128 {v(CS+4,4)}, v10 offset:{1024+64*j}"); lg.issue(("cs", j))
    def epi_ops(j):
        L = []
        q = lambda s_: L.append(lambda: e(s_))
        g0 = ACC + 16 * (j % 3)
        L.append(lambda: lg.need(("cs", j)))
        kk = lambda r: K + 4 * (r // 4)
        P = lambda r: v(r, 2)
        stages = [
            (0, lambda r: [f"v_fmac_f32 v{g0+r}, v{CS+(r%4)}, v{kk(r)}", f"v_fmac_f32 v{g0+8+r}, v{CS+4+(r%4)}, v{kk(r)}"]),
            (1, lambda r: [f"v_mul_f32 v{T+r}, v{g0+r}, v{g0+r}"]),
            (2, lambda r: [f"v_fma_f32 v{T+r}, v{T+r}, v{kk(r)+3}, v{kk(r)+2}"]),
            (3, lambda r: [f"v_mul_f32 v{T+r}, v{T+r}, v{g0+r}"]),
            (4, lambda r: [f"v_exp_f32 v{T+r}, v{T+r}", f"v_mul_f32 v{g0+r}, v{g0+r}, v{g0+8+r}"]),
            (5, lambda r: [f"v_fma_f32 v{T+r}, v{T+r}, v{kk(r)+1}, v{kk(r)+1}"]),
            (6, lambda r: [f"v_rcp_f32 v{T+r}, v{T+r}"]),
            (7, lambda r: [f"v_mul_f32 v{g0+r}, v{g0+r}, v{T+r}"]),
        ]
        order = [6, 0, 1, 7, 4, 2, 3, 5]
        for k_ in range(8 + 7):
            for si in order:
                off, fn = stages[si]
                r = k_ - off
                if 0 <= r < 8:
                    for s_ in fn(r): q(s_)
            if k_ == 7: L.append(lambda: cs_rd(j + 1))
            if k_ == 13: q("s_nop 0")
        for d in range(4): q(f"v_cvt_pk_bf16_f32 v{O+d}, v{g0+2*d}, v{g0+2*d+1}")
        q(f"s_add_u32 s43, s42, {2*j*32768}")
        q("s_nop 0")
        q(f"v_permlane16_swap_b32 v{O}, v{O+2}")
        q(f"v_permlane16_swap_b32 v{O+1}, v{O+3}")
        def st_():
            e(f"buffer_store_dwordx4 {v(O,4)}, v1, s[16:19], s43 offen{SC1C}")
            vm.issue(("st", j), "S"); issued.add(("st", j))
        L.append(st_)
        q("s_nop 0")
        return L
    def wd_setup_ops():
        L = []
        q = lambda s_: L.append(lambda: e(s_))
        for s_ in f"""s_mov_b32 s6, {F*D*2:#x}
        s_mov_b32 s7, 0x00020000
        s_add_u32 s60, s26, {WS_WDP:#x}
        s_addc_u32 s61, s27, 0
        s_mov_b32 s62, {F*D*2:#x}
        s_mov_b32 s63, 0x00020000
        s_lshl_b32 s24, s2, 3
        s_add_u32 s24, s24, s28
        s_mul_i32 s25, s24, 7282
        s_lshr_b32 s25, s25, 16
        s_mul_i32 s39, s25, 9
        s_sub_u32 s24, s24, s39
        s_mul_i32 s39, s25, 36864
        s_lshl_b32 s41, s24, 7
        s_add_u32 s39, s39, s41
        s_mul_i32 s41, s25, 1821
        s_lshr_b32 s41, s41, 16
        s_mul_i32 s52, s41, 36
        s_sub_u32 s25, s25, s52
        s_mul_i32 s41, s41, {4*36*9}
        s_mul_i32 s25, s25, 9
        s_add_u32 s41, s41, s25
        s_lshl_b32 s24, s24, 2
        v_lshrrev_b32 v4, 3, v2
        v_mul_u32_u24 v4, 1152, v4
        v_and_b32 v5, 7, v2
        v_lshl_add_u32 v13, v5, 4, v4
        v_lshrrev_b32 v4, 4, v2
        v_lshlrev_b32 v4, 3, v4
        v_bfe_u32 v5, v2, 2, 2
        v_add_u32 v4, v4, v5
        v_lshlrev_b32 v4, 7, v4
        v_and_b32 v5, 3, v2
        v_lshl_add_u32 v14, v5, 3, v4
        v_add_u32 v14, s36, v14""".split("\n"):
            q(s_.strip())
        L[2:4] = [lambda: (e(f"s_add_u32 s60, s26, {WS_WDP:#x}"), e("s_addc_u32 s61, s27, 0"))]
        for q4 in range(4):
            d = 52 + q4
            q(f"s_add_u32 s25, s24, {q4}")
            q(f"s_mul_i32 s{d}, s25, 7282")
            q(f"s_lshr_b32 s{d}, s{d}, 16")
            q(f"s_mul_i32 s{d}, s{d}, {36*9-9}")
            q(f"s_add_u32 s{d}, s{d}, s25")
            q(f"s_add_u32 s{d}, s{d}, s41")
            q(f"s_lshl_b32 s{d}, s{d}, 10")
        return L
    def wd_dma_ops():
        ops = []
        for i in range(4):
            ops.append(lambda i=i: e(f"s_add_u32 m0, s36, {KC_STAGE + 1024*i}"))
            def ld(i=i):
                e(f"buffer_load_dwordx4 v13, s[4:7], s39 offen lds")
                e(f"s_add_u32 s39, s39, {8*1152}")
                vm.issue("wd")
            ops.append(ld)
        return [("P", 99, op) for op in ops]
    def wd_pack_ops():
        L = [lambda: vm.need("wd")]
        for q4 in range(4):
            def rd(q4=q4):
                e(f"ds_read_b64_tr_b16 {v(ACC+4*q4,2)}, v14 offset:{KC_STAGE+32*q4}"); lg.issue(("wdr", q4))
                e(f"ds_read_b64_tr_b16 {v(ACC+4*q4+2,2)}, v14 offset:{KC_STAGE+32*q4+512}"); lg.issue(("wdr", q4))
            L.append(rd)
        L += [lambda: None] * 12
        for q4 in range(4):
            def st(q4=q4):
                lg.need(("wdr", q4))
                e(f"buffer_store_dwordx4 {v(ACC+4*q4,4)}, v3, s[60:63], s{52+q4} offen{SCP}")
                vm.issue("wds", "S")
            L.append(st)
        return L
    DA, DH, DACC, DWR, DNW, DNH = 112, 128, 184, 44, 8, 6
    PK_L = CS_L + 2048
    def d_salu_ops():
        L = []
        q = lambda s_: L.append(lambda: e(s_))
        for s_ in f"""s_mov_b32 s6, {F*D*2:#x}
        s_mov_b32 s7, 0x00020000
        s_mov_b32 s62, {FLAG_OFF+8192+1024+32768:#x}
        s_mov_b32 s63, 0x00020000
        s_mov_b32 s22, {F*D*2:#x}
        s_and_b32 s24, s2, 7
        s_lshr_b32 s25, s2, 3
        s_lshr_b32 s52, s24, 1
        s_and_b32 s24, s24, 1
        s_lshl_b32 s24, s24, 3
        s_lshr_b32 s53, s25, 2
        s_add_u32 s53, s53, s24
        s_and_b32 s54, s25, 3
        s_and_b32 s56, s28, 3
        s_lshr_b32 s57, s28, 2
        s_lshl_b32 s24, s52, 2
        s_add_u32 s24, s24, s54
        s_mul_i32 s39, s24, {324*1024}
        s_lshl_b32 s24, s24, 6
        s_add_u32 s32, s24, {FLAG_OFF+8192}
        s_lshl_b32 s24, s53, 2
        s_add_u32 s33, s32, s24
        s_mul_i32 s41, s52, {144*32768}
        s_mul_i32 s24, s57, {36*32768}
        s_add_u32 s41, s41, s24
        s_lshl_b32 s24, s30, 3
        s_add_u32 s24, s24, s28
        s_lshl_b32 s24, s24, 5
        s_add_u32 s24, s24, s29
        s_lshl_b32 s24, s24, 2
        s_add_u32 s55, s24, {FLAG_OFF}
        s_lshl_b32 s24, s53, 7
        s_lshl_b32 s25, s52, 3
        s_add_u32 s24, s24, s25
        s_lshl_b32 s24, s24, 2
        s_add_u32 s71, s24, {FLAG_OFF}
        s_lshl_b32 s24, s53, 3
        s_add_u32 s24, s24, s28
        s_mul_i32 s35, s24, 3072
        s_add_u32 s35, s35, s39
        s_mul_i32 s25, s24, 171
        s_lshr_b32 s25, s25, 9
        s_mul_i32 s34, s25, 3
        s_sub_u32 s34, s24, s34
        s_mul_i32 s34, s34, 96
        s_mul_i32 s64, s54, 288
        s_add_u32 s34, s34, s64
        s_lshr_b32 s64, s25, 2
        s_and_b32 s25, s25, 3
        s_mul_i32 s25, s25, 288
        s_lshl_b32 s64, s64, 4
        s_add_u32 s25, s25, s64
        s_mul_i32 s64, s52, 1152
        s_add_u32 s25, s25, s64
        s_mul_i32 s25, s25, 1152
        s_add_u32 s34, s34, s25""".split("\n"):
            q(s_.strip())
        L.append(lambda: (e("s_cmp_ge_u32 s24, 108"), e(f"s_cselect_b32 s34, {F*D*2:#x}, s34"), e(f"s_cselect_b32 s35, {F*D*2:#x}, s35")))
        L.append(lambda: (e(f"s_add_u32 s60, s26, {WS_PART:#x}"), e("s_addc_u32 s61, s27, 0")))
        L.append(lambda: (e(f"s_add_u32 s20, s26, {WS_WDP:#x}"), e("s_addc_u32 s21, s27, 0")))
        return L
    def pk_addr_ops():
        L = []
        q = lambda s_: L.append(lambda: e(s_))
        for s_ in f"""v_lshrrev_b32 v4, 5, v2
        v_mul_u32_u24 v4, 144, v4
        v_bfe_u32 v5, v2, 1, 4
        v_add_u32 v4, v4, v5
        v_mul_u32_u24 v4, 1152, v4
        v_and_b32 v5, 1, v2
        v_lshl_add_u32 v9, v5, 4, v4
        v_lshrrev_b32 v4, 4, v2
        v_lshlrev_b32 v4, 3, v4
        v_bfe_u32 v5, v2, 2, 2
        v_add_u32 v4, v4, v5
        v_lshlrev_b32 v4, 5, v4
        v_and_b32 v5, 3, v2
        v_lshl_add_u32 v4, v5, 3, v4
        s_lshl_b32 s64, s28, 10
        s_add_u32 s64, s64, {PK_L}
        v_add_u32 v11, s64, v4""".split("\n"):
            q(s_.strip())
        return L
    def prefill_ops():
        L = []
        q = lambda s_: L.append(lambda: e(s_))
        for r in range(12, 16): q(f"v_mov_b32 v{r}, -1")
        for s_ in f"""s_lshl_b32 s24, s53, 2
        s_add_u32 s24, s24, s54
        s_lshl_b32 s24, s24, 2
        s_add_u32 s24, s24, s56
        s_lshl_b32 s24, s24, 2
        s_add_u32 s24, s24, s52
        s_mul_i32 s24, s24, 9216
        s_lshl_b32 s25, s57, 12
        s_add_u32 s24, s24, s25
        s_add_u32 s25, s24, 4096""".split("\n"):
            q(s_.strip())
        for i in range(5):
            def st(i=i):
                e(f"buffer_store_dwordx4 v[12:15], v3, s[60:63], s{24 if i < 4 else 25} offen offset:{1024*(i%4)} sc1")
                vm.issue("pf", "S")
            L.append(st)
        return L
    def pk_touch_ops():
        L = []
        q = lambda s_: L.append(lambda: e(s_))
        for s_ in f"""v_lshrrev_b32 v4, 5, v2
        v_mul_u32_u24 v4, 144, v4
        v_bfe_u32 v5, v2, 1, 4
        v_add_u32 v4, v4, v5
        v_mul_u32_u24 v4, 1152, v4
        v_and_b32 v5, 1, v2
        v_mul_u32_u24 v5, 92, v5
        v_add_u32 v{T}, v5, v4""".split("\n"):
            q(s_.strip())
        def ld():
            e(f"buffer_load_dword v{T+1}, v{T}, s[4:7], s34 offen")
            vm.issue("pkt")
        L.append(ld)
        return L
    def pk_dma_ops(i):
        def ld():
            e("s_mov_b32 m0, s64")
            e("s_nop 0")
            e(f"buffer_load_dwordx4 v9, s[4:7], s34 offen lds")
            e("s_add_u32 s34, s34, 32")
            vm.issue(("pkd", i))
        return [("P", 99, ld)]
    def pk_rd_ops(i):
        def rd():
            vm.need(("pkd", i))
            e("ds_read_b64_tr_b16 v[12:13], v11"); lg.issue(("pkr", i))
            e("ds_read_b64_tr_b16 v[14:15], v11 offset:128"); lg.issue(("pkr", i))
        def st():
            lg.need(("pkr", i))
            e(f"buffer_store_dwordx4 v[12:15], v3, s[20:23], s35 offen offset:{1024*i} sc1")
            vm.issue(("pks", i), "S"); issued.add(("pks", i))
            if i < 2: mem.extend(pk_dma_ops(i + 1))
        return [rd], [st]
    def publish(level):
        e(f"v_mov_b32 v4, {level}")
        e("v_mov_b32 v5, 0")
        e("s_mov_b64 exec, 1")
        e("buffer_store_dword v4, v5, s[60:63], s55 offen sc1")
        e("s_mov_b64 exec, -1")
        vm.issue("prog", "S")
    def retired_level():
        lv = 0
        while ("st", lv) in issued and ("st", lv) not in vm.q: lv += 1
        return lv
    def d_valu_ops():
        L = []
        q = lambda s_: L.append(lambda: e(s_))
        for s_ in f"""s_lshl_b32 s24, s53, 7
        s_lshl_b32 s25, s56, 5
        s_add_u32 s24, s24, s25
        v_and_b32 v4, 15, v2
        v_add_u32 v4, s24, v4
        v_lshrrev_b32 v5, 5, v2
        v_mul_u32_u24 v5, 18, v5
        v_bfe_u32 v{DA}, v2, 4, 1
        v_add_u32 v5, v5, v{DA}
        v_lshlrev_b32 v5, 15, v5
        v_lshl_add_u32 v{DA+5}, v4, 4, v5
        s_mul_i32 s24, s57, 9216
        v_add_u32 v{DA+6}, s24, v3
        v_add_u32 v{DA+7}, s24, v6
        v_add_u32 v{DA+8}, s24, v7
        v_add_u32 v{DA+9}, s24, v8
        s_add_u32 s68, s39, s36
        s_add_u32 s69, s39, s31""".split("\n"):
            q(s_.strip())
        return L
    def d_dma_ops(c):
        st = (c + 1) % 4
        def opt():
            lab = A.newlabel("kc_skip")
            e("s_cmp_ge_u32 s28, 4")
            e(f"s_cbranch_scc1 {lab}")
            e(f"s_add_u32 m0, s31, {st*KC_STAGE}")
            e(f"s_add_u32 s38, s69, {c*KC_STAGE}")
            e(f"buffer_load_dwordx4 v3, s[20:23], s38 offen sc1 lds")
            A.label(lab)
        ops = [opt, lambda: e(f"s_add_u32 m0, s36, {st*KC_STAGE}"), lambda: e(f"s_add_u32 s38, s68, {c*KC_STAGE}")]
        for i in range(4):
            def ld(i=i):
                e(f"buffer_load_dwordx4 v3, s[20:23], s38 offen offset:{1024*i} sc1 lds")
                vm.issue(("DW", c))
            ops.append(ld)
        return [("DW", c, op) for op in ops]
    def d_h_ops(sx):
        c, hlf = divmod(sx, 2)
        sr = [40, 70, 65, 66][sx % 4]
        ops = [lambda: e(f"s_add_u32 s{sr}, s41, {(72*hlf + 2*c)*32768:#x}")]
        for tt in range(2):
            def ld(tt=tt):
                e(f"buffer_load_dwordx4 {v(DH+8*(sx%DNH)+4*tt,4)}, v{DA+5}, s[16:19], s{sr} offen offset:{256*tt} sc1")
                vm.issue(("H", sx))
            ops.append(ld)
        return [("H", sx, op) for op in ops]
    FV, FX = 12, 13
    def flag_addr_ops():
        L = []
        q = lambda s_: L.append(lambda: e(s_))
        for s_ in f"""v_and_b32 v4, 7, v2
        v_bfe_u32 v5, v2, 3, 2
        v_lshlrev_b32 v5, 5, v5
        v_add_u32 v4, v4, v5
        v_lshlrev_b32 v4, 2, v4
        v_add_u32 v4, s71, v4
        v_and_b32 v5, 15, v2
        v_lshlrev_b32 v5, 2, v5
        v_add_u32 v5, s32, v5
        v_cmp_gt_u32 vcc, 32, v2
        s_nop 1
        v_cndmask_b32 v{FV}, v5, v4, vcc
        s_lshl_b32 s24, s54, 6
        s_lshl_b32 s25, s53, 2
        s_add_u32 s24, s24, s25
        s_add_u32 s24, s24, {FLAG_OFF+8192}
        v_and_b32 v4, 3, v2
        v_lshlrev_b32 v4, 8, v4
        v_add_u32 v4, s24, v4
        v_cmp_gt_u32 vcc, 48, v2
        s_nop 1
        v_cndmask_b32 v{FV}, v4, v{FV}, vcc""".split("\n"):
            q(s_.strip())
        return L
    mark = [0]
    def flag_ld():
        lab = A.newlabel("kc_fl")
        e("s_cmp_lg_u32 s28, 0")
        e(f"s_cbranch_scc1 {lab}")
        e(f"buffer_load_dword v{FX}, v{FV}, s[60:63], 0 offen sc1")
        A.label(lab)
        mark[0] = vm.total
    spins = []
    def flag_chk(level):
        ok, sp = A.newlabel("kc_fok"), A.newlabel("kc_spin")
        e("s_cmp_lg_u32 s28, 0")
        e(f"s_cbranch_scc1 {ok}")
        e(f"s_waitcnt vmcnt({min(vm.total - mark[0], 63)})")
        e(f"v_cmp_gt_u32 vcc, {level}, v{FX}")
        e("s_nop 1")
        e(f"s_cbranch_vccnz {sp}")
        A.label(ok)
        spins.append((ok, sp, level))
    def emit_spins():
        for ok, sp, level in spins:
            A.label(sp)
            e("s_mov_b32 s67, 0")
            lp = A.newlabel("kc_sl")
            A.label(lp)
            e(f"""
            buffer_load_dword v{FX}, v{FV}, s[60:63], 0 offen sc1
            s_add_u32 s67, s67, 1
            s_waitcnt vmcnt(0)
            v_cmp_gt_u32 vcc, {level}, v{FX}
            s_cmp_ge_u32 s67, 0x8000
            s_cbranch_scc1 {ok}
            s_cbranch_vccnz {lp}
            s_branch {ok}
            """)
    def cs_ld_ops(grp):
        L = []
        dst = [CS, CS + 4, T] if grp == 0 else [CS + 4, T, T + 4]
        for i in range(3):
            def ld(i=i):
                e(f"buffer_load_dwordx4 {v(dst[i],4)}, v13, s[20:23], s55 offen")
                e(f"s_add_u32 s55, s55, {2*F*4}")
                vm.issue(("cs", grp))
            L.append(ld)
        return L
    def cs_add_ops(grp):
        L = [lambda: vm.need(("cs", grp))]
        for sr in ([CS + 4, T] if grp == 0 else [CS + 4, T, T + 4]):
            for r in range(4): L.append(lambda r=r, sr=sr: e(f"v_add_f32 v{CS+r}, v{CS+r}, v{sr+r}"))
        if grp == 1:
            def w():
                e(f"ds_write_b128 v11, {v(CS,4)}"); lg.issue("csw"); issued.add("csw")
            L.append(w)
        return L
    ST.stamp()
    if int(os.environ.get("KC_PRIO", "0")):
        lab = A.newlabel("kc_prio")
        e("s_cmp_lt_u32 s28, 4")
        e(f"s_cbranch_scc1 {lab}")
        e("s_setprio 1")
        A.label(lab)
    vm.need(("W", 0))
    e("s_barrier")
    ST.stamp()
    NF = 324
    AHEAD = NW - 1
    KC_D1 = int(os.environ.get("KC_D1", "1"))
    mem = dma_ops(1) + ([] if KC_D1 else dma_ops(2))
    val = [lambda: None] * 16 + pub_ops()
    nr = 0
    F1 = 36 * NP1
    def flush(kind, idx):
        while any(p[0] == kind and p[1] <= idx for p in mem):
            mem.pop(0)[2]()
    def next_read():
        nonlocal nr, mem
        if nr >= NF: return
        if nr % 36 == 0 and nr > 0:
            c = nr // 36
            lg.drain()
            flush("W", c)
            vm.need(("W", c))
            if FUSE and c == 6:
                assert ("pks", 2) in issued
                vm.need(("pks", 2))
            if FUSE and c >= 6: vm.need(("st", c - 3))
            if FUSE and c == 8: flag_chk(4)
            e("s_barrier")
            ST.stamp()
            if c == NP1 - 1: assert "csw" in issued
            if KC_D1 and c <= NP1: mem += dma_ops(c + 1)
            if c + 2 < 9 and (not KC_D1 or c >= NP1): mem += dma_ops(c + 2)
            if not FUSE:
                if c == 7: mem += wd_dma_ops()
            else:
                if c >= 6: publish(retired_level())
                if c == 6:
                    lab = A.newlabel("kc_pkf")
                    e("s_cmp_lg_u32 s28, 0")
                    e(f"s_cbranch_scc1 {lab}")
                    e("v_mov_b32 v4, 15")
                    e("s_mov_b64 exec, 1")
                    e("buffer_store_dword v4, v5, s[60:63], s33 offen sc1")
                    e("s_mov_b64 exec, -1")
                    A.label(lab)
        wread(nr); nr += 1
    for _ in range(AHEAD): next_read()
    xq = []
    for sx in range(NX0, NXP): xq += x_ops(sx)
    for f in range(NF):
        s_, j, m = finfo(f)
        if f < F1 and f % (2 * NP1) == 0:
            while any(p[1] <= s_ for p in xq): xq.pop(0)[2]()
            vm.need(("X", s_))
            if s_ + NXP < 18: xq += x_ops(s_ + NXP)
            if s_ == 1: val += cs_ld_ops(0)
            if s_ == 7: val += cs_add_ops(0) + cs_ld_ops(1)
            if s_ == 10: val += cs_add_ops(1)
            if s_ == 11: val += (d_salu_ops() + pk_touch_ops()) if FUSE else wd_setup_ops()
            if s_ == 14: val += statld_ops()
            if s_ == 17: val += [lambda: cs_rd(0)] + statfin_ops()
        if f == F1:
            if NP1 == 3:
                while val: val.pop(0)()
                e("s_nop 3")
                for op in epi_ops(0): op()
                val += epi_ops(1) + epi_ops(2)
            else:
                val += [lambda: None] * 4 + epi_ops(0) + epi_ops(1)
        if f > F1 and f % 36 == 2 and f // 36 > NP1:
            ep = epi_ops(f // 36 - 1)
            if f // 36 == 8 and not FUSE:
                wp = wd_pack_ops()
                ep = ep[:60] + wp[:5] + ep[60:] + wp[17:]
            val += ep
        if FUSE and f in (F1 + 30, F1 + 56, F1 + 82):
            rd_, st_2 = pk_rd_ops((f - F1 - 30) // 26)
            val = rd_ + val[:8] + st_2 + val[8:]
        if FUSE and f == 216 + 4: val = flag_addr_ops() + val
        if FUSE and f == 252 + 8: val = [flag_ld] + val
        if FUSE and f == F1 + 2:
            val = pk_addr_ops() + [lambda: mem.extend(pk_dma_ops(0))] + (prefill_ops() if SENT else []) + val
        if f >= 108 and f % 36 == 0:
            need = ("st", f // 36 - 3)
            while need not in issued:
                val.pop(0)()
        if FUSE and f == 288 + 4:
            dv = d_valu_ops()
            val = dv + [lambda: xq.extend(d_dma_ops(0) + (d_dma_ops(1) if PF8 >= 2 else []))] + val
        if FUSE and f == 288 + 17:
            for sx in range(2 * PF8): xq.extend(d_h_ops(sx))
        if f % 2 == 0: lg.need(("w", f + 1))
        for tt in range(2):
            c_ = v(ACC + 16 * (j % 3) + 8 * m + 4 * tt, 4)
            src_c = "0" if s_ == 0 else c_
            e(f"v_mfma_f32_16x16x32_bf16 {c_}, {v(WR+4*(f%NW),4)}, {v(XR+8*s_+4*tt,4)}, {src_c}")
            if tt == 0: next_read()
            if tt == 1 or f < 12 or (FUSE and f >= 288):
                if xq: xq.pop(0)[2]()
                elif mem: mem.pop(0)[2]()
            if f < F1: nv = 2
            else:
                rem = (36 - f % 36) * 2 - tt
                nv = min(-(-len(val) // max(rem - 6, 1)), 3 if f < F1 + 72 else 99)
                if f < F1 + 72: nv = min(nv, 2)
                if FUSE and 288 + 4 <= f < 288 + 9: nv = 3
            for _ in range(nv):
                if val: val.pop(0)()
    ST.mute = False
    ST.stamp()
    while val: val.pop(0)()
    if not FUSE:
        e("s_nop 7")
        for op in epi_ops(8): op()
        assert not mem
        ST.stamp()
        if ST.on: e("s_waitcnt vmcnt(0)")
        ST.stamp(); ST.real(1)
        ST.dump(8)
        A.label("kc_done")
        e("s_endpgm")
        slowstat()
        A.kernel_end(name, 256, 102 if ST.on else 72)
        return
    while xq: xq.pop(0)[2]()
    while mem: mem.pop(0)[2]()
    flag_ld()
    for op in epi_ops(8): op()
    val = []
    pend = []
    for c_ in range(PF8, 3):
        if c_ >= 2 or c_ >= PF8: pend += d_dma_ops(c_)
        pend += d_h_ops(2 * c_) + d_h_ops(2 * c_ + 1)
    if PF8 == 3: pend = d_dma_ops(2)
    DNF = 18 * 9
    DHOLD = int(os.environ.get("DHOLD", "10"))
    DAH = 6
    nh = 0
    def dflush(kind, idx):
        while any(p[0] == kind and p[1] <= idx for p in pend):
            pend.pop(0)[2]()
    def d_read(h):
        f, hf = divmod(h, 2)
        st_, j = divmod(f, 9)
        c, ks = divmod(st_, 2)
        r = DWR + 4 * (f % DNW)
        if hf: return
        e(f"ds_read_b128 {v(r,4)}, v{DA+6+(c+1)%4} offset:{18432*ks + 1024*j}")
        lg.issue(("dw", f))
    def d_next_read():
        nonlocal nh, pend
        if nh >= 2 * DNF: return
        if nh % 36 == 0:
            c = nh // 36
            lg.drain()
            dflush("DW", c)
            vm.need(("DW", c))
            if c in (1, 4): flag_chk({1: 6, 4: 9}[c])
            e("s_barrier")
            if c == 4: pend = defer + pend
            if STAMP == "kd2": ST2.stamp()
            if c + 3 < 9: pend += d_dma_ops(c + 3)

        d_read(nh); nh += 1
    defer = []
    ST2 = ST
    for _ in range(2 * DAH): d_next_read()
    for f in range(DNF):
        st_, j = divmod(f, 9)
        if j == 0:
            dflush("H", st_)
            vm.need(("H", st_))
        if f == 44: flag_ld()
        if f % 2 == 0:
            lg.need(("dw", min(f + 1, DNF - 1)))
        for tt in range(2):
            c_ = v(DACC + 36 * tt + 4 * j, 4)
            src_c = "0" if st_ == 0 else c_
            e(f"v_mfma_f32_16x16x32_bf16 {c_}, {v(DWR+4*(f%DNW),4)}, {v(DH+8*(st_%DNH)+4*tt,4)}, {src_c}")
            d_next_read()
            if f == DHOLD and tt == 0:
                vm.drain()
                publish(9)
            if pend and f >= DHOLD and (tt == 1 or f < 40): pend.pop(0)[2]()
            if f >= 2:
                for _ in range(3):
                    if val: val.pop(0)()
        if j == 8 and st_ + DNH < 18:
            nx = st_ + DNH
            if nx == 12:
                defer.extend(d_h_ops(nx)); continue

            pend = d_h_ops(nx) + pend
    assert not pend and not val
    ST.n = 12
    ST.stamp()
    emit_d_tail(A, DACC, 60, 53, 54, 52, 56, 57, base=2 * KC_STAGE)
    if FUSE_E and SENT:
        e(f"""
        s_cmp_ge_u32 s28, 5
        s_cbranch_scc1 kc_fin
        s_load_dwordx2 s[4:5], s[0:1], {KA_OUT}
        v_lshlrev_b32 v20, 4, v0
        v_lshrrev_b32 v4, 5, v0
        v_and_b32 v5, 31, v0
        s_lshl_b32 s33, s53, 7
        s_lshl_b32 s34, s52, 5
        s_add_u32 s33, s33, s34
        v_add_u32 v5, s33, v5
        s_mul_i32 s34, s54, 18
        v_add_u32 v4, s34, v4
        v_lshlrev_b32 v21, 15, v4
        v_lshl_add_u32 v21, v5, 4, v21
        s_movk_i32 s35, 1152
        v_mul_lo_u32 v22, v5, s35
        v_lshl_add_u32 v22, v4, 4, v22
        v_cmp_gt_u32 vcc, 288, v0
        s_and_saveexec_b64 s[58:59], vcc
        s_mov_b32 s34, {9*32768}
        buffer_load_dwordx4 v[28:31], v21, s[12:15], 0 offen
        buffer_load_dwordx4 v[32:35], v21, s[12:15], s34 offen
        s_add_u32 s47, s42, s52
        s_mul_i32 s47, s47, {4*9216}
        s_mov_b32 s6, {S*D*2:#x}
        s_mov_b32 s40, 0xffff0000
        s_mov_b32 s67, 0
        s_waitcnt vmcnt({SENTW})
        """)
        A.label("kc_poll")
        e("s_mov_b32 s46, s47")
        for sr in range(4):
            e(f"buffer_load_dwordx4 {v(40+8*sr,4)}, v20, s[60:63], s46 offen sc1")
            e(f"s_add_u32 s34, s46, {288*16}")
            e(f"buffer_load_dwordx4 {v(44+8*sr,4)}, v20, s[60:63], s34 offen sc1")
            e(f"s_add_u32 s46, s46, 9216")
        e("s_add_u32 s67, s67, 1")
        for k_ in range(8):
            e(f"s_waitcnt vmcnt({7-k_})")
            b = 40 + 4 * k_
            if k_ == 0:
                e(f"v_max_u32 v26, v{b}, v{b+1}")
                e(f"v_max3_u32 v26, v26, v{b+2}, v{b+3}")
            else:
                e(f"v_max3_u32 v26, v26, v{b}, v{b+1}")
                e(f"v_max3_u32 v26, v26, v{b+2}, v{b+3}")
        e("""
        v_cmp_eq_u32 vcc, -1, v26
        s_cmp_ge_u32 s67, 0x4000
        s_cbranch_scc1 kc_go
        s_cbranch_vccnz kc_poll
        """)
        A.label("kc_go")
        for it in range(2):
            for d in range(4):
                e(f"v_lshlrev_b32 v{104+8*it+2*d}, 16, v{28+4*it+d}")
                e(f"v_and_b32 v{105+8*it+2*d}, s40, v{28+4*it+d}")
        for sr in range(4):
            for it in range(2):
                for d in range(4):
                    r = 40 + 8 * sr + 4 * it + d
                    e(f"v_lshlrev_b32 v120, 16, v{r}")
                    e(f"v_and_b32 v121, s40, v{r}")
                    e(f"v_pk_add_f32 {v(104+8*it+2*d,2)}, {v(104+8*it+2*d,2)}, v[120:121]")
        for it in range(2):
            for d in range(4):
                e(f"v_cvt_pk_bf16_f32 v{28+4*it+d}, v{104+8*it+2*d}, v{105+8*it+2*d}")
        e("s_waitcnt lgkmcnt(0)")
        e("buffer_store_dwordx4 v[28:31], v22, s[4:7], 0 offen")
        e("buffer_store_dwordx4 v[32:35], v22, s[4:7], 0 offen offset:144")
        e("s_mov_b64 exec, s[58:59]")
        A.label("kc_fin")
    elif FUSE_E:
        F2 = FLAG_OFF + 8192 + 1024
        e(f"""
        s_load_dwordx2 s[4:5], s[0:1], {KA_OUT}
        v_lshlrev_b32 v20, 4, v0
        v_lshrrev_b32 v4, 5, v0
        v_and_b32 v5, 31, v0
        s_lshl_b32 s33, s53, 7
        s_lshl_b32 s34, s52, 5
        s_add_u32 s33, s33, s34
        v_add_u32 v5, s33, v5
        s_mul_i32 s34, s54, 18
        v_add_u32 v4, s34, v4
        v_lshlrev_b32 v21, 15, v4
        v_lshl_add_u32 v21, v5, 4, v21
        s_movk_i32 s35, 1152
        v_mul_lo_u32 v22, v5, s35
        v_lshl_add_u32 v22, v4, 4, v22
        s_add_u32 s45, s42, s56
        s_lshl_b32 s45, s45, 7
        s_lshl_b32 s33, s52, 3
        s_add_u32 s45, s45, s33
        s_lshl_b32 s33, s57, 2
        s_add_u32 s45, s45, s33
        s_add_u32 s45, s45, {F2}
        v_mov_b32 v23, 1
        v_mov_b32 v24, 0
        s_add_u32 s46, s42, s52
        s_lshl_b32 s47, s46, 7
        s_add_u32 s47, s47, {F2}
        s_mul_i32 s46, s46, {4*9216}
        v_and_b32 v25, 7, v2
        v_lshlrev_b32 v25, 2, v25
        s_mov_b32 s34, {9*32768}
        s_waitcnt vmcnt(0) lgkmcnt(0)
        s_mov_b64 exec, 1
        buffer_store_dword v23, v24, s[60:63], s45 offen sc1
        s_mov_b64 exec, -1
        s_mov_b32 s6, {S*D*2:#x}
        s_cmp_ge_u32 s28, 5
        s_cbranch_scc1 kc_fin
        buffer_load_dwordx4 v[28:31], v21, s[12:15], 0 offen
        buffer_load_dwordx4 v[32:35], v21, s[12:15], s34 offen
        s_cmp_lg_u32 s28, 0
        s_cbranch_scc1 kc_go
        s_mov_b32 s67, 0
        """)
        A.label("kc_poll")
        e(f"""
        buffer_load_dword v26, v25, s[60:63], s47 offen sc1
        s_add_u32 s67, s67, 1
        s_waitcnt vmcnt(0)
        v_cmp_ne_u32 vcc, 1, v26
        s_cmp_ge_u32 s67, 0x8000
        s_cbranch_scc1 kc_go
        s_cbranch_vccnz kc_poll
        """)
        A.label("kc_go")
        e("""
        s_barrier
        v_cmp_gt_u32 vcc, 288, v0
        s_and_saveexec_b64 s[58:59], vcc
        """)
        for sr in range(4):
            e(f"buffer_load_dwordx4 {v(40+8*sr,4)}, v20, s[60:63], s46 offen sc1")
            e(f"s_add_u32 s34, s46, {288*16}")
            e(f"buffer_load_dwordx4 {v(44+8*sr,4)}, v20, s[60:63], s34 offen sc1")
            e(f"s_add_u32 s46, s46, 9216")
        e("s_mov_b32 s40, 0xffff0000")
        e("s_waitcnt vmcnt(8)")
        for it in range(2):
            for d in range(4):
                e(f"v_lshlrev_b32 v{104+8*it+2*d}, 16, v{28+4*it+d}")
                e(f"v_and_b32 v{105+8*it+2*d}, s40, v{28+4*it+d}")
        for sr in range(4):
            e(f"s_waitcnt vmcnt({6-2*sr})")
            for it in range(2):
                for d in range(4):
                    r = 40 + 8 * sr + 4 * it + d
                    e(f"v_lshlrev_b32 v120, 16, v{r}")
                    e(f"v_and_b32 v121, s40, v{r}")
                    e(f"v_pk_add_f32 {v(104+8*it+2*d,2)}, {v(104+8*it+2*d,2)}, v[120:121]")
        for it in range(2):
            for d in range(4):
                e(f"v_cvt_pk_bf16_f32 v{28+4*it+d}, v{104+8*it+2*d}, v{105+8*it+2*d}")
        e("buffer_store_dwordx4 v[28:31], v22, s[4:7], 0 offen")
        e("buffer_store_dwordx4 v[32:35], v22, s[4:7], 0 offen offset:144")
        e("s_mov_b64 exec, s[58:59]")
        A.label("kc_fin")
    if ST.on: e("s_waitcnt vmcnt(0)")
    ST.stamp(); ST.real(1)
    ST.dump(8)
    A.label("kc_done")
    e("s_endpgm")
    slowstat()
    emit_spins()
    A.kernel_end(name, 256, 102 if ST.on else 72)

KD_STAGE = 36864
FLAG_OFF = 4 * S * D * 2
def k_d(A):
    name = "kd_kernel"
    A.launch(name, 256, 512, 4 * KD_STAGE)
    A.kernel_begin(name)
    e = A.e
    ACC = 184
    WR = 136
    NW = 12
    HR = 40
    NH = int(os.environ.get("KD_NH", "6"))
    DW = int(os.environ.get("KD_DW", "3"))
    XP = os.environ.get("XP", "")
    ST = Stamps(A, STAMP == "kd")
    ST.stamp(); ST.real(0)
    e(f"""
    s_cmp_ge_u32 s2, 256
    s_cbranch_scc1 kd_done
    s_load_dwordx4 s[4:7], s[0:1], {KA_WD}
    s_load_dwordx2 s[26:27], s[0:1], {KA_WS}
    v_lshrrev_b32 v1, 6, v0
    v_and_b32 v2, 63, v0
    s_nop 0
    v_readfirstlane_b32 s28, v1
    s_nop 3
    s_and_b32 s29, s2, 7
    s_lshr_b32 s30, s2, 3
    s_lshr_b32 s31, s29, 1
    s_and_b32 s29, s29, 1
    s_lshl_b32 s29, s29, 3
    s_lshr_b32 s32, s30, 2
    s_add_u32 s29, s29, s32
    s_and_b32 s30, s30, 3
    s_and_b32 s56, s28, 3
    s_lshr_b32 s57, s28, 2
    """)
    e(f"""
    s_lshl_b32 s33, s29, 7
    s_lshl_b32 s34, s56, 5
    s_add_u32 s33, s33, s34
    v_and_b32 v4, 15, v2
    v_add_u32 v4, s33, v4
    v_lshrrev_b32 v5, 4, v2
    v_lshlrev_b32 v5, 15, v5
    v_lshl_add_u32 v9, v4, 4, v5
    """)
    e(f"""
    v_lshlrev_b32 v3, 4, v2
    s_mul_i32 s33, s57, 9216
    v_add_u32 v16, s33, v3
    v_add_u32 v17, {KD_STAGE}, v16
    v_add_u32 v18, {2*KD_STAGE}, v16
    v_add_u32 v19, {3*KD_STAGE}, v16
    """)
    e("s_waitcnt lgkmcnt(0)")
    A.srd_off(8, 26, 27, WS_WDP, F * D * 2)
    A.srd_off(12, 26, 27, WS_HH, S * F * 2)
    A.srd_off(16, 26, 27, WS_PART, FLAG_OFF + 8192)
    A.srd_off(20, 26, 27, WS_H, S * D * 2)
    A.srd(48, 6, 7, S * D * 2)
    e(f"""
    s_lshl_b32 s36, s28, 12
    s_lshl_b32 s33, s31, 2
    s_add_u32 s33, s33, s30
    s_mul_i32 s33, s33, {36*9216}
    s_add_u32 s37, s33, s36
    s_lshl_b32 s25, s28, 10
    s_add_u32 s25, s25, 32768
    s_add_u32 s35, s33, s25
    s_mul_i32 s41, s31, {144*32768}
    s_lshl_b32 s33, s57, 17
    s_add_u32 s41, s41, s33
    """)
    vm = Cnt(A, "vmcnt", 63)
    lg = Cnt(A, "lgkmcnt", 15)
    def dma_ops(c):
        st = c % 4
        def opt():
            lab = A.newlabel("kd_skip")
            e("s_cmp_ge_u32 s28, 4")
            e(f"s_cbranch_scc1 {lab}")
            e(f"s_add_u32 m0, s25, {st*KD_STAGE}")
            e(f"s_add_u32 s38, s35, {c*KD_STAGE}")
            e(f"buffer_load_dwordx4 v3, s[8:11], s38 offen lds")
            A.label(lab)
        ops = [opt, lambda: e(f"s_add_u32 m0, s36, {st*KD_STAGE}"), lambda: e(f"s_add_u32 s38, s37, {c*KD_STAGE}")]
        for i in range(4):
            def ld(i=i):
                e(f"buffer_load_dwordx4 v3, s[8:11], s38 offen offset:{1024*i} lds")
                vm.issue(("W", c))
            ops.append(ld)
        return [("W", c, op) for op in ops]
    def h_ops(sx):
        sr = [40, 58, 59, 24][sx % 4]
        ops = [lambda: e(f"s_add_u32 s{sr}, s41, {sx*8*32768:#x}")]
        for tt in range(2):
            def ld(tt=tt):
                e(f"buffer_load_dwordx4 {v(HR+8*(sx%NH)+4*tt,4)}, v9, s[12:15], s{sr} offen offset:{256*tt}")
                vm.issue(("H", sx))
            ops.append(ld)
        return [("H", sx, op) for op in ops]
    def run_ops(ops):
        for op in ops:
            op[2]()
    def wread_half(h):
        f, hf = divmod(h, 2)
        st_, j = divmod(f, 9)
        c, ks = divmod(st_, 2)
        base = 16 + c % 4
        r = WR + 4 * (f % NW)
        if hf: return
        e(f"ds_read_b128 {v(r,4)}, v{base} offset:{18432*ks + 1024*j}")
        lg.issue(("w", f))
    PRO = KD_PRO
    for c in range(PRO):
        run_ops(dma_ops(c))
        for sx in range(2 * c, min(2 * c + 2, NH)): run_ops(h_ops(sx))
    ST.stamp()
    vm.need(("W", 0))
    e("s_barrier")
    ST.stamp()
    NF = 18 * 9
    AHEAD = 6
    GRP = int(os.environ.get("GRP", "2"))
    pend = []
    for c in range(PRO, max(DW + 1, (NH + 1) // 2)):
        if c <= DW and c < 4: pend += dma_ops(c)
        for sx in range(2 * c, min(2 * c + 2, NH)): pend += h_ops(sx)
    nh = 0
    def flush(kind, idx):
        while any(p[0] == kind and p[1] <= idx for p in pend):
            run_ops([pend.pop(0)])
    def next_read():
        nonlocal nh, pend
        if nh >= 2 * NF: return
        if nh % 36 == 0 and nh > 0:
            c = nh // 36
            lg.drain()
            flush("W", c)
            vm.need(("W", c))
            e("s_barrier")
            ST.stamp()
            if c + DW < 9:
                pend += dma_ops(c + DW)
        wread_half(nh); nh += 1
    for _ in range(2 * AHEAD): next_read()
    for f in range(NF):
        st_, j = divmod(f, 9)
        if j == 0:
            flush("H", st_)
            vm.need(("H", st_))
        if f % GRP == 0:
            lg.need(("w", min(f + GRP - 1, NF - 1)))
        for tt in range(2):
            c_ = v(ACC + 36 * tt + 4 * j, 4)
            src_c = "0" if st_ == 0 else c_
            e(f"v_mfma_f32_16x16x32_bf16 {c_}, {v(WR+4*(f%NW),4)}, {v(HR+8*(st_%NH)+4*tt,4)}, {src_c}")
            next_read()
            if pend and tt == 1:
                pend.pop(0)[2]()
        if j == 8 and st_ + NH < 18:
            pend = h_ops(st_ + NH) + pend
    assert not pend
    ST.stamp()
    e(f"""
    s_mul_i32 s33, s28, 9216
    v_lshlrev_b32 v3, 4, v2
    v_add_u32 v4, s33, v3
    s_xor_b32 s34, s28, 4
    s_mul_i32 s34, s34, 9216
    v_add_u32 v5, s34, v3
    s_barrier
    s_cmp_eq_u32 s57, 0
    s_cbranch_scc1 kd_h0
    """)
    for j in range(9):
        e(f"ds_write_b128 v4, {v(ACC+4*j,4)} offset:{1024*j}")
    for j in range(9):
        for r in range(4):
            e(f"v_mov_b32 v{ACC+4*j+r}, v{ACC+36+4*j+r}")
    e("s_branch kd_hj")
    A.label("kd_h0")
    for j in range(9):
        e(f"ds_write_b128 v4, {v(ACC+36+4*j,4)} offset:{1024*j}")
    A.label("kd_hj")
    e("s_waitcnt lgkmcnt(0)")
    e("s_barrier")
    for j in range(9):
        e(f"ds_read_b128 {v(40+4*j,4)}, v5 offset:{1024*j}")
    e(f"""
    s_lshl_b32 s42, s29, 2
    s_add_u32 s42, s42, s30
    s_lshl_b32 s42, s42, 2
    s_add_u32 s43, s42, s56
    s_lshl_b32 s43, s43, 2
    s_add_u32 s43, s43, s31
    s_mul_i32 s44, s43, 9216
    s_lshl_b32 s33, s57, 8
    s_add_u32 s44, s44, s33
    v_and_b32 v6, 15, v2
    v_lshlrev_b32 v6, 4, v6
    v_bfe_u32 v7, v2, 4, 1
    v_lshl_add_u32 v8, v7, 10, v6
    v_lshrrev_b32 v24, 5, v2
    v_lshl_add_u32 v8, v24, 9, v8
    v_lshl_add_u32 v6, v24, 9, v6
    v_lshl_add_u32 v6, v7, 3, v6
    s_add_u32 s45, s44, 4096
    s_add_u32 s46, s44, 8192
    """)
    for j in range(9):
        e(f"s_waitcnt lgkmcnt({8-j})")
        e(f"v_pk_add_f32 {v(ACC+4*j,2)}, {v(ACC+4*j,2)}, {v(40+4*j,2)}")
        e(f"v_pk_add_f32 {v(ACC+4*j+2,2)}, {v(ACC+4*j+2,2)}, {v(40+4*j+2,2)}")
        O = 80 + 2 * j
        e(f"v_cvt_pk_bf16_f32 v{O}, v{ACC+4*j}, v{ACC+4*j+1}")
        e(f"v_cvt_pk_bf16_f32 v{O+1}, v{ACC+4*j+2}, v{ACC+4*j+3}")
        if j >= 2 and j % 2 == 0:
            jp = j // 2 - 1
            P_ = 80 + 4 * jp
            e(f"v_permlane16_swap_b32 v{P_}, v{P_+2}")
            e(f"v_permlane16_swap_b32 v{P_+1}, v{P_+3}")
            e(f"buffer_store_dwordx4 {v(P_,4)}, v8, s[16:19], s{44+jp//2} offen offset:{2048*(jp%2)} sc1")
    e(f"buffer_store_dwordx2 v[96:97], v6, s[16:19], s46 offen sc1")
    if KD_SEP:
        ST.stamp()
        if ST.on: e("s_waitcnt vmcnt(0)")
        ST.stamp(); ST.real(1)
        ST.dump(8)
        A.label("kd_done")
        e("s_endpgm")
        A.kernel_end(name, 256, 102 if ST.on else 60)
        return
    e(f"""
    v_lshlrev_b32 v20, 4, v0
    v_lshrrev_b32 v4, 5, v0
    v_and_b32 v5, 31, v0
    s_lshl_b32 s33, s29, 7
    s_lshl_b32 s34, s31, 5
    s_add_u32 s33, s33, s34
    v_add_u32 v5, s33, v5
    s_mul_i32 s34, s30, 18
    v_add_u32 v4, s34, v4
    v_lshlrev_b32 v21, 15, v4
    v_lshl_add_u32 v21, v5, 4, v21
    s_movk_i32 s35, 1152
    v_mul_lo_u32 v22, v5, s35
    v_lshl_add_u32 v22, v4, 4, v22
    s_lshl_b32 s45, s43, 1
    s_add_u32 s45, s45, s57
    s_lshl_b32 s45, s45, 2
    s_add_u32 s45, s45, {FLAG_OFF}
    v_mov_b32 v23, 1
    v_mov_b32 v24, 0
    s_add_u32 s46, s42, s31
    s_lshl_b32 s47, s46, 5
    s_add_u32 s47, s47, {FLAG_OFF}
    s_mul_i32 s46, s46, {4*9216}
    v_and_b32 v25, 7, v2
    v_lshlrev_b32 v25, 2, v25
    s_waitcnt vmcnt(0)
    v_cmp_eq_u32 vcc, 0, v2
    s_and_saveexec_b64 s[52:53], vcc
    buffer_store_dword v23, v24, s[16:19], s45 offen sc1
    s_mov_b64 exec, s[52:53]
    """)
    ST.stamp()
    e(f"""
    s_cmp_ge_u32 s28, 5
    s_cbranch_scc1 kd_fin
    v_cmp_gt_u32 vcc, 288, v0
    s_and_saveexec_b64 s[52:53], vcc
    s_mov_b32 s54, {9*32768}
    buffer_load_dwordx4 v[28:31], v21, s[20:23], 0 offen
    buffer_load_dwordx4 v[32:35], v21, s[20:23], s54 offen
    s_mov_b32 s55, 0
    """)
    A.label("kd_poll")
    e(f"""
    buffer_load_dword v26, v25, s[16:19], s47 offen sc1
    s_add_u32 s55, s55, 1
    s_waitcnt vmcnt(0)
    v_cmp_ne_u32 vcc, 1, v26
    s_cmp_ge_u32 s55, 0x40000
    s_cbranch_scc1 kd_go
    s_cbranch_vccnz kd_poll
    """)
    A.label("kd_go")
    for sr in range(4):
        e(f"buffer_load_dwordx4 {v(40+8*sr,4)}, v20, s[16:19], s46 offen sc1")
        e(f"s_add_u32 s54, s46, {288*16}")
        e(f"buffer_load_dwordx4 {v(44+8*sr,4)}, v20, s[16:19], s54 offen sc1")
        e(f"s_add_u32 s46, s46, 9216")
    e("s_mov_b32 s40, 0xffff0000")
    for it in range(2):
        for d in range(4):
            e(f"v_lshlrev_b32 v{104+8*it+2*d}, 16, v{28+4*it+d}")
            e(f"v_and_b32 v{105+8*it+2*d}, s40, v{28+4*it+d}")
    for sr in range(4):
        e(f"s_waitcnt vmcnt({6-2*sr})")
        for it in range(2):
            for d in range(4):
                r = 40 + 8 * sr + 4 * it + d
                e(f"v_lshlrev_b32 v120, 16, v{r}")
                e(f"v_and_b32 v121, s40, v{r}")
                e(f"v_pk_add_f32 {v(104+8*it+2*d,2)}, {v(104+8*it+2*d,2)}, v[120:121]")
    for it in range(2):
        for d in range(4):
            e(f"v_cvt_pk_bf16_f32 v{28+4*it+d}, v{104+8*it+2*d}, v{105+8*it+2*d}")
    e("buffer_store_dwordx4 v[28:31], v22, s[48:51], 0 offen")
    e("buffer_store_dwordx4 v[32:35], v22, s[48:51], 0 offen offset:144")
    e("s_mov_b64 exec, s[52:53]")
    A.label("kd_fin")
    if ST.on: e("s_waitcnt vmcnt(0)")
    ST.stamp(); ST.real(1)
    ST.dump(8)
    A.label("kd_done")
    e("s_endpgm")
    A.kernel_end(name, 256, 102 if ST.on else 60)


def k_e(A):
    name = "ke_kernel"
    A.launch(name, 256, 576, 0)
    A.kernel_begin(name)
    e = A.e
    e(f"""
    s_cmp_ge_u32 s2, 256
    s_cbranch_scc1 ke_done
    s_load_dwordx2 s[6:7], s[0:1], {KA_OUT}
    s_load_dwordx2 s[26:27], s[0:1], {KA_WS}
    s_lshr_b32 s29, s2, 4
    s_bfe_u32 s30, s2, 0x20002
    s_and_b32 s31, s2, 3
    v_lshlrev_b32 v20, 4, v0
    v_lshrrev_b32 v4, 5, v0
    v_and_b32 v5, 31, v0
    s_lshl_b32 s33, s29, 7
    s_lshl_b32 s34, s31, 5
    s_add_u32 s33, s33, s34
    v_add_u32 v5, s33, v5
    s_mul_i32 s34, s30, 18
    v_add_u32 v4, s34, v4
    v_lshlrev_b32 v21, 15, v4
    v_lshl_add_u32 v21, v5, 4, v21
    s_movk_i32 s35, 1152
    v_mul_lo_u32 v22, v5, s35
    v_lshl_add_u32 v22, v4, 4, v22
    s_mul_i32 s46, s2, {4*9216}
    s_waitcnt lgkmcnt(0)
    """)
    A.srd_off(16, 26, 27, WS_PART, FLAG_OFF)
    A.srd_off(20, 26, 27, WS_H, S * D * 2)
    A.srd(8, 6, 7, S * D * 2)
    e("buffer_load_dwordx4 v[28:31], v21, s[20:23], 0 offen")
    for sr in range(4):
        e(f"buffer_load_dwordx4 {v(32+4*sr,4)}, v20, s[16:19], s46 offen")
        e(f"s_add_u32 s46, s46, 9216")
    e("s_mov_b32 s40, 0xffff0000")
    e("s_waitcnt vmcnt(4)")
    for d in range(4):
        e(f"v_lshlrev_b32 v{8+2*d}, 16, v{28+d}")
        e(f"v_and_b32 v{9+2*d}, s40, v{28+d}")
    for sr in range(4):
        e(f"s_waitcnt vmcnt({3-sr})")
        for d in range(4):
            r = 32 + 4 * sr + d
            e(f"v_lshlrev_b32 v16, 16, v{r}")
            e(f"v_and_b32 v17, s40, v{r}")
            e(f"v_pk_add_f32 {v(8+2*d,2)}, {v(8+2*d,2)}, v[16:17]")
    for d in range(4):
        e(f"v_cvt_pk_bf16_f32 v{28+d}, v{8+2*d}, v{9+2*d}")
    e("buffer_store_dwordx4 v[28:31], v22, s[8:11], 0 offen")
    A.label("ke_done")
    e("s_endpgm")
    A.kernel_end(name, 48, 48)

HEADER = open("sequential_preLN__ssm_conv_h3__glu_gated_geglu__prompt.s.ref").read().split("; Override launch")[0]

def main():
    A = Asm()
    if FUSE_AB: k_ab(A)
    else:
        k_a(A)
        k_b(A)
    k_c(A)
    if not FUSE: k_d(A)
    if KD_SEP and not (FUSE and FUSE_E): k_e(A)
    A.label("code_end")
    A.e("s_endpgm")
    out = sys.argv[1] if len(sys.argv) > 1 else "k.s"
    open(out, "w").write(A.text(HEADER))

if __name__ == "__main__":
    main()
```
